```python
import torch

def _softmax(x, axis=-1):
    return torch.softmax(x, dim=axis)

def _gelu(x):
    return torch.nn.functional.gelu(x, approximate='tanh')

def _silu(x):
    return torch.nn.functional.silu(x)

def _sigmoid(x):
    return torch.sigmoid(x)

def _layernorm(x, axis=-1, eps=1e-05):
    m = x.mean(dim=axis, keepdim=True)
    v = x.var(dim=axis, keepdim=True, unbiased=False)
    return (x - m) / torch.sqrt(v + eps)

def _scatter_add(tgt, idx, src, axis=0):
    return tgt.clone().index_add_(axis, idx, src)

def _segment_sum(src, seg, n):
    out = torch.zeros((n,) + src.shape[1:], dtype=src.dtype)
    return out.index_add_(0, seg, src)

def _pad(x, pw):
    flat = tuple((v for pair in reversed(pw) for v in pair))
    return torch.nn.functional.pad(x, flat)
kernel_name = 'adaLN_cond__mha_block_cached__geglu_ffn__prompt'

def setup_inputs():

    _w = lambda a: (lambda t: t.to(torch.bfloat16) if t.is_floating_point() else t)(torch.as_tensor(a))

    def _A_setup():
        B, Sq, D = (1, 2048, 512)
        H, Sk, Dh = (32, 2048, 128)
        return {'x': _w((lambda *s: torch.randn(*s, dtype=torch.bfloat16) * 0.1)(B, Sq, D)), 'k_cache': _w((lambda *s: torch.randn(*s, dtype=torch.bfloat16) * 0.8)(B, H, Sk, Dh)), 'v_cache': _w((lambda *s: torch.randn(*s, dtype=torch.bfloat16) * 1.6)(B, H, Sk, Dh)), 'wq': _w((lambda *s: torch.randn(*s, dtype=torch.bfloat16) * 0.8)(D, H * Dh) * D ** (-0.5)), 'wo': _w((lambda *s: torch.randn(*s, dtype=torch.bfloat16) * 1.6)(H * Dh, D) * (H * Dh) ** (-0.5))}
    _A_in = _A_setup()

    def _B_setup():
        B, S, D, F = (1, 2048, 512, 1792)
        return {'x': _w((lambda *s: torch.randn(*s, dtype=torch.bfloat16) * 0.1)(B, S, D)), 'w_gate': _w((lambda *s: torch.randn(*s, dtype=torch.bfloat16) * 0.1)(D, F)), 'w_up': _w((lambda *s: torch.randn(*s, dtype=torch.bfloat16) * 0.1)(D, F)), 'w_down': _w((lambda *s: torch.randn(*s, dtype=torch.bfloat16) * 0.1)(F, D))}
    _B_in = _B_setup()
    return {'A_x': _A_in['x'], 'A_k_cache': _A_in['k_cache'], 'A_v_cache': _A_in['v_cache'], 'A_wq': _A_in['wq'], 'A_wo': _A_in['wo'], 'B_x': _B_in['x'], 'B_w_gate': _B_in['w_gate'], 'B_w_up': _B_in['w_up'], 'B_w_down': _B_in['w_down'], 'c': _w((lambda *s: torch.randn(*s, dtype=torch.bfloat16) * 0.8)(1, 512) * 8.0), 'w_mod': _w((lambda *s: torch.randn(*s, dtype=torch.bfloat16) * 0.8)(512, 6 * 512) * 512 ** (-0.5) * 8.0)}

def reference(A_x, A_k_cache, A_v_cache, A_wq, A_wo, B_x, B_w_gate, B_w_up, B_w_down, c, w_mod):

    def _A_ref(x, k_cache, v_cache, wq, wo):
        B, Sq, D = x.shape
        H, Dh = (32, 128)
        q = (lambda x, *d: x.permute(*d))((x @ wq).reshape(B, Sq, H, Dh), 0, 2, 1, 3)
        scores = torch.einsum('bhqd,bhkd->bhqk', q, k_cache) * Dh ** (-0.5)
        p = _softmax(scores, axis=-1)
        o = torch.einsum('bhqk,bhkd->bhqd', p, v_cache)
        return (lambda x, *d: x.permute(*d))(o, 0, 2, 1, 3).reshape(B, Sq, H * Dh) @ wo

    def _B_ref(x, w_gate, w_up, w_down):
        return _gelu(x @ w_gate) * (x @ w_up) @ w_down
    x = A_x
    mod = (_silu(c) @ w_mod).reshape(c.shape[0], 6, 1, -1)
    sa, ca, ga, sb, cb, gb = (mod[:, 0].clone(), mod[:, 1].clone(), mod[:, 2].clone(), mod[:, 3].clone(), mod[:, 4].clone(), mod[:, 5].clone())
    h = _layernorm(x, axis=-1) * (1 + ca) + sa
    x = x + ga * _A_ref(h, A_k_cache, A_v_cache, A_wq, A_wo)
    h = _layernorm(x, axis=-1) * (1 + cb) + sb
    x = x + gb * _B_ref(h, B_w_gate, B_w_up, B_w_down)
    return x
```

```python
import re

TRANS = ('v_exp_f32', 'v_log_f32', 'v_rcp_f32', 'v_rsq_f32', 'v_sqrt_f32', 'v_sin_f32', 'v_cos_f32', 'v_rcp_iflag_f32')

def v(i, n=1):
    return f'v{i}' if n == 1 else f'v[{i}:{i+n-1}]'
def a(i, n=1):
    return f'a{i}' if n == 1 else f'a[{i}:{i+n-1}]'
def s(i, n=1):
    return f's{i}' if n == 1 else f's[{i}:{i+n-1}]'

_REG = re.compile(r'^(-|abs\()?([vas])(?:(\d+)|\[(\d+):(\d+)\])\)?$')

def regs_of(tok):
    tok = tok.strip()
    tok = tok.strip('|')
    if tok in ('vcc', 'exec', 'm0', 'scc'):
        return {(tok, 0)}
    m = _REG.match(tok)
    if not m:
        return set()
    f = m.group(2)
    if m.group(3) is not None:
        lo = hi = int(m.group(3))
    else:
        lo, hi = int(m.group(4)), int(m.group(5))
    return {(f, i) for i in range(lo, hi + 1)}

class Ins:
    __slots__ = ('text', 'op', 'ops', 'wr', 'rd', 'kind', 'passes', 'srcc', 'states', 'ab')
    def __init__(self, text):
        self.text = text
        t = text.split(';')[0].strip()
        self.kind = None; self.wr = set(); self.rd = set(); self.passes = 0; self.srcc = set(); self.states = 1; self.ab = set()
        if not t or t.endswith(':') or t.startswith('.'):
            self.op = None; self.states = 0
            return
        parts = t.split(None, 1)
        op = parts[0]; self.op = op
        rest = parts[1] if len(parts) > 1 else ''
        ops = []; depth = 0; cur = ''
        for ch in rest:
            if ch == '[' or ch == '(': depth += 1
            if ch == ']' or ch == ')': depth -= 1
            if ch == ',' and depth == 0:
                ops.append(cur.strip()); cur = ''
            else:
                cur += ch
        if cur.strip(): ops.append(cur.strip())
        mods = ''
        if ops:
            sp = ops[-1].split(None, 1)
            ops[-1] = sp[0]
            mods = sp[1] if len(sp) > 1 else ''
        self.ops = ops
        R = [regs_of(o) for o in ops]
        if op.startswith('v_mfma'):
            self.kind = 'mfma'
            self.passes = 8 if '32x32' in op else 4
            self.wr = R[0]; self.rd = R[1] | R[2] | R[3]; self.srcc = R[3]; self.ab = R[1] | R[2]
        elif op.startswith('v_cmp'):
            self.kind = 'valu'; self.wr = R[0]; self.rd = set().union(*R[1:])
        elif op.startswith('v_permlane') and 'swap' in op:
            self.kind = 'valu'; self.wr = R[0] | R[1]; self.rd = R[0] | R[1]
        elif op.startswith('v_'):
            self.kind = 'valu'
            self.wr = set(R[0]); self.rd = set().union(*R[1:]) if len(R) > 1 else set()
            if op.startswith(('v_add_co', 'v_sub_co', 'v_addc_co', 'v_subb_co')):
                self.wr |= R[1]
            if op.startswith(('v_fmac', 'v_dot2c', 'v_pk_fmac')):
                self.rd |= R[0]
            if op.startswith('v_cndmask') and len(ops) == 3:
                self.rd |= {('vcc', 0)}
            if 'dpp' in op or 'row_' in mods or 'quad_perm' in mods:
                self.kind = 'dpp'
        elif op.startswith('ds_read') or op.startswith('ds_bpermute') or op.startswith('ds_swizzle'):
            self.kind = 'ds'; self.wr = R[0]; self.rd = set().union(*R[1:])
        elif op.startswith('ds_'):
            self.kind = 'ds'; self.rd = set().union(*R)
        elif op.startswith('buffer_load') or op.startswith('global_load'):
            self.kind = 'vmem'
            if ' lds' in (' ' + mods) or 'load_lds' in op:
                self.rd = set().union(*R) | {('m0', 0)}
                self.kind = 'dma'
            else:
                self.wr = R[0]; self.rd = set().union(*R[1:])
        elif op.startswith('buffer_store') or op.startswith('global_store'):
            self.kind = 'vstore'; self.rd = set().union(*R)
        elif op.startswith('buffer_atomic') or op.startswith('global_atomic'):
            self.kind = 'vmem'; self.rd = set().union(*R)
            if 'sc0' in mods: self.wr = R[0]
        elif op == 's_nop':
            self.kind = 'salu'; self.states = int(ops[0], 0) + 1
        elif op.startswith(('s_cmp', 's_waitcnt', 's_barrier', 's_branch', 's_cbranch', 's_endpgm', 's_setprio', 's_sleep', 'buffer_wbl2', 'buffer_inv')):
            self.kind = 'salu'; self.rd = set().union(*R) if R else set()
        elif op.startswith('s_load') or op.startswith('s_buffer_load') or op.startswith('s_mem'):
            self.kind = 'smem'; self.wr = R[0]; self.rd = set().union(*R[1:]) if len(R) > 1 else set()
        elif op.startswith('s_'):
            self.kind = 'salu'; self.wr = set(R[0]); self.rd = set().union(*R[1:]) if len(R) > 1 else set()
            if 'saveexec' in op: self.wr |= {('exec', 0)}
        else:
            raise ValueError('unknown instruction ' + text)

def check_hazards(lines, name=''):
    ins = [Ins(l) for l in lines]
    ins = [i for i in ins if i.op]
    out = []
    n = len(ins)
    for j in range(n):
        c = ins[j]
        dist = 0
        for i in range(j - 1, max(-1, j - 24), -1):
            p = ins[i]
            need = 0; why = ''
            isval = lambda k: k in ('valu', 'dpp')
            if isval(p.kind) and c.kind == 'mfma' and (p.wr & c.rd):
                need = 2; why = 'valu->mfma'
            if p.kind == 'mfma':
                big = p.passes == 8
                if c.kind == 'mfma':
                    if p.wr & c.ab:
                        need = max(need, 12 if big else 8); why = 'mfma D->mfma AB'
                    if p.wr & c.srcc and not (p.wr == c.srcc and p.passes == c.passes):
                        need = max(need, 10 if big else 6); why = 'mfma D->mfma C overlap'
                    if (p.wr & c.wr) and not (p.wr & c.srcc):
                        need = max(need, 10 if big else 6); why = 'mfma D->mfma D WAW'
                elif c.kind in ('valu', 'dpp', 'ds', 'vmem', 'vstore', 'dma'):
                    if p.wr & (c.rd | c.wr):
                        need = max(need, 12 if big else 8); why = 'mfma D->' + c.kind
                    if isval(c.kind) and (p.srcc & c.wr):
                        need = max(need, 7 if big else 3); why = 'mfma C WAR valu'
            if isval(p.kind) and p.op.replace('_e32', '').replace('_e64', '') in TRANS and isval(c.kind) and c.op.replace('_e32', '').replace('_e64', '') not in TRANS and (p.wr & c.rd):
                need = max(need, 1); why = 'trans->valu'
            if isval(p.kind) and c.op.startswith('v_permlane') and (p.wr & c.rd):
                need = max(need, 2); why = 'valu->permlane'
            if isval(p.kind) and c.kind == 'dpp' and (p.wr & c.rd):
                need = max(need, 2); why = 'valu->dpp'
            if isval(p.kind) and c.op.startswith(('v_readfirstlane', 'v_readlane')) and (p.wr & c.rd):
                need = max(need, 1); why = 'valu->readlane'
            if isval(p.kind):
                sw = {r for r in p.wr if r[0] in ('s', 'vcc')}
                if sw and c.kind in ('vmem', 'vstore', 'dma') and (sw & c.rd):
                    need = max(need, 5); why = 'valu sgpr->vmem'
                if sw and isval(c.kind) and (sw & c.rd):
                    need = max(need, 2); why = 'valu sgpr->valu'
            if p.kind == 'salu' and (('m0', 0) in p.wr) and c.kind == 'dma':
                need = max(need, 1); why = 'm0->dma'
            if p.kind == 'vstore' and ('x4' in p.op or 'x3' in p.op) and isval(c.kind):
                data = regs_of(p.ops[0]) if p.op.startswith('buffer') else regs_of(p.ops[1])
                if data & c.wr:
                    need = max(need, 2); why = 'store data WAR'
            if need > dist:
                out.append(f'{name}: hazard {why}: need {need} have {dist}: [{p.text.strip()}] -> [{c.text.strip()}]')
            dist += p.states
            if dist >= 20: break
    return out

class Q:
    def __init__(self, maxc):
        self.items = []; self.maxc = maxc
    def issue(self, tag):
        self.items.append(tag)
    def wait_for(self, pred):
        last = -1
        for i, t in enumerate(self.items):
            if pred(t): last = i
        if last < 0:
            return None
        n = len(self.items) - 1 - last
        n = min(n, self.maxc)
        self.items = self.items[len(self.items) - n:] if n > 0 else []
        return n
    def copy(self):
        q = Q(self.maxc); q.items = list(self.items); return q

def kernel_header(name):
    return [f'.globl {name}', '.p2align 8', f'.type {name},@function', f'{name}:']

def kernel_desc(name, vgpr, sgpr, accum):
    return [f'.amdhsa_kernel {name}',
            f'  .amdhsa_next_free_vgpr {vgpr}',
            f'  .amdhsa_next_free_sgpr {sgpr}',
            f'  .amdhsa_accum_offset {accum}',
            '  .amdhsa_group_segment_fixed_size 0',
            '  .amdhsa_kernarg_size 112',
            '  .amdhsa_user_sgpr_count 2',
            '  .amdhsa_user_sgpr_kernarg_segment_ptr 1',
            '  .amdhsa_system_sgpr_workgroup_id_x 1',
            '  .amdhsa_float_denorm_mode_32 3',
            '.end_amdhsa_kernel']

def srd(L, d, base, nbytes):
    L.append(f's_mov_b32 s{d}, s{base}')
    L.append(f's_and_b32 s{d+1}, s{base+1}, 0xffff')
    L.append(f's_mov_b32 s{d+2}, {nbytes}')
    L.append(f's_mov_b32 s{d+3}, 0x00020000')

def srd_off(L, d, base, off, nbytes):
    L.append(f's_add_u32 s{d}, s{base}, {off}')
    L.append(f's_addc_u32 s{d+1}, s{base+1}, 0')
    L.append(f's_and_b32 s{d+1}, s{d+1}, 0xffff')
    L.append(f's_mov_b32 s{d+2}, {nbytes}')
    L.append(f's_mov_b32 s{d+3}, 0x00020000')
```

```python
from asmlib import *
from k_small import *
import math

def O_(db, qb): return 16 * (2 * db + qb)
def Q_(qb, s_): return 128 + 4 * (8 * qb + s_)
def KF(s_): return 192 + 4 * s_
def VF(ks, db): return 224 + 4 * (4 * ks + db)
KAD = 16
VAD = 24
WAD = 28
WAD2 = 200
def S_(p, qb): return 32 + 32 * p + 16 * qb
def P_(p, qb): return 96 + 16 * p + 8 * qb
def NEGM(qb): return 128 + 16 * qb
def LS(qb): return 160 + 4 * qb
ONES = 168
TMP = 172
MX = 180
VKD0, VKD1, VVD, VWD, VH = 182, 183, 184, 185, 186
RT = 188
def QA(db, qb): return 32 + 16 * (2 * db + qb)
def HF(c, ks, qb): return 32 * (c % 4) + 8 * ks + 4 * qb
def WF(st, db): return 192 + 16 * st + 4 * db

SK, SV, SW, SH, SO = 8, 12, 16, 20, 24
S_W, S_HEAD, S_QB, S_CNT, S_KOFF, S_VOFF, S_SLOT, S_WB, S_WBV, S_THR, S_T0, S_T1 = 28, 29, 30, 31, 32, 33, 34, 35, 36, 37, 38, 39
S_RET = 40
S_H0, S_H1 = 42, 43
S_O0, S_O1, S_O2, S_O3 = 44, 45, 46, 47

THRESH = 64.0
BIAS = 56.0
QSCALE = (128 ** -0.5) * 1.4426950408889634

import struct
def f2u(x): return struct.unpack('<I', struct.pack('<f', x))[0]

HC_LOC = [0*8192, 1*8192, 2*8192, 65536+0*8192, 3*8192, 65536+1*8192, 4*8192, 65536+2*8192,
          5*8192, 65536+3*8192, 6*8192, 65536+4*8192, 7*8192, 65536+5*8192, 65536+6*8192, 65536+7*8192]
KV_AFTER = [[('K', 0), ('K', 1)], [('K', 2), ('V', 0)], [('K', 3), ('V', 1)], [('K', 4), ('V', 2)],
            [('K', 5), ('V', 3)], [('K', 6), ('V', 4)], [('K', 7), ('V', 5)], []]

COST = {'exp': 8, 'valu': 4, 'ds': 4, 'dma': 16, 'salu': 4, 'wait': 0}

def interleave(mf, queues, pre=None):
    out = []
    n = len(mf)
    qs = [dict(q) for q in queues]
    for q in qs:
        q['items'] = list(q['items'])
        q['tot'] = sum(c for _, c in q['items'])
        q['done'] = 0
        q['end'] = min(q.get('end', n - 1), n - 1)
        q['span'] = sum(mf[g][1] for g in range(q['start'], q['end'] + 1))
    for g, (t, bud) in enumerate(mf):
        if pre and g in pre:
            out += pre[g]
        out.append(t)
        left = bud
        progress = True
        while progress:
            progress = False
            best = None; bestlag = -1e9
            for q in qs:
                if g < q['start'] or not q['items']: continue
                if g >= q['end']:
                    lag = 1e6
                else:
                    frac = sum(mf[gg][1] for gg in range(q['start'], g + 1)) / q['span']
                    lag = (frac * q['tot'] - q['done']) / max(q['tot'], 1)
                    if q['done'] >= frac * q['tot']: continue
                    c = q['items'][0][1]
                    if c > left and left < bud: continue
                    if left <= 0: continue
                if lag > bestlag: best = q; bestlag = lag
            if best is not None:
                txt, c = best['items'].pop(0)
                out.append(txt); best['done'] += c; left -= c
                progress = True
    for q in qs:
        assert not q['items'], q['items']
    return out


def softmax_ops(p):
    ops = []
    prev = None
    qi = 0
    for qb in range(2):
        for i in range(8):
            sa, sb = S_(p, qb) + 2 * i, S_(p, qb) + 2 * i + 1
            ta, tb = TMP + 2 * (qi % 4), TMP + 2 * (qi % 4) + 1
            ops.append((f'v_exp_f32 v{ta}, v{sa}', 8))
            if prev: ops.append(prev)
            ops.append((f'v_exp_f32 v{tb}, v{sb}', 8))
            if i == 0:
                ops.append((f'v_max_f32 v{MX+qb}, v{sa}, v{sb}', 4))
            else:
                ops.append((f'v_max3_f32 v{MX+qb}, v{MX+qb}, v{sa}, v{sb}', 4))
            prev = (f'v_cvt_pk_bf16_f32 v{P_(p,qb)+i}, v{ta}, v{tb}', 4)
            qi += 1
    ops.append((f'v_max_f32 v{RT}, v{MX}, v{MX+1}', 4))
    ops.append(prev)
    ops.append((f'v_cmp_lt_f32 vcc, s{S_THR}, v{RT}', 4))
    return ops


FAKE16 = False
NOVALU = False
NOLDS = False
NODMA = False
WQLIN = False
NOH = False
PROFQ = False
def pv_mfmas(p):
    m = []
    for ks in range(2):
        for db in range(4):
            for qb in range(2):
                if FAKE16:
                    for t in range(2):
                        o = O_(db, qb) + 4 * (2 * ks + t)
                        m.append((f'v_mfma_f32_16x16x32_bf16 {a(o,4)}, {a(VF(ks,db),4)}, {v(P_(p,qb)+4*ks,4)}, {a(o,4)}', 8))
                    continue
                m.append((f'v_mfma_f32_32x32x16_bf16 {a(O_(db,qb),16)}, {a(VF(ks,db),4)}, {v(P_(p,qb)+4*ks,4)}, {a(O_(db,qb),16)}', 24))
        for qb in range(2):
            m.append((f'v_mfma_f32_16x16x32_bf16 {v(LS(qb),4)}, {v(ONES,4)}, {v(P_(p,qb)+4*ks,4)}, {v(LS(qb),4)}', 8))
    return m

def qk_mfmas(p, czero=False):
    m = []
    for s_ in range(8):
        for qb in range(2):
            if FAKE16 and not czero:
                for t in range(2):
                    o = S_(p, qb) + 4 * (2 * (s_ % 2) + t)
                    c = v(o, 4) if s_ >= 2 else v(NEGM(qb), 4)
                    m.append((f'v_mfma_f32_16x16x32_bf16 {v(o,4)}, {a(KF(s_),4)}, {a(Q_(qb,s_),4)}, {c}', 8))
                continue
            c = v(S_(p, qb), 16) if s_ else ('0' if czero else v(NEGM(qb), 16))
            m.append((f'v_mfma_f32_32x32x16_bf16 {v(S_(p,qb),16)}, {a(KF(s_),4)}, {a(Q_(qb,s_),4)}, {c}', 24))
    return m

def k_reads(slot):
    ops = []
    if slot % 4 == 0:
        for s_ in range(8):
            ops.append((f'v_xor_b32 v{KAD+s_}, 0x8000, v{KAD+s_}', 4))
    for s_ in range(8):
        ops.append((f'ds_read_b128 {a(KF(s_),4)}, v{KAD+s_} offset:{(slot%4)*8192}', 4))
    return ops

def v_reads(slot):
    ops = []
    if slot % 4 == 0:
        for db in range(4):
            ops.append((f'v_xor_b32 v{VAD+db}, 0x8000, v{VAD+db}', 4))
    for ks in range(2):
        for db in range(4):
            for aa in range(2):
                ops.append((f'ds_read_b64_tr_b16 {a(VF(ks,db)+2*aa,2)}, v{VAD+db} offset:{(slot%4)*8192 + (16*ks+8*aa)*256}', 4))
    return ops

def dma_ops():
    return [
        (f's_add_u32 m0, s{S_SLOT}, s{S_WB}', 4),
        (f's_add_u32 s{S_T0}, s{S_SLOT}, 49152', 4),
        (f'buffer_load_dwordx4 v{VKD0}, s[{SK}:{SK+3}], s{S_KOFF} offen lds', 16),
        (f's_and_b32 s{S_T0}, s{S_T0}, 0xffff', 4),
        (f'buffer_load_dwordx4 v{VKD1}, s[{SK}:{SK+3}], s{S_KOFF} offen offset:1024 lds', 16),
        (f's_add_u32 m0, s{S_T0}, s{S_WBV}', 4),
        (f's_add_u32 s{S_SLOT}, s{S_SLOT}, 8192', 4),
        (f'buffer_load_dwordx4 v{VVD}, s[{SV}:{SV+3}], s{S_VOFF} offen lds', 16),
        (f's_and_b32 s{S_SLOT}, s{S_SLOT}, 0xffff', 4),
        (f'buffer_load_dwordx4 v{VVD}, s[{SV}:{SV+3}], s{S_VOFF} offen offset:1024 lds', 16),
        (f's_add_u32 s{S_KOFF}, s{S_KOFF}, 8192', 4),
        (f's_add_u32 s{S_VOFF}, s{S_VOFF}, 8192', 4),
    ]


def body(j, name, tag, do_pv=True, do_qk=True, dma=True, vm=20):
    p = j % 2
    F = 2 if FAKE16 else 1
    mf = []
    if do_pv: mf += pv_mfmas(1 - p)
    npv = len(mf)
    if do_qk: mf += qk_mfmas(1 - p)
    n = len(mf)
    pre = {}
    L = []
    queues = []
    bar = [f's_waitcnt vmcnt({vm})', 's_barrier']
    if do_pv:
        pre[0] = ['s_waitcnt lgkmcnt(0)']
        pre[1] = list(bar)
        kstart = 1
    else:
        L += bar
        kstart = 0
    if do_qk:
        if do_pv:
            queues.append(dict(items=k_reads((j + 1) % 8), start=kstart, end=min(kstart + 9 * F, npv - 2)))
            pre.setdefault(npv, []).append('s_waitcnt lgkmcnt(0)')
        else:
            L += [t for t, _ in k_reads((j + 1) % 8)]
            pre.setdefault(0, []).append('s_waitcnt lgkmcnt(0)')
    if dma:
        queues.append(dict(items=dma_ops(), start=(8 * F if do_pv else 2), end=(npv - 1 if do_pv else 13 * F)))
    vstart = npv if do_qk else npv - 1
    queues.append(dict(items=v_reads(j % 8), start=vstart, end=min(vstart + 11 * F, n - 1)))
    queues.append(dict(items=softmax_ops(p), start=(3 if do_qk else 6) if do_pv else 2, end=n - 2))
    if tag.startswith('l'):
        if NOVALU: queues[-1]['items'] = [(f'v_cmp_lt_f32 vcc, s{S_THR}, v{ONES}', 4)]
        if NOLDS:
            for q in queues:
                q['items'] = [x for x in q['items'] if not x[0].startswith('ds_read')]
        if NODMA:
            for q in queues:
                q['items'] = [x for x in q['items'] if not x[0].startswith('buffer_load')]
    L += interleave(mf, queues, pre)
    L.append(f's_cbranch_vccnz {name}_tr_{tag}')
    L.append(f'{name}_back_{tag}:')
    tramp = [f'{name}_tr_{tag}:', f's_call_b64 s[{S_RET}:{S_RET+1}], {name}_rare{p}', f's_branch {name}_back_{tag}']
    return L, tramp


def rowmax_delta(e, qb, clamp):
    t1, t2 = RT + 1, RT + 2
    e(f'v_mov_b32 v{t1}, v{MX+qb}')
    e(f'v_mov_b32 v{t2}, v{MX+qb}')
    e('s_nop 1')
    e(f'v_permlane32_swap_b32 v{t1}, v{t2}')
    e(f'v_max_f32 v{t1}, v{t1}, v{t2}')
    e(f'v_ceil_f32 v{t1}, v{t1}')
    e(f'v_add_f32 v{t1}, 0x{f2u(BIAS):08x}, v{t1}')
    if clamp:
        e(f'v_max_f32 v{t1}, 0, v{t1}')
    return t1

def rare(name, p):
    L = [f'{name}_rare{p}:']
    e = L.append
    e('s_nop 15'); e('s_nop 15')
    for qb in range(2):
        d = rowmax_delta(e, qb, True)
        f = RT + 3
        e(f'v_cvt_i32_f32 v{f}, v{d}')
        e(f'v_sub_u32 v{f}, 0, v{f}')
        e(f'v_ldexp_f32 v{f}, 1.0, v{f}')
        e(f'v_sub_f32 v{NEGM(qb)}, v{NEGM(qb)}, v{d}')
        for i in range(1, 16):
            e(f'v_mov_b32 v{NEGM(qb)+i}, v{NEGM(qb)}')
        for pp in range(2):
            for i in range(16):
                e(f'v_sub_f32 v{S_(pp,qb)+i}, v{S_(pp,qb)+i}, v{d}')
        for i in range(8):
            e(f'v_exp_f32 v{RT+4}, v{S_(p,qb)+2*i}')
            e(f'v_exp_f32 v{RT+5}, v{S_(p,qb)+2*i+1}')
            e('s_nop 0')
            e(f'v_cvt_pk_bf16_f32 v{P_(p,qb)+i}, v{RT+4}, v{RT+5}')
        for i in range(4):
            e(f'v_mul_f32 v{LS(qb)+i}, v{LS(qb)+i}, v{f}')
        for db in range(4):
            for i in range(0, 16, 4):
                for k in range(4):
                    e(f'v_accvgpr_read_b32 v{RT+4+k}, a{O_(db,qb)+i+k}')
                for k in range(4):
                    e(f'v_mul_f32 v{RT+4+k}, v{RT+4+k}, v{f}')
                for k in range(4):
                    e(f'v_accvgpr_write_b32 a{O_(db,qb)+i+k}, v{RT+4+k}')
    e('s_nop 1')
    e(f's_setpc_b64 s[{S_RET}:{S_RET+1}]')
    return L


def gen_attn(name='attn_kernel', prof=False):
    L = kernel_header(name)
    e = L.append
    vq = Q(63)
    def stamp(i, q=False):
        if prof and (q == PROFQ or i in (0, 4)):
            e(f's_memtime s[{64+2*i}:{65+2*i}]')
    if prof:
        e('s_memrealtime s[80:81]')
    stamp(0)
    e('s_cmp_ge_u32 s2, 256')
    e(f's_cbranch_scc1 {name}_done')
    e(f's_load_dwordx4 s[48:51], s[0:1], {KA["k"]}')
    e(f's_load_dwordx2 s[52:53], s[0:1], {KA["wq"]}')
    e(f's_load_dwordx2 s[54:55], s[0:1], {KA["ws"]}')
    e('v_lshrrev_b32 v1, 6, v0')
    e('v_and_b32 v2, 63, v0')
    e(f'v_readfirstlane_b32 s{S_W}, v1')
    e(f's_and_b32 s{S_T0}, s2, 7')
    e(f's_lshr_b32 s{S_T1}, s2, 3')
    e(f's_lshl_b32 s{S_HEAD}, s{S_T0}, 2')
    e(f's_and_b32 s{S_T0}, s{S_T1}, 3')
    e(f's_add_u32 s{S_HEAD}, s{S_HEAD}, s{S_T0}')
    e(f's_lshr_b32 s{S_QB}, s{S_T1}, 2')
    e(f's_lshl_b32 s{S_WB}, s{S_W}, 11')
    e(f's_add_u32 s{S_WBV}, s{S_WB}, 65536')
    e(f's_mov_b32 s{S_THR}, 0x{f2u(THRESH):08x}')
    e('v_lshrrev_b32 v3, 4, v2')
    e('v_and_b32 v4, 15, v2')
    e('v_lshrrev_b32 v5, 5, v2')
    e('v_and_b32 v6, 31, v2')
    e('v_and_b32 v7, 1, v3')
    e('v_lshrrev_b32 v8, 2, v4')
    e('v_and_b32 v9, 3, v2')
    e(f'v_lshlrev_b32 v{VH}, 4, v2')
    e(f's_lshl_b32 s{S_T0}, s{S_W}, 3')
    e(f'v_add_u32 v10, s{S_T0}, v3')
    e('v_and_b32 v11, 15, v10')
    e('v_xor_b32 v11, v11, v4')
    e('v_lshlrev_b32 v12, 8, v10')
    e(f'v_lshl_add_u32 v{VKD0}, v11, 4, v12')
    e('v_add_u32 v11, 4, v10')
    e('v_and_b32 v11, 15, v11')
    e('v_xor_b32 v11, v11, v4')
    e(f'v_lshl_add_u32 v{VKD1}, v11, 4, v12')
    e('v_lshlrev_b32 v11, 2, v3')
    e('v_xor_b32 v11, v11, v4')
    e(f'v_lshl_add_u32 v{VVD}, v11, 4, v12')
    e(f'v_lshlrev_b32 v12, {8 if WQLIN else 13}, v10')
    e(f'v_lshl_add_u32 v{VWD}, v11, 4, v12')
    e(f's_lshl_b32 s{S_T0}, s{S_HEAD}, {17 if WQLIN else 8}')
    e(f'v_add_u32 v{VWD}, s{S_T0}, v{VWD}')
    e('v_and_b32 v10, 15, v6')
    e('v_lshlrev_b32 v12, 8, v6')
    for s_ in range(8):
        e(f'v_add_u32 v11, {2*s_}, v5')
        e('v_xor_b32 v11, v11, v10')
        e(f'v_lshl_add_u32 v{KAD+s_}, v11, 4, v12')
        e(f'v_xor_b32 v{KAD+s_}, 0x8000, v{KAD+s_}')
    e('v_lshl_add_u32 v10, v5, 2, v8')
    e('v_lshlrev_b32 v10, 8, v10')
    e('v_lshl_add_u32 v10, v7, 5, v10')
    e('v_lshl_add_u32 v13, v9, 3, v10')
    e('v_add_u32 v13, 0x18000, v13')
    for db in range(4):
        e(f'v_xor_b32 v11, {db}, v8')
        e(f'v_lshl_add_u32 v{VAD+db}, v11, 6, v13')
    e('v_lshl_add_u32 v10, v5, 3, v8')
    e('v_lshlrev_b32 v10, 8, v10')
    e('v_lshl_add_u32 v10, v7, 5, v10')
    e('v_and_b32 v11, 1, v9')
    e('v_lshlrev_b32 v11, 1, v11')
    e('v_lshrrev_b32 v12, 1, v9')
    e('v_or_b32 v11, v11, v12')
    e('v_lshl_add_u32 v13, v11, 3, v10')
    for db in range(4):
        e(f'v_xor_b32 v11, {db}, v8')
        e(f'v_lshl_add_u32 v{WAD+db}, v11, 6, v13')
        e(f'v_add_u32 v{WAD2+db}, 0x10000, v{WAD+db}')
    e('v_lshrrev_b32 v10, 2, v2')
    e('v_xor_b32 v10, v10, v3')
    e('v_and_b32 v10, 1, v10')
    e('v_cmp_eq_u32 vcc, 0, v10')
    e('v_mov_b32 v11, 0x3f803f80')
    e('s_waitcnt lgkmcnt(0)')
    for i in range(4):
        e(f'v_cndmask_b32 v{ONES+i}, 0, v11, vcc')
    e(f's_lshl_b32 s{S_T0}, s{S_HEAD}, 19')
    srd_off(L, SK, 48, f's{S_T0}', 524288)
    srd_off(L, SV, 50, f's{S_T0}', 524288)
    srd(L, SW, 52, 512 * 8192)
    srd_off(L, SH, 54, H1_OFF, 2048 * 1024)
    srd_off(L, SO, 54, O_OFF, 2048 * 8192)
    e(f's_lshl_b32 s{S_T0}, s{S_QB}, 3')
    e(f's_lshl_b32 s{S_T1}, s{S_W}, 1')
    e(f's_add_u32 s{S_T0}, s{S_T0}, s{S_T1}')
    e(f's_lshl_b32 s{S_H0}, s{S_T0}, 15')
    e(f's_add_u32 s{S_H1}, s{S_H0}, 32768')
    e(f's_lshl_b32 s{S_O0}, s{S_T0}, 18')
    e(f's_lshl_b32 s{S_T1}, s{S_HEAD}, 13')
    e(f's_add_u32 s{S_O0}, s{S_O0}, s{S_T1}')
    e(f's_add_u32 s{S_O1}, s{S_O0}, 4096')
    e(f's_add_u32 s{S_O2}, s{S_O0}, {1<<18}')
    e(f's_add_u32 s{S_O3}, s{S_O2}, 4096')

    def issue_D(c):
        for hcl in range(2):
            hc = 2 * c + hcl
            for i in range(2):
                e(f's_add_u32 m0, s{S_WB}, {HC_LOC[hc] + i*1024}')
                e(f's_mov_b32 s{S_T0}, {(32*hc + 4*i)*(256 if WQLIN else 8192)}')
                e(f'buffer_load_dwordx4 v{VWD}, s[{SW}:{SW+3}], s{S_T0} offen lds')
                vq.issue(('D', c))
    def issue_H(c):
        for ks in range(4):
            for qb in range(2):
                e(f'buffer_load_dwordx4 {a(HF(c,ks,qb),4)}, v{VH}, s[{SH}:{SH+3}], s{S_H0+qb} offen offset:{ks*1024}')
                vq.issue(('H', c))
        if not NOH:
            e(f's_add_u32 s{S_H0}, s{S_H0}, 4096')
            e(f's_add_u32 s{S_H1}, s{S_H1}, 4096')
    def issue_KV(kind, t):
        base = t * 8192 + (0 if kind == 'K' else 65536)
        e(f's_add_u32 m0, s{S_WB}, {base}')
        e(f's_mov_b32 s{S_T0}, {t*8192}')
        if kind == 'K':
            e(f'buffer_load_dwordx4 v{VKD0}, s[{SK}:{SK+3}], s{S_T0} offen lds')
            e(f'buffer_load_dwordx4 v{VKD1}, s[{SK}:{SK+3}], s{S_T0} offen offset:1024 lds')
        else:
            e(f'buffer_load_dwordx4 v{VVD}, s[{SV}:{SV+3}], s{S_T0} offen lds')
            e(f'buffer_load_dwordx4 v{VVD}, s[{SV}:{SV+3}], s{S_T0} offen offset:1024 lds')
        vq.issue((kind, t)); vq.issue((kind, t))
    def w_reads(kstep):
        hc = kstep // 2
        loc = HC_LOC[hc] + (kstep % 2) * 4096
        base = WAD if loc < 65536 else WAD2
        loc &= 0xffff
        st = kstep % 2
        ops = []
        for db in range(4):
            for aa in range(2):
                ops.append((f'ds_read_b64_tr_b16 {a(WF(st,db)+2*aa,2)}, v{base+db} offset:{loc + aa*1024}', 4))
        return ops

    for c in range(4):
        issue_D(c); issue_H(c)
    n = vq.wait_for(lambda t: t == ('D', 0))
    e(f's_waitcnt vmcnt({n})')
    e('s_barrier')
    stamp(1, True)
    L += [t for t, _ in w_reads(0)]
    for c in range(8):
        for ks in range(4):
            kstep = 4 * c + ks
            st = kstep % 2
            pre = []
            if ks == 0:
                n = vq.wait_for(lambda t: t == ('H', c))
                pre.append(f's_waitcnt vmcnt({n})')
            pre.append('s_waitcnt lgkmcnt(0)')
            L += pre
            if ks == 3:
                if c < 7:
                    n = vq.wait_for(lambda t: t == ('D', c + 1))
                else:
                    n = vq.wait_for(lambda t: t in (('K', 0),))
                if n is not None:
                    e(f's_waitcnt vmcnt({n})')
                e('s_barrier')
                for kind, t in KV_AFTER[c]:
                    issue_KV(kind, t)
            mf = []
            for db in range(4):
                for qb in range(2):
                    cc = '0' if kstep == 0 else v(QA(db, qb), 16)
                    mf.append((f'v_mfma_f32_32x32x16_bf16 {v(QA(db,qb),16)}, {a(WF(st,db),4)}, {a(HF(c,ks,qb),4)}, {cc}', 24))
            if kstep < 31:
                nxt = w_reads(kstep + 1)
            else:
                nxt = []
            L += interleave(mf, [dict(items=nxt, start=0, end=5)])
        if c + 4 < 8:
            issue_D(c + 4); issue_H(c + 4)
        if c == 3: stamp(2, True)
        if c == 7: stamp(3, True)
    stamp(1)
    L += [t for t, _ in k_reads(0)]
    e(f's_mov_b32 s{S_T0}, 0x{f2u(QSCALE):08x}')
    e('s_nop 7')
    for db in range(4):
        for qb in range(2):
            for sp in range(2):
                for i in range(4):
                    r = QA(db, qb) + 8 * sp + 2 * i
                    e(f'v_mul_f32 v{r}, s{S_T0}, v{r}')
                    e(f'v_mul_f32 v{r+1}, s{S_T0}, v{r+1}')
                for i in range(4):
                    r = QA(db, qb) + 8 * sp + 2 * i
                    e(f'v_cvt_pk_bf16_f32 v{TMP+i}, v{r}, v{r+1}')
                for i in range(4):
                    e(f'v_accvgpr_write_b32 a{Q_(qb, 2*db+sp)+i}, v{TMP+i}')
    e('s_waitcnt lgkmcnt(0)')
    e('s_nop 1')
    zero = [(f'v_accvgpr_write_b32 a{i}, 0', 4) for i in range(128)] + [(f'v_mov_b32 v{LS(0)+i}, 0', 4) for i in range(8)]
    L += interleave(qk_mfmas(0, czero=True), [dict(items=zero, start=0, end=15)])
    e('s_nop 15')
    for qb in range(2):
        e(f'v_max_f32 v{MX+qb}, v{S_(0,qb)}, v{S_(0,qb)+1}')
        for i in range(1, 8):
            e(f'v_max3_f32 v{MX+qb}, v{MX+qb}, v{S_(0,qb)+2*i}, v{S_(0,qb)+2*i+1}')
        d = rowmax_delta(e, qb, False)
        e(f'v_sub_f32 v{NEGM(qb)}, 0, v{d}')
        for i in range(1, 16):
            e(f'v_mov_b32 v{NEGM(qb)+i}, v{NEGM(qb)}')
        for i in range(16):
            e(f'v_sub_f32 v{S_(0,qb)+i}, v{S_(0,qb)+i}, v{d}')
    e(f's_mov_b32 s{S_SLOT}, 0')
    e(f's_mov_b32 s{S_KOFF}, {8*8192}')
    e(f's_mov_b32 s{S_VOFF}, {6*8192}')
    stamp(2)
    tramps = []
    b0, t0 = body(0, name, 'p0', do_pv=False)
    L += b0; tramps += t0
    e(f's_mov_b32 s{S_CNT}, 15')
    e(f'{name}_loop:')
    loop = []
    for u in range(4):
        b, t = body(1 + u, name, f'l{u}')
        loop += b; tramps += t
    L += loop
    e(f's_sub_u32 s{S_CNT}, s{S_CNT}, 1')
    e(f's_cmp_lg_u32 s{S_CNT}, 0')
    e(f's_cbranch_scc1 {name}_loop')
    tail = []
    b, t = body(61, name, 't61', dma=False, vm=20); tail += b; tramps += t
    b, t = body(62, name, 't62', dma=False, vm=16); tail += b; tramps += t
    b, t = body(63, name, 't63', dma=False, do_qk=False, vm=12); tail += b; tramps += t
    L += tail
    stamp(3)
    ep = []
    ep.append('s_waitcnt lgkmcnt(0)')
    ep += [t for t, _ in pv_mfmas(1)]
    ep.append('s_nop 15')
    for qb in range(2):
        ep.append(f'v_rcp_f32 v{RT+qb}, v{LS(qb)}')
    ep.append('s_nop 3')
    k = 0
    for qb in range(2):
        for db in range(4):
            for sp in range(2):
                base = 32 + 8 * (k % 8)
                pk = 96 + 4 * (k % 8)
                for i in range(8):
                    ep.append(f'v_accvgpr_read_b32 v{base+i}, a{O_(db,qb)+8*sp+i}')
                for i in range(8):
                    ep.append(f'v_mul_f32 v{base+i}, v{base+i}, v{RT+qb}')
                for i in range(4):
                    ep.append(f'v_cvt_pk_bf16_f32 v{pk+i}, v{base+2*i}, v{base+2*i+1}')
                t = 2 * db + sp
                so = S_O0 + 2 * qb + (1 if t >= 4 else 0)
                ep.append(f'buffer_store_dwordx4 {v(pk,4)}, v{VH}, s[{SO}:{SO+3}], s{so} offen offset:{(t%4)*1024}')
                k += 1
    L += ep
    if prof:
        e('s_waitcnt vmcnt(0)')
        stamp(4)
        e('s_memrealtime s[82:83]')
        e('s_waitcnt lgkmcnt(0)')
        srd_off(L, 84, 54, 64 << 20, 1 << 20)
        for i in range(5):
            e(f'v_mov_b32 v{32+i}, s{64+2*i}')
        e('v_mov_b32 v37, s80')
        e('v_mov_b32 v38, s82')
        e('v_mov_b32 v39, 0')
        e('s_lshl_b32 s88, s2, 2')
        e(f's_add_u32 s88, s88, s{S_W}')
        e('s_lshl_b32 s88, s88, 5')
        e('v_mov_b32 v40, 0')
        e('buffer_store_dwordx4 v[32:35], v40, s[84:87], s88 offen')
        e('buffer_store_dwordx4 v[36:39], v40, s[84:87], s88 offen offset:16')
    e(f'{name}_done:')
    e('s_endpgm')
    L += tramps
    L += rare(name, 0) + rare(name, 1)
    pro_end = L.index(f'{name}_loop:')
    trace = L[:pro_end] + loop + loop + tail + ep
    hz = check_hazards(trace, name)
    hz += check_hazards(loop[-30:] + rare(name, 0) + loop[:30], name + '_rare0')
    hz += check_hazards(loop[-30:] + rare(name, 1) + loop[:30], name + '_rare1')
    for h in hz: print('HAZARD', h)
    return L, kernel_desc(name, 512, 96, 256), f'; @launch kernel={name} grid=(256,1,1) block=(256,1,1) lds=131072'
```

```python
from asmlib import *
from k_small import *
from k_attn import interleave

def gen_splitk(name, shape, K, w_ka, b_off, b_bytes, res, gmod_off, dst):
    NS = K // 4 // 32
    D = 6
    L = kernel_header(name)
    e = L.append
    vq = Q(63)
    SWT, SB, SR, SM, SD = 8, 12, 16, 20, 24
    S_W, S_MT, S_NT, S_T0, S_T1, S_LB = 28, 29, 30, 31, 32, 33
    S_B = 34
    S_WO = 38
    VWD, VH, VAD = 10, 11, 12
    ACC = 32
    def BF(t, i): return 16 * (t % 8) + 4 * i
    def AF(st, i): return 128 + 16 * st + 4 * i
    e('s_cmp_ge_u32 s2, 256')
    e(f's_cbranch_scc1 {name}_done')
    e(f's_load_dwordx2 s[48:49], s[0:1], {w_ka}')
    e(f's_load_dwordx2 s[50:51], s[0:1], {KA["ws"]}')
    if res[0] == 'in':
        e(f's_load_dwordx2 s[52:53], s[0:1], {res[1]}')
    if dst[0] == 'out':
        e(f's_load_dwordx2 s[54:55], s[0:1], {KA["out"]}')
    e('v_lshrrev_b32 v1, 6, v0')
    e('v_and_b32 v2, 63, v0')
    e(f'v_readfirstlane_b32 s{S_W}, v1')
    e(f's_and_b32 s{S_T0}, s2, 7')
    e(f's_lshr_b32 s{S_T1}, s2, 3')
    e(f's_lshl_b32 s{S_MT}, s{S_T0}, 2')
    e(f's_and_b32 s{S_T0}, s{S_T1}, 3')
    e(f's_add_u32 s{S_MT}, s{S_MT}, s{S_T0}')
    e(f's_lshr_b32 s{S_NT}, s{S_T1}, 2')
    e(f's_lshl_b32 s{S_LB}, s{S_W}, 15')
    e('v_lshrrev_b32 v3, 3, v2')
    e('v_and_b32 v4, 7, v2')
    e('v_lshrrev_b32 v5, 1, v3')
    if shape == 32:
        e('v_and_b32 v5, 1, v5'); e('v_lshlrev_b32 v5, 2, v5')
    else:
        e('v_and_b32 v5, 3, v5'); e('v_lshlrev_b32 v5, 1, v5')
    e('v_xor_b32 v4, v4, v5')
    e('v_lshlrev_b32 v3, 10, v3')
    e(f'v_lshl_add_u32 v{VWD}, v4, 4, v3')
    e(f's_lshl_b32 s{S_T0}, s{S_NT}, 7')
    e(f'v_add_u32 v{VWD}, s{S_T0}, v{VWD}')
    e(f'v_lshlrev_b32 v{VH}, 4, v2')
    e(f's_mul_i32 s{S_WO}, s{S_W}, {K//4*1024}')
    if shape == 32:
        nrb = 2; fr_per_blk = K // 16; per_slot = 2
    else:
        nrb = 4; fr_per_blk = K // 32; per_slot = 1
    e(f's_mul_i32 s{S_T0}, s{S_MT}, {nrb*fr_per_blk*1024}')
    e(f's_mul_i32 s{S_T1}, s{S_W}, {fr_per_blk//4*1024}')
    e(f's_add_u32 s{S_B}, s{S_T0}, s{S_T1}')
    for rb in range(1, nrb):
        e(f's_add_u32 s{S_B+rb}, s{S_B+rb-1}, {fr_per_blk*1024}')
    e('v_lshrrev_b32 v3, 4, v2')
    e('v_and_b32 v4, 15, v2')
    e('v_lshrrev_b32 v5, 2, v4')
    e('v_and_b32 v6, 3, v2')
    if shape == 32:
        e('v_lshrrev_b32 v7, 1, v3')
        e('v_and_b32 v8, 1, v3')
        e('v_lshl_add_u32 v7, v7, 2, v5')
        e('v_lshlrev_b32 v7, 7, v7')
        e('v_lshl_add_u32 v7, v8, 5, v7')
        e('v_lshl_add_u32 v7, v6, 3, v7')
        e(f'v_add_u32 v7, s{S_LB}, v7')
        e('v_lshrrev_b32 v8, 1, v5')
        for nb in range(2):
            e(f'v_xor_b32 v9, {nb}, v8')
            e(f'v_lshl_add_u32 v{VAD+nb}, v9, 6, v7')
    else:
        e('v_lshl_add_u32 v7, v3, 2, v5')
        e('v_lshrrev_b32 v8, 1, v7')
        e('v_and_b32 v8, 3, v8')
        e('v_lshlrev_b32 v7, 7, v7')
        e('v_lshl_add_u32 v7, v6, 3, v7')
        e(f'v_add_u32 v7, s{S_LB}, v7')
        for nt in range(4):
            e(f'v_xor_b32 v9, {nt}, v8')
            e(f'v_lshl_add_u32 v{VAD+nt}, v9, 5, v7')
    e('s_waitcnt lgkmcnt(0)')
    srd(L, SWT, 48, K * 1024)
    srd_off(L, SB, 50, b_off, b_bytes)
    if res[0] == 'in': srd(L, SR, 52, 2048 * 1024)
    else: srd_off(L, SR, 50, res[1], 2048 * 1024)
    srd_off(L, SM, 50, MOD_OFF + gmod_off, 1024)
    if dst[0] == 'out': srd(L, SD, 54, 2048 * 1024)
    else: srd_off(L, SD, 50, dst[1], 2048 * 1024)

    def issue(t):
        ops = []
        for i in range(4):
            ops.append((f's_add_u32 m0, s{S_LB}, {(t%8)*4096 + i*1024}', 2))
            ops.append((f's_add_u32 s{S_T0}, s{S_WO}, {(32*t + 8*i)*1024}', 2))
            ops.append((f'buffer_load_dwordx4 v{VWD}, s[{SWT}:{SWT+3}], s{S_T0} offen lds', 8, ('W', t)))
        for i in range(4):
            if shape == 32:
                ks, rb = i // 2, i % 2
                off = (2 * t + ks) * 1024
            else:
                rb = i; off = t * 1024
            ops.append((f's_add_u32 s{S_T1}, s{S_B+rb}, {off}', 2))
            ops.append((f'buffer_load_dwordx4 {a(BF(t,i),4)}, v{VH}, s[{SB}:{SB+3}], s{S_T1} offen', 8, ('B', t)))
        return ops
    def emit_ops(ops):
        for o in ops:
            e(o[0])
            if len(o) > 2: vq.issue(o[2])
    def a_reads(t):
        ops = []
        st = t % 2
        base = (t % 8) * 4096
        if shape == 32:
            for ks in range(2):
                for nb in range(2):
                    for aa in range(2):
                        ops.append((f'ds_read_b64_tr_b16 {a(AF(st, 2*ks+nb)+2*aa,2)}, v{VAD+nb} offset:{base + (16*ks+8*aa)*128}', 4))
        else:
            for nt in range(4):
                for aa in range(2):
                    ops.append((f'ds_read_b64_tr_b16 {a(AF(st, nt)+2*aa,2)}, v{VAD+nt} offset:{base + 16*aa*128}', 4))
        return ops
    def mfmas(t):
        st = t % 2
        m = []
        if shape == 32:
            for ks in range(2):
                for nb in range(2):
                    for rb in range(2):
                        acc = ACC + 16 * (2 * nb + rb)
                        c = '0' if (t == 0 and ks == 0) else v(acc, 16)
                        m.append((f'v_mfma_f32_32x32x16_bf16 {v(acc,16)}, {a(AF(st,2*ks+nb),4)}, {a(BF(t,2*ks+rb),4)}, {c}', 24))
        else:
            for nt in range(4):
                for rb in range(4):
                    acc = ACC + 4 * (4 * nt + rb)
                    c = '0' if t == 0 else v(acc, 4)
                    m.append((f'v_mfma_f32_16x16x32_bf16 {v(acc,4)}, {a(AF(st,nt),4)}, {a(BF(t,rb),4)}, {c}', 8))
        return m
    for t in range(min(D, NS)):
        emit_ops(issue(t))
    e('v_lshrrev_b32 v16, 2, v0')
    e('v_and_b32 v17, 3, v0')
    e('v_lshlrev_b32 v18, 5, v17')
    e(f's_lshl_b32 s{S_T0}, s{S_NT}, 7')
    e(f'v_add_u32 v18, s{S_T0}, v18')
    e('v_lshl_add_u32 v19, v16, 10, v18')
    n = vq.wait_for(lambda x: x == ('W', 0))
    e(f's_waitcnt vmcnt({n})')
    L += [x[0] for x in a_reads(0)]
    for t in range(NS):
        n = vq.wait_for(lambda x: x == ('B', t) or x == ('W', t + 1))
        if n is not None: e(f's_waitcnt vmcnt({n})')
        e('s_waitcnt lgkmcnt(0)')
        qs = []
        mf = mfmas(t)
        if t + 1 < NS:
            qs.append(dict(items=a_reads(t + 1), start=0, end=len(mf) * 5 // 8))
        iss = issue(t + D) if t + D < NS else []
        if iss:
            qs.append(dict(items=[(o[0], o[1]) for o in iss], start=0, end=len(mf) - 1))
        L += interleave(mf, qs)
        for o in iss:
            if len(o) > 2: vq.issue(o[2])
    e(f's_lshl_b32 s{S_T1}, s{S_MT}, 16')
    e(f'buffer_load_dwordx4 v[100:103], v19, s[{SR}:{SR+3}], s{S_T1} offen')
    e(f'buffer_load_dwordx4 v[104:107], v19, s[{SR}:{SR+3}], s{S_T1} offen offset:16')
    e(f'buffer_load_dwordx4 v[108:111], v18, s[{SM}:{SM+3}], 0 offen')
    e(f'buffer_load_dwordx4 v[112:115], v18, s[{SM}:{SM+3}], 0 offen offset:16')
    e('s_barrier')
    RS = 272
    if shape == 32:
        e('v_and_b32 v3, 31, v2')
        e('v_lshrrev_b32 v4, 5, v2')
        e(f'v_mul_u32_u24 v3, {RS}, v3')
        e('v_lshl_add_u32 v3, v4, 4, v3')
    else:
        e('v_and_b32 v3, 15, v2')
        e('v_lshrrev_b32 v4, 4, v2')
        e(f'v_mul_u32_u24 v3, {RS}, v3')
        e('v_lshl_add_u32 v3, v4, 4, v3')
    e(f's_mul_i32 s{S_T0}, s{S_W}, {64*RS}')
    e(f'v_add_u32 v3, s{S_T0}, v3')
    e('s_nop 7')
    if shape == 32:
        for nb in range(2):
            for rb in range(2):
                for g in range(4):
                    acc = ACC + 16 * (2 * nb + rb) + 4 * g
                    e(f'ds_write_b128 v3, {v(acc,4)} offset:{32*rb*RS + (32*nb + 8*g)*4}')
    else:
        for nt in range(4):
            for rb in range(4):
                acc = ACC + 4 * (4 * nt + rb)
                e(f'ds_write_b128 v3, {v(acc,4)} offset:{16*rb*RS + 16*nt*4}')
    e('s_waitcnt lgkmcnt(0)')
    e('s_barrier')
    e(f'v_mul_u32_u24 v3, {RS}, v16')
    e('v_lshl_add_u32 v3, v17, 6, v3')
    for w in range(4):
        for q in range(4):
            e(f'ds_read_b128 v[{32+16*w+4*q}:{35+16*w+4*q}], v3 offset:{w*64*RS + 16*q}')
    e('s_waitcnt lgkmcnt(0)')
    for i in range(16):
        e(f'v_add_f32 v{32+i}, v{32+i}, v{48+i}')
        e(f'v_add_f32 v{64+i}, v{64+i}, v{80+i}')
    for i in range(16):
        e(f'v_add_f32 v{32+i}, v{32+i}, v{64+i}')
    e('s_waitcnt vmcnt(0)')
    for i in range(8):
        x0, x1 = 32 + 2 * i, 33 + 2 * i
        rnd_pair(e, x0, x1, x0, x1, 20)
        e(f'v_lshlrev_b32 v21, 16, v{108+i}')
        e(f'v_and_b32 v22, 0xffff0000, v{108+i}')
        e(f'v_mul_f32 v{x0}, v{x0}, v21')
        e(f'v_mul_f32 v{x1}, v{x1}, v22')
        rnd_pair(e, x0, x1, x0, x1, 20)
        e(f'v_lshlrev_b32 v21, 16, v{100+i}')
        e(f'v_and_b32 v22, 0xffff0000, v{100+i}')
        e(f'v_add_f32 v{x0}, v{x0}, v21')
        e(f'v_add_f32 v{x1}, v{x1}, v22')
        e(f'v_cvt_pk_bf16_f32 v{116+i}, v{x0}, v{x1}')
    e(f'buffer_store_dwordx4 v[116:119], v19, s[{SD}:{SD+3}], s{S_T1} offen')
    e(f'buffer_store_dwordx4 v[120:123], v19, s[{SD}:{SD+3}], s{S_T1} offen offset:16')
    e(f'{name}_done:')
    e('s_endpgm')
    for h in check_hazards(L, name): print('HAZARD', h)
    return L, kernel_desc(name, 128 + 160, 64, 128), f'; @launch kernel={name} grid=(256,1,1) block=(256,1,1) lds=131072'


def gen_ffn1(name='ffn1_kernel'):
    L = kernel_header(name)
    e = L.append
    vq = Q(63)
    SG, SU, SB, SD = 8, 12, 16, 20
    S_W, S_MT, S_FT, S_T0, S_T1, S_WO, S_LW = 28, 29, 30, 31, 32, 33, 34
    S_SEL = 36
    S_B0, S_B1 = 40, 41
    VD = 10
    VH = 17
    VA = 18
    ACC = 32
    def acc(mat, ft, rb): return ACC + 4 * ((mat * 7 + ft) * 2 + rb)
    def BF(T, rb): return 8 * T + 4 * rb
    def AF(st, i): return 128 + 56 * st + 4 * i
    NCH = 8; RING = 4; CH = 28672
    e('s_cmp_ge_u32 s2, 256')
    e(f's_cbranch_scc1 {name}_done')
    e(f's_load_dwordx4 s[48:51], s[0:1], {KA["wg"]}')
    e(f's_load_dwordx2 s[52:53], s[0:1], {KA["ws"]}')
    e('v_lshrrev_b32 v1, 6, v0')
    e('v_and_b32 v2, 63, v0')
    e(f'v_readfirstlane_b32 s{S_W}, v1')
    e(f's_and_b32 s{S_T0}, s2, 7')
    e(f's_lshr_b32 s{S_T1}, s2, 3')
    e(f's_lshl_b32 s{S_MT}, s{S_T0}, 1')
    e(f's_and_b32 s{S_T0}, s{S_T1}, 1')
    e(f's_add_u32 s{S_MT}, s{S_MT}, s{S_T0}')
    e(f's_lshr_b32 s{S_FT}, s{S_T1}, 1')
    e(f's_mul_i32 s{S_T0}, s{S_FT}, 224')
    e(f's_lshr_b32 s{S_T1}, s{S_W}, 1')
    e(f's_mul_i32 s{S_WO}, s{S_T1}, {32*3584}')
    e(f's_add_u32 s{S_T0}, s{S_T0}, s{S_WO}')
    e('s_mov_b32 s42, 0x12492493')
    e('s_movk_i32 s43, 3584')
    for i in range(7):
        e(f'v_add_u32 v3, {64*i}, v2')
        e('v_mul_hi_u32 v4, v3, s42')
        e('v_mul_u32_u24 v5, 14, v4')
        e('v_sub_u32 v5, v3, v5')
        e('v_mul_lo_u32 v4, v4, s43')
        e(f'v_lshl_add_u32 v{VD+i}, v5, 4, v4')
        e(f'v_add_u32 v{VD+i}, s{S_T0}, v{VD+i}')
    e(f's_and_b32 s{S_T0}, s{S_W}, 1')
    e(f's_mul_i32 s{S_LW}, s{S_T0}, 14336')
    e(f's_mul_i32 s{S_T1}, s{S_T1}, 7168')
    e(f's_add_u32 s{S_LW}, s{S_LW}, s{S_T1}')
    e(f'v_lshlrev_b32 v{VH}, 4, v2')
    e('v_lshrrev_b32 v3, 4, v2')
    e('v_and_b32 v4, 15, v2')
    e('v_lshrrev_b32 v4, 2, v4')
    e('v_and_b32 v5, 3, v2')
    e('v_lshrrev_b32 v6, 1, v3')
    e('v_lshl_add_u32 v6, v6, 4, v4')
    e('v_and_b32 v7, 1, v3')
    e('v_lshl_add_u32 v6, v7, 2, v6')
    e('v_mul_u32_u24 v6, 224, v6')
    e(f'v_lshl_add_u32 v{VA}, v5, 3, v6')
    e(f'v_add_u32 v{VA+1}, 0x{2*CH:x}, v{VA}')
    e(f's_lshl_b32 s{S_T0}, s{S_MT}, 3')
    e(f's_lshl_b32 s{S_T1}, s{S_W}, 1')
    e(f's_add_u32 s{S_T0}, s{S_T0}, s{S_T1}')
    e(f's_lshl_b32 s{S_B0}, s{S_T0}, 14')
    e(f's_add_u32 s{S_B1}, s{S_B0}, 16384')
    e('s_waitcnt lgkmcnt(0)')
    srd(L, SG, 48, 512 * 3584)
    srd(L, SU, 50, 512 * 3584)
    srd_off(L, SB, 52, H2_OFF, 2048 * 1024)
    srd_off(L, SD, 52, ACT_OFF, 2048 * 3584)
    e(f's_and_b32 s{S_T0}, s{S_W}, 1')
    e(f's_cmp_eq_u32 s{S_T0}, 0')
    e(f's_cselect_b32 s{S_SEL}, s{SG}, s{SU}')
    e(f's_cselect_b32 s{S_SEL+1}, s{SG+1}, s{SU+1}')
    e(f's_mov_b32 s{S_SEL+2}, {512*3584}')
    e(f's_mov_b32 s{S_SEL+3}, 0x00020000')
    def issue_W(c):
        ops = []
        for i in range(7):
            ops.append((f's_add_u32 m0, s{S_LW}, {(c%RING)*CH + i*1024}', 2))
            if i == 0:
                ops.append((f's_mov_b32 s{S_T0}, {64*c*3584}', 2))
            else:
                ops.append(('s_nop 0', 2))
            ops.append((f'buffer_load_dwordx4 v{VD+i}, s[{S_SEL}:{S_SEL+3}], s{S_T0} offen lds', 8, ('W', c)))
        return ops
    def issue_B(c):
        ops = []
        for ks in range(2):
            T = 2 * c + ks
            for rb in range(2):
                so = S_B0 + rb
                ops.append((f's_add_u32 s{S_T1}, s{so}, {T*1024}', 2))
                ops.append((f'buffer_load_dwordx4 {a(BF(T,rb),4)}, v{VH}, s[{SB}:{SB+3}], s{S_T1} offen', 8, ('B', c)))
        return ops
    def emit_ops(ops):
        for o in ops:
            e(o[0])
            if len(o) > 2: vq.issue(o[2])
    def a_reads(T):
        c = T // 2; ks = T % 2; st = T % 2
        slot = c % RING
        base = slot * CH; va = VA
        if slot >= 2: base -= 2 * CH; va = VA + 1
        ops = []
        for mat in range(2):
            for ft in range(7):
                for aa in range(2):
                    off = base + mat * 14336 + ks * 7168 + aa * 8 * 224 + ft * 32
                    ops.append((f'ds_read_b64_tr_b16 {a(AF(st, mat*7+ft)+2*aa,2)}, v{va} offset:{off}', 4))
        return ops
    def mfmas(T):
        st = T % 2
        m = []
        for ft in range(7):
            for mat in range(2):
                for rb in range(2):
                    ac = acc(mat, ft, rb)
                    cc = '0' if T == 0 else v(ac, 4)
                    m.append((f'v_mfma_f32_16x16x32_bf16 {v(ac,4)}, {a(AF(st,mat*7+ft),4)}, {a(BF(T,rb),4)}, {cc}', 8))
        return m
    emit_ops(issue_W(0)); emit_ops(issue_B(0)); emit_ops(issue_W(1)); emit_ops(issue_B(1)); emit_ops(issue_W(2)); emit_ops(issue_B(2))
    n = vq.wait_for(lambda x: x == ('W', 0))
    e(f's_waitcnt vmcnt({n})')
    e('s_barrier')
    L += [x[0] for x in a_reads(0)]
    for T in range(16):
        c = T // 2
        extra = []
        if T % 2 == 0:
            n = vq.wait_for(lambda x: x == ('B', c))
            if n is not None: e(f's_waitcnt vmcnt({n})')
        e('s_waitcnt lgkmcnt(0)')
        if T % 2 == 1 and c + 1 < NCH:
            n = vq.wait_for(lambda x: x == ('W', c + 1))
            if n is not None: e(f's_waitcnt vmcnt({n})')
            e('s_barrier')
            if c + 3 < NCH:
                extra = issue_W(c + 3) + issue_B(c + 3)
        mf = mfmas(T)
        qs = []
        if T + 1 < 16:
            qs.append(dict(items=a_reads(T + 1), start=0, end=22))
        if extra:
            qs.append(dict(items=[(o[0], o[1]) for o in extra], start=0, end=27))
        L += interleave(mf, qs)
        for o in extra:
            if len(o) > 2: vq.issue(o[2])
    e('s_nop 7')
    C1 = 0.7978845608028654; C2 = 0.044715
    import struct
    f2u = lambda x: struct.unpack('<I', struct.pack('<f', x))[0]
    e(f's_mov_b32 s44, 0x{f2u(-2*C1*1.4426950408889634):08x}')
    e(f's_mov_b32 s45, 0x{f2u(-2*C1*C2*1.4426950408889634):08x}')
    e(f's_lshl_b32 s{S_T0}, s{S_MT}, 3')
    e(f's_lshl_b32 s{S_T1}, s{S_W}, 1')
    e(f's_add_u32 s{S_T0}, s{S_T0}, s{S_T1}')
    e(f's_mul_i32 s{S_B0}, s{S_T0}, {56*1024}')
    e(f's_mul_i32 s{S_T1}, s{S_FT}, {7*512}')
    e(f's_and_b32 s46, s{S_FT}, 1')
    e(f's_lshl_b32 s47, s46, 9')
    e(f's_sub_u32 s{S_T1}, s{S_T1}, s47')
    e(f's_add_u32 s{S_B0}, s{S_B0}, s{S_T1}')
    e(f's_add_u32 s{S_B1}, s{S_B0}, {56*1024}')
    PK = 150
    for ft in range(7):
        for rb in range(2):
            g0 = acc(0, ft, rb); u0 = acc(1, ft, rb)
            t = 200
            for pr in range(2):
                ga_, gb_ = g0 + 2 * pr, g0 + 2 * pr + 1
                ua, ub = u0 + 2 * pr, u0 + 2 * pr + 1
                rnd_pair(e, ga_, gb_, ga_, gb_, t)
                rnd_pair(e, ua, ub, ua, ub, t + 1)
                for k, gr in enumerate((ga_, gb_)):
                    e(f'v_mul_f32 v{t+2+k}, v{gr}, v{gr}')
                    e(f'v_mov_b32 v{t+4+k}, s44')
                    e(f'v_fmac_f32 v{t+4+k}, s45, v{t+2+k}')
                    e(f'v_mul_f32 v{t+4+k}, v{t+4+k}, v{gr}')
                    e(f'v_exp_f32 v{t+4+k}, v{t+4+k}')
                for k, gr in enumerate((ga_, gb_)):
                    e(f'v_add_f32 v{t+4+k}, 1.0, v{t+4+k}')
                    e(f'v_rcp_f32 v{t+4+k}, v{t+4+k}')
                e('s_nop 0')
                for k, gr in enumerate((ga_, gb_)):
                    e(f'v_mul_f32 v{gr}, v{gr}, v{t+4+k}')
                rnd_pair(e, ga_, gb_, ga_, gb_, t)
                e(f'v_mul_f32 v{ga_}, v{ga_}, v{ua}')
                e(f'v_mul_f32 v{gb_}, v{gb_}, v{ub}')
                e(f'v_cvt_pk_bf16_f32 v{PK + 2*(ft*2+rb) + pr}, v{ga_}, v{gb_}')
    e('s_cmp_eq_u32 s46, 0')
    e(f's_cbranch_scc0 {name}_odd')
    for par in range(2):
        if par == 1:
            e(f'{name}_odd:')
        for ft in range(7):
            for rb in range(2):
                q = ft + par
                off = (q >> 1) * 1024 + (q & 1) * 8
                r = PK + 2 * (ft * 2 + rb)
                e(f'buffer_store_dwordx2 {v(r,2)}, v{VH}, s[{SD}:{SD+3}], s{S_B0+rb} offen offset:{off}')
        if par == 0:
            e(f's_branch {name}_done')
    e(f'{name}_done:')
    e('s_endpgm')
    for h in check_hazards(L, name): print('HAZARD', h)
    return L, kernel_desc(name, 256 + 240, 64, 256), f'; @launch kernel={name} grid=(256,1,1) block=(256,1,1) lds={RING*CH}'
```

```python
from asmlib import *

MOD_OFF = 0
H1_OFF = 1 << 20
O_OFF = 4 << 20
X1_OFF = 20 << 20
H2_OFF = 22 << 20
ACT_OFF = 24 << 20
WS_BYTES = 268435456

KA = dict(x=0, k=8, v=16, wq=24, wo=32, bx=40, wg=48, wu=56, wd=64, c=72, wmod=80, out=88, dbg=96, ws=104)

LOG2E = 0x3fb8aa3b
NLOG2E = 0xbfb8aa3b

def gen_mod(name='mod_kernel'):
    L = kernel_header(name)
    e = L.append
    e('s_cmp_ge_u32 s2, 96')
    e(f's_cbranch_scc1 {name}_done')
    e(f's_load_dwordx2 s[4:5], s[0:1], {KA["c"]}')
    e(f's_load_dwordx2 s[6:7], s[0:1], {KA["wmod"]}')
    e(f's_load_dwordx2 s[28:29], s[0:1], {KA["ws"]}')
    e('v_and_b32 v1, 3, v0')
    e('v_lshrrev_b32 v2, 2, v0')
    e('s_movk_i32 s3, 6144')
    e('v_mul_lo_u32 v3, v2, s3')
    e('v_lshl_add_u32 v3, v1, 4, v3')
    e('v_lshlrev_b32 v4, 1, v2')
    e('s_lshl_b32 s20, s2, 6')
    for i in range(1, 8):
        e(f's_add_u32 s{20+i}, s{19+i}, {64*6144}')
    e('s_waitcnt lgkmcnt(0)')
    srd(L, 8, 4, 1024)
    srd(L, 12, 6, 512*6144)
    srd_off(L, 16, 28, MOD_OFF, 6144)
    for i in range(8):
        e(f'buffer_load_ushort v{8+i}, v4, s[8:11], 0 offen offset:{128*i}')
    for i in range(8):
        e(f'buffer_load_dwordx4 v[{16+4*i}:{19+4*i}], v3, s[12:15], s{20+i} offen')
    for j in range(8):
        e(f'v_mov_b32 v{48+j}, 0')
    e('s_waitcnt vmcnt(8)')
    for i in range(8):
        e(f'v_lshlrev_b32 v{8+i}, 16, v{8+i}')
    for i in range(8):
        e(f'v_mul_f32 v{56+i}, 0x{NLOG2E:08x}, v{8+i}')
    for i in range(8):
        e(f'v_exp_f32 v{56+i}, v{56+i}')
    for i in range(8):
        e(f'v_add_f32 v{56+i}, 1.0, v{56+i}')
    for i in range(8):
        e(f'v_rcp_f32 v{56+i}, v{56+i}')
    for i in range(8):
        e(f'v_mul_f32 v{56+i}, v{8+i}, v{56+i}')
    for i in range(8):
        e(f'v_cvt_pk_bf16_f32 v{56+i}, v{56+i}, v{56+i}')
    for i in range(8):
        e(f'v_lshlrev_b32 v{56+i}, 16, v{56+i}')
    for i in range(8):
        e(f's_waitcnt vmcnt({7-i})')
        for j in range(4):
            w = 16 + 4*i + j
            e(f'v_lshlrev_b32 v64, 16, v{w}')
            e(f'v_and_b32 v65, 0xffff0000, v{w}')
            e(f'v_fmac_f32 v{48+2*j}, v64, v{56+i}')
            e(f'v_fmac_f32 v{49+2*j}, v65, v{56+i}')
    e('s_nop 1')
    for j in range(8):
        e(f'v_add_f32_dpp v{64+j}, v{48+j}, v{48+j} row_ror:4 row_mask:0xf bank_mask:0xf')
    e('s_nop 1')
    for j in range(8):
        e(f'v_add_f32_dpp v{48+j}, v{64+j}, v{64+j} row_ror:8 row_mask:0xf bank_mask:0xf')
    e('v_lshrrev_b32 v5, 4, v0')
    e('v_lshlrev_b32 v5, 7, v5')
    e('v_lshl_add_u32 v5, v1, 5, v5')
    e('ds_write_b128 v5, v[48:51]')
    e('ds_write_b128 v5, v[52:55] offset:16')
    e('s_waitcnt lgkmcnt(0)')
    e('s_barrier')
    e('v_cmp_gt_u32 vcc, 32, v0')
    e('s_and_saveexec_b64 s[30:31], vcc')
    e(f's_cbranch_execz {name}_done')
    e('v_lshlrev_b32 v6, 2, v0')
    for p in range(16):
        e(f'ds_read_b32 v{8+p}, v6 offset:{128*p}')
    e('s_waitcnt lgkmcnt(0)')
    for p in range(1, 16):
        e(f'v_add_f32 v8, v8, v{8+p}')
    e('v_cvt_pk_bf16_f32 v8, v8, v8')
    e('v_lshlrev_b32 v7, 1, v0')
    e('s_lshl_b32 s3, s2, 6')
    e('buffer_store_short v8, v7, s[16:19], s3 offen')
    e(f'{name}_done:')
    e('s_endpgm')
    return L, kernel_desc(name, 72, 40, 72), f'; @launch kernel={name} grid=(96,1,1) block=(256,1,1) lds=2048'


def rnd_pair(e, d0, d1, s0, s1, tmp):
    e(f'v_cvt_pk_bf16_f32 v{tmp}, v{s0}, v{s1}')
    e(f'v_lshlrev_b32 v{d0}, 16, v{tmp}')
    e(f'v_and_b32 v{d1}, 0xffff0000, v{tmp}')


def gen_ln2(name, src, shift_off, scale_off, dst_off, RF):
    LG = 64 // RF
    NWV = 8 if RF == 32 else 4
    NWG = 2048 // RF
    KSTEP = 8 * LG
    L = kernel_header(name)
    e = L.append
    e(f's_cmp_ge_u32 s2, {NWG}')
    e(f's_cbranch_scc1 {name}_done')
    if src[0] == 'in':
        e(f's_load_dwordx2 s[4:5], s[0:1], {src[1]}')
    e(f's_load_dwordx2 s[6:7], s[0:1], {KA["ws"]}')
    e('v_and_b32 v1, 63, v0')
    e('v_lshrrev_b32 v2, 6, v0')
    e(f'v_and_b32 v3, {RF-1}, v1')
    e(f'v_lshrrev_b32 v4, {RF.bit_length()-1}, v1')
    if RF == 32:
        e(f'v_lshlrev_b32 v5, 4, v4')
    else:
        e('v_lshrrev_b32 v5, 1, v4')
        e('v_lshlrev_b32 v5, 5, v5')
        e('v_and_b32 v7, 1, v4')
        e('v_lshl_add_u32 v5, v7, 3, v5')
    e(f'v_lshl_add_u32 v5, v2, {(8*KSTEP).bit_length()-1}, v5')
    e(f'v_lshl_add_u32 v6, v3, 10, v5')
    e(f's_lshl_b32 s3, s2, {(RF*1024).bit_length()-1}')
    e(f's_movk_i32 s20, {shift_off}')
    e(f's_movk_i32 s21, {scale_off}')
    e('s_waitcnt lgkmcnt(0)')
    if src[0] == 'in':
        srd(L, 8, 4, 2048*1024)
    else:
        srd_off(L, 8, 6, src[1], 2048*1024)
    srd_off(L, 12, 6, MOD_OFF, 6144)
    srd_off(L, 16, 6, dst_off, 2048*1024)
    def ld(dst, va, sr, so, off):
        if RF == 32:
            e(f'buffer_load_dwordx4 v[{dst}:{dst+3}], v{va}, s[{sr}:{sr+3}], {so} offen offset:{off}')
        else:
            e(f'buffer_load_dwordx2 v[{dst}:{dst+1}], v{va}, s[{sr}:{sr+3}], {so} offen offset:{off}')
            e(f'buffer_load_dwordx2 v[{dst+2}:{dst+3}], v{va}, s[{sr}:{sr+3}], {so} offen offset:{off+16}')
    for i in range(4):
        ld(8+4*i, 6, 8, 's3', 2*KSTEP*i)
    for i in range(4):
        ld(24+4*i, 5, 12, 's20', 2*KSTEP*i)
    for i in range(4):
        ld(40+4*i, 5, 12, 's21', 2*KSTEP*i)
    e(f'v_lshlrev_b32 v7, 6, v3')
    e(f'v_lshl_add_u32 v56, v2, {LG.bit_length()-1}, v4')
    e(f'v_lshl_add_u32 v56, v56, 2, v7')
    e(f's_waitcnt vmcnt({8 if RF == 32 else 16})')
    for r in range(16):
        e(f'v_lshlrev_b32 v{64+2*r}, 16, v{8+r}')
        e(f'v_and_b32 v{65+2*r}, 0xffff0000, v{8+r}')
    e('v_add_f32 v57, v64, v65')
    e('v_add_f32 v58, v66, v67')
    for r in range(2, 16):
        e(f'v_add_f32 v{57 + (r & 1)}, v{57 + (r & 1)}, v{64+2*r}')
        e(f'v_add_f32 v{57 + (r & 1)}, v{57 + (r & 1)}, v{65+2*r}')
    e('v_add_f32 v57, v57, v58')
    e('ds_write_b32 v56, v57')
    e('s_waitcnt lgkmcnt(0)')
    e('s_barrier')
    for q in range(4):
        e(f'ds_read_b128 v[{96+4*q}:{99+4*q}], v7 offset:{16*q}')
    e('s_waitcnt lgkmcnt(0)')
    for q in range(1, 16):
        e(f'v_add_f32 v96, v96, v{96+q}')
    e('v_mul_f32 v57, 0x3b000000, v96')
    e('v_sub_f32 v58, v64, v57')
    e('v_mul_f32 v59, v58, v58')
    e('v_sub_f32 v58, v65, v57')
    e('v_mul_f32 v60, v58, v58')
    for r in range(2, 32):
        e(f'v_sub_f32 v58, v{64+r}, v57')
        e(f'v_fmac_f32 v{59 + (r & 1)}, v58, v58')
    e('v_add_f32 v59, v59, v60')
    e(f'ds_write_b32 v56, v59 offset:{RF*64}')
    e('s_waitcnt lgkmcnt(0)')
    e('s_barrier')
    for q in range(4):
        e(f'ds_read_b128 v[{96+4*q}:{99+4*q}], v7 offset:{RF*64 + 16*q}')
    e('s_waitcnt lgkmcnt(0)')
    for q in range(1, 16):
        e(f'v_add_f32 v96, v96, v{96+q}')
    e('v_mul_f32 v58, 0x3b000000, v96')
    rnd_pair(e, 57, 58, 57, 58, 59)
    e('v_add_f32 v58, 0x3727c5ac, v58')
    e('v_cvt_pk_bf16_f32 v58, v58, v58')
    e('v_lshlrev_b32 v58, 16, v58')
    e('v_sqrt_f32 v58, v58')
    e('s_nop 0')
    e('v_cvt_pk_bf16_f32 v58, v58, v58')
    e('v_lshlrev_b32 v58, 16, v58')
    e('v_rcp_f32 v58, v58')
    e('s_waitcnt vmcnt(0)')
    for r in range(16):
        x0, x1 = 64+2*r, 65+2*r
        e(f'v_sub_f32 v{x0}, v{x0}, v57')
        e(f'v_sub_f32 v{x1}, v{x1}, v57')
        rnd_pair(e, x0, x1, x0, x1, 59)
        e(f'v_mul_f32 v{x0}, v{x0}, v58')
        e(f'v_mul_f32 v{x1}, v{x1}, v58')
        rnd_pair(e, x0, x1, x0, x1, 59)
        e(f'v_lshlrev_b32 v60, 16, v{40+r}')
        e(f'v_and_b32 v61, 0xffff0000, v{40+r}')
        e('v_add_f32 v60, 1.0, v60')
        e('v_add_f32 v61, 1.0, v61')
        rnd_pair(e, 60, 61, 60, 61, 59)
        e(f'v_mul_f32 v{x0}, v{x0}, v60')
        e(f'v_mul_f32 v{x1}, v{x1}, v61')
        rnd_pair(e, x0, x1, x0, x1, 59)
        e(f'v_lshlrev_b32 v60, 16, v{24+r}')
        e(f'v_and_b32 v61, 0xffff0000, v{24+r}')
        e(f'v_add_f32 v{x0}, v{x0}, v60')
        e(f'v_add_f32 v{x1}, v{x1}, v61')
        e(f'v_cvt_pk_bf16_f32 v{8+r}, v{x0}, v{x1}')
    NST = 512 // KSTEP
    e('v_lshlrev_b32 v6, 4, v1')
    e('v_lshl_add_u32 v6, v2, 12, v6')
    e(f's_lshl_b32 s3, s2, {(NST*1024).bit_length()-1}')
    for i in range(4):
        e(f'buffer_store_dwordx4 v[{8+4*i}:{11+4*i}], v6, s[16:19], s3 offen offset:{1024*i}')
    e(f'{name}_done:')
    e('s_endpgm')
    return L, kernel_desc(name, 112, 40, 112), f'; @launch kernel={name} grid=({NWG},1,1) block=({NWV*64},1,1) lds={RF*128}'
```

```python
import sys
from asmlib import *
from k_small import *
from k_attn import *
from k_gemm import *

def build(kernels, path):
    hdr = [l.rstrip('\n') for l in open('adaLN_cond__mha_block_cached__geglu_ffn__prompt.s.ref') if l.startswith(';') and '@launch' not in l]
    out = hdr + [k[2] for k in kernels]
    out += ['.amdgcn_target "amdgcn-amd-amdhsa--gfx950"', '.text']
    seen = set()
    for k in kernels:
        nm = k[0][0]
        if nm in seen: continue
        seen.add(nm)
        out += k[0]
    out += ['.section .rodata,"a"']
    seen = set()
    for k in kernels:
        nm = k[0][0]
        if nm in seen: continue
        seen.add(nm)
        out += ['.p2align 6'] + k[1]
    open(path, 'w').write('\n'.join(out) + '\n')

if __name__ == '__main__':
    import k_attn
    k_attn.FAKE16 = 'fake16' in sys.argv
    k_attn.NOVALU = 'novalu' in sys.argv
    k_attn.NOLDS = 'nolds' in sys.argv
    k_attn.NODMA = 'nodma' in sys.argv
    k_attn.PROFQ = 'profq' in sys.argv
    k_attn.WQLIN = 'wqlin' in sys.argv
    k_attn.NOH = 'noh' in sys.argv
    ks = [gen_mod(), gen_ln2('ln1_kernel', ('in', KA['x']), 0, 1024, H1_OFF, 32), gen_attn(prof='prof' in sys.argv)]
    ks.append(gen_splitk('wo_kernel', 32, 4096, KA['wo'], O_OFF, 2048*8192, ('in', KA['x']), 2048, ('ws', X1_OFF)))
    ks.append(gen_ln2('ln2_kernel', ('ws', X1_OFF), 3072, 4096, H2_OFF, 16))
    ks.append(gen_ffn1())
    ks.append(gen_splitk('down_kernel', 16, 1792, KA['wd'], ACT_OFF, 2048*3584, ('ws', X1_OFF), 5120, ('out',)))
    for k in ks[:2] + [ks[4]]:
        for h in check_hazards(k[0], k[0][0]): print('HAZARD', h)
    build(ks, sys.argv[1] if len(sys.argv) > 1 else 'cur.s')
```

```python
import re

TRANS = ('v_exp_f32', 'v_log_f32', 'v_rcp_f32', 'v_rsq_f32', 'v_sqrt_f32', 'v_sin_f32', 'v_cos_f32', 'v_rcp_iflag_f32')

def v(i, n=1):
    return f'v{i}' if n == 1 else f'v[{i}:{i+n-1}]'
def a(i, n=1):
    return f'a{i}' if n == 1 else f'a[{i}:{i+n-1}]'
def s(i, n=1):
    return f's{i}' if n == 1 else f's[{i}:{i+n-1}]'

_REG = re.compile(r'^(-|abs\()?([vas])(?:(\d+)|\[(\d+):(\d+)\])\)?$')

def regs_of(tok):
    tok = tok.strip()
    tok = tok.strip('|')
    if tok in ('vcc', 'exec', 'm0', 'scc'):
        return {(tok, 0)}
    m = _REG.match(tok)
    if not m:
        return set()
    f = m.group(2)
    if m.group(3) is not None:
        lo = hi = int(m.group(3))
    else:
        lo, hi = int(m.group(4)), int(m.group(5))
    return {(f, i) for i in range(lo, hi + 1)}

class Ins:
    __slots__ = ('text', 'op', 'ops', 'wr', 'rd', 'kind', 'passes', 'srcc', 'states', 'ab')
    def __init__(self, text):
        self.text = text
        t = text.split(';')[0].strip()
        self.kind = None; self.wr = set(); self.rd = set(); self.passes = 0; self.srcc = set(); self.states = 1; self.ab = set()
        if not t or t.endswith(':') or t.startswith('.'):
            self.op = None; self.states = 0
            return
        parts = t.split(None, 1)
        op = parts[0]; self.op = op
        rest = parts[1] if len(parts) > 1 else ''
        ops = []; depth = 0; cur = ''
        for ch in rest:
            if ch == '[' or ch == '(': depth += 1
            if ch == ']' or ch == ')': depth -= 1
            if ch == ',' and depth == 0:
                ops.append(cur.strip()); cur = ''
            else:
                cur += ch
        if cur.strip(): ops.append(cur.strip())
        mods = ''
        if ops:
            sp = ops[-1].split(None, 1)
            ops[-1] = sp[0]
            mods = sp[1] if len(sp) > 1 else ''
        self.ops = ops
        R = [regs_of(o) for o in ops]
        if op.startswith('v_mfma'):
            self.kind = 'mfma'
            self.passes = 8 if '32x32' in op else 4
            self.wr = R[0]; self.rd = R[1] | R[2] | R[3]; self.srcc = R[3]; self.ab = R[1] | R[2]
        elif op.startswith('v_cmp'):
            self.kind = 'valu'; self.wr = R[0]; self.rd = set().union(*R[1:])
        elif op.startswith('v_permlane') and 'swap' in op:
            self.kind = 'valu'; self.wr = R[0] | R[1]; self.rd = R[0] | R[1]
        elif op.startswith('v_'):
            self.kind = 'valu'
            self.wr = set(R[0]); self.rd = set().union(*R[1:]) if len(R) > 1 else set()
            if op.startswith(('v_add_co', 'v_sub_co', 'v_addc_co', 'v_subb_co')):
                self.wr |= R[1]
            if op.startswith(('v_fmac', 'v_dot2c', 'v_pk_fmac')):
                self.rd |= R[0]
            if op.startswith('v_cndmask') and len(ops) == 3:
                self.rd |= {('vcc', 0)}
            if 'dpp' in op or 'row_' in mods or 'quad_perm' in mods:
                self.kind = 'dpp'
        elif op.startswith('ds_read') or op.startswith('ds_bpermute') or op.startswith('ds_swizzle'):
            self.kind = 'ds'; self.wr = R[0]; self.rd = set().union(*R[1:])
        elif op.startswith('ds_'):
            self.kind = 'ds'; self.rd = set().union(*R)
        elif op.startswith('buffer_load') or op.startswith('global_load'):
            self.kind = 'vmem'
            if ' lds' in (' ' + mods) or 'load_lds' in op:
                self.rd = set().union(*R) | {('m0', 0)}
                self.kind = 'dma'
            else:
                self.wr = R[0]; self.rd = set().union(*R[1:])
        elif op.startswith('buffer_store') or op.startswith('global_store'):
            self.kind = 'vstore'; self.rd = set().union(*R)
        elif op.startswith('buffer_atomic') or op.startswith('global_atomic'):
            self.kind = 'vmem'; self.rd = set().union(*R)
            if 'sc0' in mods: self.wr = R[0]
        elif op == 's_nop':
            self.kind = 'salu'; self.states = int(ops[0], 0) + 1
        elif op.startswith(('s_cmp', 's_waitcnt', 's_barrier', 's_branch', 's_cbranch', 's_endpgm', 's_setprio', 's_sleep', 'buffer_wbl2', 'buffer_inv')):
            self.kind = 'salu'; self.rd = set().union(*R) if R else set()
        elif op.startswith('s_load') or op.startswith('s_buffer_load') or op.startswith('s_mem'):
            self.kind = 'smem'; self.wr = R[0]; self.rd = set().union(*R[1:]) if len(R) > 1 else set()
        elif op.startswith('s_'):
            self.kind = 'salu'; self.wr = set(R[0]); self.rd = set().union(*R[1:]) if len(R) > 1 else set()
            if 'saveexec' in op: self.wr |= {('exec', 0)}
        else:
            raise ValueError('unknown instruction ' + text)

def check_hazards(lines, name=''):
    ins = [Ins(l) for l in lines]
    ins = [i for i in ins if i.op]
    out = []
    n = len(ins)
    for j in range(n):
        c = ins[j]
        dist = 0
        for i in range(j - 1, max(-1, j - 24), -1):
            p = ins[i]
            need = 0; why = ''
            isval = lambda k: k in ('valu', 'dpp')
            if isval(p.kind) and c.kind == 'mfma' and (p.wr & c.rd):
                need = 2; why = 'valu->mfma'
            if p.kind == 'mfma':
                big = p.passes == 8
                if c.kind == 'mfma':
                    if p.wr & c.ab:
                        need = max(need, 12 if big else 8); why = 'mfma D->mfma AB'
                    if p.wr & c.srcc and not (p.wr == c.srcc and p.passes == c.passes):
                        need = max(need, 10 if big else 6); why = 'mfma D->mfma C overlap'
                    if (p.wr & c.wr) and not (p.wr & c.srcc):
                        need = max(need, 10 if big else 6); why = 'mfma D->mfma D WAW'
                elif c.kind in ('valu', 'dpp', 'ds', 'vmem', 'vstore', 'dma'):
                    if p.wr & (c.rd | c.wr):
                        need = max(need, 12 if big else 8); why = 'mfma D->' + c.kind
                    if isval(c.kind) and (p.srcc & c.wr):
                        need = max(need, 7 if big else 3); why = 'mfma C WAR valu'
            if isval(p.kind) and p.op.replace('_e32', '').replace('_e64', '') in TRANS and isval(c.kind) and c.op.replace('_e32', '').replace('_e64', '') not in TRANS and (p.wr & c.rd):
                need = max(need, 1); why = 'trans->valu'
            if isval(p.kind) and c.op.startswith('v_permlane') and (p.wr & c.rd):
                need = max(need, 2); why = 'valu->permlane'
            if isval(p.kind) and c.kind == 'dpp' and (p.wr & c.rd):
                need = max(need, 2); why = 'valu->dpp'
            if isval(p.kind) and c.op.startswith(('v_readfirstlane', 'v_readlane')) and (p.wr & c.rd):
                need = max(need, 1); why = 'valu->readlane'
            if isval(p.kind):
                sw = {r for r in p.wr if r[0] in ('s', 'vcc')}
                if sw and c.kind in ('vmem', 'vstore', 'dma') and (sw & c.rd):
                    need = max(need, 5); why = 'valu sgpr->vmem'
                if sw and isval(c.kind) and (sw & c.rd):
                    need = max(need, 2); why = 'valu sgpr->valu'
            if p.kind == 'salu' and (('m0', 0) in p.wr) and c.kind == 'dma':
                need = max(need, 1); why = 'm0->dma'
            if p.kind == 'vstore' and ('x4' in p.op or 'x3' in p.op) and isval(c.kind):
                data = regs_of(p.ops[0]) if p.op.startswith('buffer') else regs_of(p.ops[1])
                if data & c.wr:
                    need = max(need, 2); why = 'store data WAR'
            if need > dist:
                out.append(f'{name}: hazard {why}: need {need} have {dist}: [{p.text.strip()}] -> [{c.text.strip()}]')
            dist += p.states
            if dist >= 20: break
    return out

class Q:
    def __init__(self, maxc):
        self.items = []; self.maxc = maxc
    def issue(self, tag):
        self.items.append(tag)
    def wait_for(self, pred):
        last = -1
        for i, t in enumerate(self.items):
            if pred(t): last = i
        if last < 0:
            return None
        n = len(self.items) - 1 - last
        n = min(n, self.maxc)
        self.items = self.items[len(self.items) - n:] if n > 0 else []
        return n
    def copy(self):
        q = Q(self.maxc); q.items = list(self.items); return q

def kernel_header(name):
    return [f'.globl {name}', '.p2align 8', f'.type {name},@function', f'{name}:']

def kernel_desc(name, vgpr, sgpr, accum):
    return [f'.amdhsa_kernel {name}',
            f'  .amdhsa_next_free_vgpr {vgpr}',
            f'  .amdhsa_next_free_sgpr {sgpr}',
            f'  .amdhsa_accum_offset {accum}',
            '  .amdhsa_group_segment_fixed_size 0',
            '  .amdhsa_kernarg_size 112',
            '  .amdhsa_user_sgpr_count 2',
            '  .amdhsa_user_sgpr_kernarg_segment_ptr 1',
            '  .amdhsa_system_sgpr_workgroup_id_x 1',
            '  .amdhsa_float_denorm_mode_32 3',
            '.end_amdhsa_kernel']

def srd(L, d, base, nbytes):
    L.append(f's_mov_b32 s{d}, s{base}')
    L.append(f's_and_b32 s{d+1}, s{base+1}, 0xffff')
    L.append(f's_mov_b32 s{d+2}, {nbytes}')
    L.append(f's_mov_b32 s{d+3}, 0x00020000')

def srd_off(L, d, base, off, nbytes):
    L.append(f's_add_u32 s{d}, s{base}, {off}')
    L.append(f's_addc_u32 s{d+1}, s{base+1}, 0')
    L.append(f's_and_b32 s{d+1}, s{d+1}, 0xffff')
    L.append(f's_mov_b32 s{d+2}, {nbytes}')
    L.append(f's_mov_b32 s{d+3}, 0x00020000')

PROF = False
PROF_OFF = 96 << 20
def prof_begin(L):
    import asmlib as _a
    global PROF
    PROF = _a.PROF
    if PROF:
        L.append('s_memrealtime s[90:91]')

def prof_end(L, kidx, vtmp=1):
    import asmlib as _a
    global PROF
    PROF = _a.PROF
    if not PROF: return
    e = L.append
    e('s_waitcnt vmcnt(0) lgkmcnt(0)')
    e('s_memrealtime s[92:93]')
    e('s_load_dwordx2 s[94:95], s[0:1], 104')
    e('s_waitcnt lgkmcnt(0)')
    e(f's_add_u32 s96, s94, {PROF_OFF + kidx * 65536}')
    e('s_addc_u32 s97, s95, 0')
    e('s_and_b32 s97, s97, 0xffff')
    e('s_mov_b32 s98, 65536')
    e('s_mov_b32 s99, 0x00020000')
    e('s_mov_b64 exec, -1')
    e(f'v_lshrrev_b32 v{vtmp}, 6, v0')
    e(f'v_lshlrev_b32 v{vtmp}, 3, v{vtmp}')
    e('s_lshl_b32 s100, s2, 6')
    e(f'v_mov_b32 v{vtmp+1}, s90')
    e(f'v_mov_b32 v{vtmp+2}, s92')
    e(f'buffer_store_dwordx2 v[{vtmp+1}:{vtmp+2}], v{vtmp}, s[96:99], s100 offen')

STAMPK = None
STAMP_OFF = 100 << 20
STAMPI = 's_memtime'
STAMPB = 64
def dstamp(L, kidx, i):
    import asmlib as _a
    if _a.STAMPK == kidx:
        L.append(f'{_a.STAMPI} s[{_a.STAMPB+2*i}:{_a.STAMPB+1+2*i}]')

def dstamp_store(L, kidx, n, vtmp=1):
    import asmlib as _a
    if _a.STAMPK != kidx: return
    e = L.append
    e('s_waitcnt vmcnt(0) lgkmcnt(0)')
    e(f'{_a.STAMPI} s[{_a.STAMPB+2*n}:{_a.STAMPB+1+2*n}]')
    e('s_load_dwordx2 s[94:95], s[0:1], 104')
    e('s_waitcnt lgkmcnt(0)')
    e(f's_add_u32 s96, s94, {STAMP_OFF}')
    e('s_addc_u32 s97, s95, 0')
    e('s_and_b32 s97, s97, 0xffff')
    e(f's_mov_b32 s98, {1<<20}')
    e('s_mov_b32 s99, 0x00020000')
    e('s_mov_b64 exec, -1')
    e(f'v_lshrrev_b32 v{vtmp}, 6, v0')
    e(f'v_lshlrev_b32 v{vtmp}, 6, v{vtmp}')
    e('s_lshl_b32 s100, s2, 9')
    for i in range(n + 1):
        e(f'v_mov_b32 v{vtmp+1}, s{_a.STAMPB+2*i}')
        e(f'buffer_store_dword v{vtmp+1}, v{vtmp}, s[96:99], s100 offen offset:{4*i}')
```

```python
from asmlib import *
import asmlib
from k_small import *
import math

def O_(db, qb): return 16 * (2 * db + qb)
def Q_(qb, s_): return 128 + 4 * (8 * qb + s_)
def KF(s_): return 192 + 4 * s_
def VF(ks, db): return 224 + 4 * (4 * ks + db)
KAD = 16
VAD = 24
WAD = 28
WAD2 = 200
def S_(p, qb): return 32 + 32 * p + 16 * qb
def P_(p, qb): return 96 + 16 * p + 8 * qb
def NEGM(qb): return 128 + 16 * qb
def LS(qb): return 160 + 4 * qb
ONES = 168
TMP = 172
MX = 180
VKD0, VKD1, VVD, VWD, VH = 182, 183, 184, 185, 186
RT = 188
def QA(db, qb): return 32 + 16 * (2 * db + qb)
def HF(c, ks, qb): return 32 * (c % 4) + 8 * ks + 4 * qb
def WF(st, db): return 192 + 16 * st + 4 * db

SK, SV, SW, SH, SO = 8, 12, 16, 20, 24
S_W, S_HEAD, S_QB, S_CNT, S_KOFF, S_VOFF, S_SLOT, S_WB, S_WBV, S_THR, S_T0, S_T1 = 28, 29, 30, 31, 32, 33, 34, 35, 36, 37, 38, 39
S_RET = 40
S_H0, S_H1 = 42, 43
S_O0, S_O1, S_O2, S_O3 = 44, 45, 46, 47

THRESH = 64.0
BIAS = 56.0
QSCALE = (128 ** -0.5) * 1.4426950408889634

import struct
def f2u(x): return struct.unpack('<I', struct.pack('<f', x))[0]

HC_LOC = [0*8192, 1*8192, 2*8192, 65536+0*8192, 3*8192, 65536+1*8192, 4*8192, 65536+2*8192,
          5*8192, 65536+3*8192, 6*8192, 65536+4*8192, 7*8192, 65536+5*8192, 65536+6*8192, 65536+7*8192]
KV_AFTER = [[('K', 0), ('K', 1)], [('K', 2), ('V', 0)], [('K', 3), ('V', 1)], [('K', 4), ('V', 2)],
            [('K', 5), ('V', 3)], [('K', 6), ('V', 4)], [('K', 7), ('V', 5)], []]

COST = {'exp': 8, 'valu': 4, 'ds': 4, 'dma': 16, 'salu': 4, 'wait': 0}

def interleave(mf, queues, pre=None):
    out = []
    n = len(mf)
    qs = [dict(q) for q in queues]
    for q in qs:
        q['items'] = list(q['items'])
        q['tot'] = sum(c for _, c in q['items'])
        q['done'] = 0
        q['end'] = min(q.get('end', n - 1), n - 1)
        q['span'] = sum(mf[g][1] for g in range(q['start'], q['end'] + 1))
    for g, (t, bud) in enumerate(mf):
        if pre and g in pre:
            out += pre[g]
        out.append(t)
        left = bud
        progress = True
        while progress:
            progress = False
            best = None; bestlag = -1e9
            for q in qs:
                if g < q['start'] or not q['items']: continue
                if g >= q['end']:
                    lag = 1e6
                else:
                    frac = sum(mf[gg][1] for gg in range(q['start'], g + 1)) / q['span']
                    lag = (frac * q['tot'] - q['done']) / max(q['tot'], 1)
                    if q['done'] >= frac * q['tot']: continue
                    c = q['items'][0][1]
                    if c > left and left < bud: continue
                    if left <= 0: continue
                if lag > bestlag: best = q; bestlag = lag
            if best is not None:
                txt, c = best['items'].pop(0)
                out.append(txt); best['done'] += c; left -= c
                progress = True
    for q in qs:
        assert not q['items'], q['items']
    return out


def softmax_ops(p):
    ops = []
    prev = None
    qi = 0
    for qb in range(2):
        for i in range(8):
            sa, sb = S_(p, qb) + 2 * i, S_(p, qb) + 2 * i + 1
            ta, tb = TMP + 2 * (qi % 4), TMP + 2 * (qi % 4) + 1
            ops.append((f'v_exp_f32 v{ta}, v{sa}', 8))
            if prev: ops.append(prev)
            ops.append((f'v_exp_f32 v{tb}, v{sb}', 8))
            if i == 0:
                ops.append((f'v_max_f32 v{MX+qb}, v{sa}, v{sb}', 4))
            else:
                ops.append((f'v_max3_f32 v{MX+qb}, v{MX+qb}, v{sa}, v{sb}', 4))
            prev = (f'v_cvt_pk_bf16_f32 v{P_(p,qb)+i}, v{ta}, v{tb}', 4)
            qi += 1
    ops.append((f'v_max_f32 v{RT}, v{MX}, v{MX+1}', 4))
    ops.append(prev)
    ops.append((f'v_cmp_lt_f32 vcc, s{S_THR}, v{RT}', 4))
    return ops


FAKE16 = False
NOVALU = False
NOLDS = False
NODMA = False
WQLIN = False
NOH = False
PROFQ = False
def pv_mfmas(p):
    m = []
    for ks in range(2):
        for db in range(4):
            for qb in range(2):
                if FAKE16:
                    for t in range(2):
                        o = O_(db, qb) + 4 * (2 * ks + t)
                        m.append((f'v_mfma_f32_16x16x32_bf16 {a(o,4)}, {a(VF(ks,db),4)}, {v(P_(p,qb)+4*ks,4)}, {a(o,4)}', 8))
                    continue
                m.append((f'v_mfma_f32_32x32x16_bf16 {a(O_(db,qb),16)}, {a(VF(ks,db),4)}, {v(P_(p,qb)+4*ks,4)}, {a(O_(db,qb),16)}', 24))
        for qb in range(2):
            m.append((f'v_mfma_f32_16x16x32_bf16 {v(LS(qb),4)}, {v(ONES,4)}, {v(P_(p,qb)+4*ks,4)}, {v(LS(qb),4)}', 8))
    return m

def qk_mfmas(p, czero=False):
    m = []
    for s_ in range(8):
        for qb in range(2):
            if FAKE16 and not czero:
                for t in range(2):
                    o = S_(p, qb) + 4 * (2 * (s_ % 2) + t)
                    c = v(o, 4) if s_ >= 2 else v(NEGM(qb), 4)
                    m.append((f'v_mfma_f32_16x16x32_bf16 {v(o,4)}, {a(KF(s_),4)}, {a(Q_(qb,s_),4)}, {c}', 8))
                continue
            c = v(S_(p, qb), 16) if s_ else ('0' if czero else v(NEGM(qb), 16))
            m.append((f'v_mfma_f32_32x32x16_bf16 {v(S_(p,qb),16)}, {a(KF(s_),4)}, {a(Q_(qb,s_),4)}, {c}', 24))
    return m

def k_reads(slot):
    ops = []
    if slot % 4 == 0:
        for s_ in range(8):
            ops.append((f'v_xor_b32 v{KAD+s_}, 0x8000, v{KAD+s_}', 4))
    for s_ in range(8):
        ops.append((f'ds_read_b128 {a(KF(s_),4)}, v{KAD+s_} offset:{(slot%4)*8192}', 4))
    return ops

def v_reads(slot):
    ops = []
    if slot % 4 == 0:
        for db in range(4):
            ops.append((f'v_xor_b32 v{VAD+db}, 0x8000, v{VAD+db}', 4))
    for ks in range(2):
        for db in range(4):
            for aa in range(2):
                ops.append((f'ds_read_b64_tr_b16 {a(VF(ks,db)+2*aa,2)}, v{VAD+db} offset:{(slot%4)*8192 + (16*ks+8*aa)*256}', 4))
    return ops

def dma_ops():
    return [
        (f's_add_u32 m0, s{S_SLOT}, s{S_WB}', 4),
        (f's_add_u32 s{S_T0}, s{S_SLOT}, 49152', 4),
        (f'buffer_load_dwordx4 v{VKD0}, s[{SK}:{SK+3}], s{S_KOFF} offen lds', 16),
        (f's_and_b32 s{S_T0}, s{S_T0}, 0xffff', 4),
        (f'buffer_load_dwordx4 v{VKD1}, s[{SK}:{SK+3}], s{S_KOFF} offen offset:1024 lds', 16),
        (f's_add_u32 m0, s{S_T0}, s{S_WBV}', 4),
        (f's_add_u32 s{S_SLOT}, s{S_SLOT}, 8192', 4),
        (f'buffer_load_dwordx4 v{VVD}, s[{SV}:{SV+3}], s{S_VOFF} offen lds', 16),
        (f's_and_b32 s{S_SLOT}, s{S_SLOT}, 0xffff', 4),
        (f'buffer_load_dwordx4 v{VVD}, s[{SV}:{SV+3}], s{S_VOFF} offen offset:1024 lds', 16),
        (f's_add_u32 s{S_KOFF}, s{S_KOFF}, 8192', 4),
        (f's_add_u32 s{S_VOFF}, s{S_VOFF}, 8192', 4),
    ]


def body(j, name, tag, do_pv=True, do_qk=True, dma=True, vm=20):
    p = j % 2
    F = 2 if FAKE16 else 1
    mf = []
    if do_pv: mf += pv_mfmas(1 - p)
    npv = len(mf)
    if do_qk: mf += qk_mfmas(1 - p)
    n = len(mf)
    pre = {}
    L = []
    queues = []
    bar = [f's_waitcnt vmcnt({vm})', 's_barrier']
    if do_pv:
        pre[0] = ['s_waitcnt lgkmcnt(0)']
        pre[1] = list(bar)
        kstart = 1
    else:
        L += bar
        kstart = 0
    if do_qk:
        if do_pv:
            queues.append(dict(items=k_reads((j + 1) % 8), start=kstart, end=min(kstart + 9 * F, npv - 2)))
            pre.setdefault(npv, []).append('s_waitcnt lgkmcnt(0)')
        else:
            L += [t for t, _ in k_reads((j + 1) % 8)]
            pre.setdefault(0, []).append('s_waitcnt lgkmcnt(0)')
    if dma:
        queues.append(dict(items=dma_ops(), start=(8 * F if do_pv else 2), end=(npv - 1 if do_pv else 13 * F)))
    vstart = npv if do_qk else npv - 1
    queues.append(dict(items=v_reads(j % 8), start=vstart, end=min(vstart + 11 * F, n - 1)))
    queues.append(dict(items=softmax_ops(p), start=(3 if do_qk else 6) if do_pv else 2, end=n - 2))
    if tag.startswith('l'):
        if NOVALU: queues[-1]['items'] = [(f'v_cmp_lt_f32 vcc, s{S_THR}, v{ONES}', 4)]
        if NOLDS:
            for q in queues:
                q['items'] = [x for x in q['items'] if not x[0].startswith('ds_read')]
        if NODMA:
            for q in queues:
                q['items'] = [x for x in q['items'] if not x[0].startswith('buffer_load')]
    L += interleave(mf, queues, pre)
    L.append(f's_cbranch_vccnz {name}_tr_{tag}')
    L.append(f'{name}_back_{tag}:')
    tramp = [f'{name}_tr_{tag}:', f's_call_b64 s[{S_RET}:{S_RET+1}], {name}_rare{p}', f's_branch {name}_back_{tag}']
    return L, tramp


def rowmax_delta(e, qb, clamp):
    t1, t2 = RT + 1, RT + 2
    e(f'v_mov_b32 v{t1}, v{MX+qb}')
    e(f'v_mov_b32 v{t2}, v{MX+qb}')
    e('s_nop 1')
    e(f'v_permlane32_swap_b32 v{t1}, v{t2}')
    e(f'v_max_f32 v{t1}, v{t1}, v{t2}')
    e(f'v_ceil_f32 v{t1}, v{t1}')
    e(f'v_add_f32 v{t1}, 0x{f2u(BIAS):08x}, v{t1}')
    if clamp:
        e(f'v_max_f32 v{t1}, 0, v{t1}')
    return t1

def rare(name, p):
    L = [f'{name}_rare{p}:']
    e = L.append
    e('s_nop 15'); e('s_nop 15')
    for qb in range(2):
        d = rowmax_delta(e, qb, True)
        f = RT + 3
        e(f'v_cvt_i32_f32 v{f}, v{d}')
        e(f'v_sub_u32 v{f}, 0, v{f}')
        e(f'v_ldexp_f32 v{f}, 1.0, v{f}')
        e(f'v_sub_f32 v{NEGM(qb)}, v{NEGM(qb)}, v{d}')
        for i in range(1, 16):
            e(f'v_mov_b32 v{NEGM(qb)+i}, v{NEGM(qb)}')
        for pp in range(2):
            for i in range(16):
                e(f'v_sub_f32 v{S_(pp,qb)+i}, v{S_(pp,qb)+i}, v{d}')
        for i in range(8):
            e(f'v_exp_f32 v{RT+4}, v{S_(p,qb)+2*i}')
            e(f'v_exp_f32 v{RT+5}, v{S_(p,qb)+2*i+1}')
            e('s_nop 0')
            e(f'v_cvt_pk_bf16_f32 v{P_(p,qb)+i}, v{RT+4}, v{RT+5}')
        for i in range(4):
            e(f'v_mul_f32 v{LS(qb)+i}, v{LS(qb)+i}, v{f}')
        for db in range(4):
            for i in range(0, 16, 4):
                for k in range(4):
                    e(f'v_accvgpr_read_b32 v{RT+4+k}, a{O_(db,qb)+i+k}')
                for k in range(4):
                    e(f'v_mul_f32 v{RT+4+k}, v{RT+4+k}, v{f}')
                for k in range(4):
                    e(f'v_accvgpr_write_b32 a{O_(db,qb)+i+k}, v{RT+4+k}')
    e('s_nop 1')
    e(f's_setpc_b64 s[{S_RET}:{S_RET+1}]')
    return L


def gen_attn(name='attn_kernel', prof=False):
    L = kernel_header(name)
    e = L.append
    vq = Q(63)
    prof_begin(L)
    def stamp(i, q=False):
        if prof and (q == PROFQ or i in (0, 4)):
            e(f's_memtime s[{64+2*i}:{65+2*i}]')
    if prof:
        e('s_memrealtime s[80:81]')
    stamp(0)
    e('s_cmp_ge_u32 s2, 256')
    e(f's_cbranch_scc1 {name}_done')
    e(f's_load_dwordx4 s[48:51], s[0:1], {KA["k"]}')
    e(f's_load_dwordx2 s[52:53], s[0:1], {KA["wq"]}')
    e(f's_load_dwordx2 s[54:55], s[0:1], {KA["ws"]}')
    e('v_lshrrev_b32 v1, 6, v0')
    e('v_and_b32 v2, 63, v0')
    e(f'v_readfirstlane_b32 s{S_W}, v1')
    e(f's_and_b32 s{S_T0}, s2, 7')
    e(f's_lshr_b32 s{S_T1}, s2, 3')
    e(f's_lshl_b32 s{S_HEAD}, s{S_T0}, 2')
    e(f's_and_b32 s{S_T0}, s{S_T1}, 3')
    e(f's_add_u32 s{S_HEAD}, s{S_HEAD}, s{S_T0}')
    e(f's_lshr_b32 s{S_QB}, s{S_T1}, 2')
    e(f's_lshl_b32 s{S_WB}, s{S_W}, 11')
    e(f's_add_u32 s{S_WBV}, s{S_WB}, 65536')
    e(f's_mov_b32 s{S_THR}, 0x{f2u(THRESH):08x}')
    e('v_lshrrev_b32 v3, 4, v2')
    e('v_and_b32 v4, 15, v2')
    e('v_lshrrev_b32 v5, 5, v2')
    e('v_and_b32 v6, 31, v2')
    e('v_and_b32 v7, 1, v3')
    e('v_lshrrev_b32 v8, 2, v4')
    e('v_and_b32 v9, 3, v2')
    e(f'v_lshlrev_b32 v{VH}, 4, v2')
    e(f's_lshl_b32 s{S_T0}, s{S_W}, 3')
    e(f'v_add_u32 v10, s{S_T0}, v3')
    e('v_and_b32 v11, 15, v10')
    e('v_xor_b32 v11, v11, v4')
    e('v_lshlrev_b32 v12, 8, v10')
    e(f'v_lshl_add_u32 v{VKD0}, v11, 4, v12')
    e('v_add_u32 v11, 4, v10')
    e('v_and_b32 v11, 15, v11')
    e('v_xor_b32 v11, v11, v4')
    e(f'v_lshl_add_u32 v{VKD1}, v11, 4, v12')
    e('v_lshlrev_b32 v11, 2, v3')
    e('v_xor_b32 v11, v11, v4')
    e(f'v_lshl_add_u32 v{VVD}, v11, 4, v12')
    e(f'v_lshlrev_b32 v12, {8 if WQLIN else 13}, v10')
    e(f'v_lshl_add_u32 v{VWD}, v11, 4, v12')
    e(f's_lshl_b32 s{S_T0}, s{S_HEAD}, {17 if WQLIN else 8}')
    e(f'v_add_u32 v{VWD}, s{S_T0}, v{VWD}')
    e('v_and_b32 v10, 15, v6')
    e('v_lshlrev_b32 v12, 8, v6')
    for s_ in range(8):
        e(f'v_add_u32 v11, {2*s_}, v5')
        e('v_xor_b32 v11, v11, v10')
        e(f'v_lshl_add_u32 v{KAD+s_}, v11, 4, v12')
        e(f'v_xor_b32 v{KAD+s_}, 0x8000, v{KAD+s_}')
    e('v_lshl_add_u32 v10, v5, 2, v8')
    e('v_lshlrev_b32 v10, 8, v10')
    e('v_lshl_add_u32 v10, v7, 5, v10')
    e('v_lshl_add_u32 v13, v9, 3, v10')
    e('v_add_u32 v13, 0x18000, v13')
    for db in range(4):
        e(f'v_xor_b32 v11, {db}, v8')
        e(f'v_lshl_add_u32 v{VAD+db}, v11, 6, v13')
    e('v_lshl_add_u32 v10, v5, 3, v8')
    e('v_lshlrev_b32 v10, 8, v10')
    e('v_lshl_add_u32 v10, v7, 5, v10')
    e('v_and_b32 v11, 1, v9')
    e('v_lshlrev_b32 v11, 1, v11')
    e('v_lshrrev_b32 v12, 1, v9')
    e('v_or_b32 v11, v11, v12')
    e('v_lshl_add_u32 v13, v11, 3, v10')
    for db in range(4):
        e(f'v_xor_b32 v11, {db}, v8')
        e(f'v_lshl_add_u32 v{WAD+db}, v11, 6, v13')
        e(f'v_add_u32 v{WAD2+db}, 0x10000, v{WAD+db}')
    e('v_lshrrev_b32 v10, 2, v2')
    e('v_xor_b32 v10, v10, v3')
    e('v_and_b32 v10, 1, v10')
    e('v_cmp_eq_u32 vcc, 0, v10')
    e('v_mov_b32 v11, 0x3f803f80')
    e('s_waitcnt lgkmcnt(0)')
    for i in range(4):
        e(f'v_cndmask_b32 v{ONES+i}, 0, v11, vcc')
    e(f's_lshl_b32 s{S_T0}, s{S_HEAD}, 19')
    srd_off(L, SK, 48, f's{S_T0}', 524288)
    srd_off(L, SV, 50, f's{S_T0}', 524288)
    srd(L, SW, 52, 512 * 8192)
    srd_off(L, SH, 54, H1_OFF, 2048 * 1024)
    srd_off(L, SO, 54, O_OFF, 2048 * 8192)
    e(f's_lshl_b32 s{S_T0}, s{S_QB}, 3')
    e(f's_lshl_b32 s{S_T1}, s{S_W}, 1')
    e(f's_add_u32 s{S_T0}, s{S_T0}, s{S_T1}')
    e(f's_lshl_b32 s{S_H0}, s{S_T0}, 15')
    e(f's_add_u32 s{S_H1}, s{S_H0}, 32768')
    e(f's_lshl_b32 s{S_O0}, s{S_T0}, 18')
    e(f's_lshl_b32 s{S_T1}, s{S_HEAD}, 13')
    e(f's_add_u32 s{S_O0}, s{S_O0}, s{S_T1}')
    e(f's_add_u32 s{S_O1}, s{S_O0}, 4096')
    e(f's_add_u32 s{S_O2}, s{S_O0}, {1<<18}')
    e(f's_add_u32 s{S_O3}, s{S_O2}, 4096')

    def issue_D(c):
        for hcl in range(2):
            hc = 2 * c + hcl
            for i in range(2):
                e(f's_add_u32 m0, s{S_WB}, {HC_LOC[hc] + i*1024}')
                e(f's_mov_b32 s{S_T0}, {(32*hc + 4*i)*(256 if WQLIN else 8192)}')
                e(f'buffer_load_dwordx4 v{VWD}, s[{SW}:{SW+3}], s{S_T0} offen lds')
                vq.issue(('D', c))
    def issue_H(c):
        for ks in range(4):
            for qb in range(2):
                e(f'buffer_load_dwordx4 {a(HF(c,ks,qb),4)}, v{VH}, s[{SH}:{SH+3}], s{S_H0+qb} offen offset:{ks*1024}')
                vq.issue(('H', c))
        if not NOH:
            e(f's_add_u32 s{S_H0}, s{S_H0}, 4096')
            e(f's_add_u32 s{S_H1}, s{S_H1}, 4096')
    def issue_KV(kind, t):
        base = t * 8192 + (0 if kind == 'K' else 65536)
        e(f's_add_u32 m0, s{S_WB}, {base}')
        e(f's_mov_b32 s{S_T0}, {t*8192}')
        if kind == 'K':
            e(f'buffer_load_dwordx4 v{VKD0}, s[{SK}:{SK+3}], s{S_T0} offen lds')
            e(f'buffer_load_dwordx4 v{VKD1}, s[{SK}:{SK+3}], s{S_T0} offen offset:1024 lds')
        else:
            e(f'buffer_load_dwordx4 v{VVD}, s[{SV}:{SV+3}], s{S_T0} offen lds')
            e(f'buffer_load_dwordx4 v{VVD}, s[{SV}:{SV+3}], s{S_T0} offen offset:1024 lds')
        vq.issue((kind, t)); vq.issue((kind, t))
    def w_reads(kstep):
        hc = kstep // 2
        loc = HC_LOC[hc] + (kstep % 2) * 4096
        base = WAD if loc < 65536 else WAD2
        loc &= 0xffff
        st = kstep % 2
        ops = []
        for db in range(4):
            for aa in range(2):
                ops.append((f'ds_read_b64_tr_b16 {a(WF(st,db)+2*aa,2)}, v{base+db} offset:{loc + aa*1024}', 4))
        return ops

    for c in range(4):
        issue_D(c); issue_H(c)
    n = vq.wait_for(lambda t: t == ('D', 0))
    e(f's_waitcnt vmcnt({n})')
    e('s_barrier')
    stamp(1, True)
    L += [t for t, _ in w_reads(0)]
    for c in range(8):
        for ks in range(4):
            kstep = 4 * c + ks
            st = kstep % 2
            pre = []
            if ks == 0:
                n = vq.wait_for(lambda t: t == ('H', c))
                pre.append(f's_waitcnt vmcnt({n})')
            pre.append('s_waitcnt lgkmcnt(0)')
            L += pre
            if ks == 3:
                if c < 7:
                    n = vq.wait_for(lambda t: t == ('D', c + 1))
                else:
                    n = vq.wait_for(lambda t: t in (('K', 0),))
                if n is not None:
                    e(f's_waitcnt vmcnt({n})')
                e('s_barrier')
                for kind, t in KV_AFTER[c]:
                    issue_KV(kind, t)
            mf = []
            for db in range(4):
                for qb in range(2):
                    cc = '0' if kstep == 0 else v(QA(db, qb), 16)
                    mf.append((f'v_mfma_f32_32x32x16_bf16 {v(QA(db,qb),16)}, {a(WF(st,db),4)}, {a(HF(c,ks,qb),4)}, {cc}', 24))
            if kstep < 31:
                nxt = w_reads(kstep + 1)
            else:
                nxt = []
            L += interleave(mf, [dict(items=nxt, start=0, end=5)])
        if c + 4 < 8:
            issue_D(c + 4); issue_H(c + 4)
        if c == 3: stamp(2, True)
        if c == 7: stamp(3, True)
    stamp(1)
    L += [t for t, _ in k_reads(0)]
    e(f's_mov_b32 s{S_T0}, 0x{f2u(QSCALE):08x}')
    e('s_nop 7')
    for db in range(4):
        for qb in range(2):
            for sp in range(2):
                for i in range(4):
                    r = QA(db, qb) + 8 * sp + 2 * i
                    e(f'v_mul_f32 v{r}, s{S_T0}, v{r}')
                    e(f'v_mul_f32 v{r+1}, s{S_T0}, v{r+1}')
                for i in range(4):
                    r = QA(db, qb) + 8 * sp + 2 * i
                    e(f'v_cvt_pk_bf16_f32 v{TMP+i}, v{r}, v{r+1}')
                for i in range(4):
                    e(f'v_accvgpr_write_b32 a{Q_(qb, 2*db+sp)+i}, v{TMP+i}')
    e('s_waitcnt lgkmcnt(0)')
    e('s_nop 1')
    zero = [(f'v_accvgpr_write_b32 a{i}, 0', 4) for i in range(128)] + [(f'v_mov_b32 v{LS(0)+i}, 0', 4) for i in range(8)]
    L += interleave(qk_mfmas(0, czero=True), [dict(items=zero, start=0, end=15)])
    e('s_nop 15')
    for qb in range(2):
        e(f'v_max_f32 v{MX+qb}, v{S_(0,qb)}, v{S_(0,qb)+1}')
        for i in range(1, 8):
            e(f'v_max3_f32 v{MX+qb}, v{MX+qb}, v{S_(0,qb)+2*i}, v{S_(0,qb)+2*i+1}')
        d = rowmax_delta(e, qb, False)
        e(f'v_sub_f32 v{NEGM(qb)}, 0, v{d}')
        for i in range(1, 16):
            e(f'v_mov_b32 v{NEGM(qb)+i}, v{NEGM(qb)}')
        for i in range(16):
            e(f'v_sub_f32 v{S_(0,qb)+i}, v{S_(0,qb)+i}, v{d}')
    e(f's_mov_b32 s{S_SLOT}, 0')
    e(f's_mov_b32 s{S_KOFF}, {8*8192}')
    e(f's_mov_b32 s{S_VOFF}, {6*8192}')
    stamp(2)
    tramps = []
    b0, t0 = body(0, name, 'p0', do_pv=False)
    L += b0; tramps += t0
    e(f's_mov_b32 s{S_CNT}, 15')
    e(f'{name}_loop:')
    loop = []
    for u in range(4):
        b, t = body(1 + u, name, f'l{u}')
        loop += b; tramps += t
    L += loop
    e(f's_sub_u32 s{S_CNT}, s{S_CNT}, 1')
    e(f's_cmp_lg_u32 s{S_CNT}, 0')
    e(f's_cbranch_scc1 {name}_loop')
    tail = []
    b, t = body(61, name, 't61', dma=False, vm=20); tail += b; tramps += t
    b, t = body(62, name, 't62', dma=False, vm=16); tail += b; tramps += t
    b, t = body(63, name, 't63', dma=False, do_qk=False, vm=12); tail += b; tramps += t
    L += tail
    stamp(3)
    ep = []
    ep.append('s_waitcnt lgkmcnt(0)')
    ep += [t for t, _ in pv_mfmas(1)]
    ep.append('s_nop 15')
    for qb in range(2):
        ep.append(f'v_rcp_f32 v{RT+qb}, v{LS(qb)}')
    ep.append('s_nop 3')
    k = 0
    for qb in range(2):
        for db in range(4):
            for sp in range(2):
                base = 32 + 8 * (k % 8)
                pk = 96 + 4 * (k % 8)
                for i in range(8):
                    ep.append(f'v_accvgpr_read_b32 v{base+i}, a{O_(db,qb)+8*sp+i}')
                for i in range(8):
                    ep.append(f'v_mul_f32 v{base+i}, v{base+i}, v{RT+qb}')
                for i in range(4):
                    ep.append(f'v_cvt_pk_bf16_f32 v{pk+i}, v{base+2*i}, v{base+2*i+1}')
                t = 2 * db + sp
                so = S_O0 + 2 * qb + (1 if t >= 4 else 0)
                ep.append(f'buffer_store_dwordx4 {v(pk,4)}, v{VH}, s[{SO}:{SO+3}], s{so} offen offset:{(t%4)*1024}')
                k += 1
    L += ep
    if prof:
        e('s_waitcnt vmcnt(0)')
        stamp(4)
        e('s_memrealtime s[82:83]')
        e('s_waitcnt lgkmcnt(0)')
        srd_off(L, 84, 54, 64 << 20, 1 << 20)
        for i in range(5):
            e(f'v_mov_b32 v{32+i}, s{64+2*i}')
        e('v_mov_b32 v37, s80')
        e('v_mov_b32 v38, s82')
        e('v_mov_b32 v39, 0')
        e('s_lshl_b32 s88, s2, 2')
        e(f's_add_u32 s88, s88, s{S_W}')
        e('s_lshl_b32 s88, s88, 5')
        e('v_mov_b32 v40, 0')
        e('buffer_store_dwordx4 v[32:35], v40, s[84:87], s88 offen')
        e('buffer_store_dwordx4 v[36:39], v40, s[84:87], s88 offen offset:16')
    prof_end(L, 2, 1)
    e(f'{name}_done:')
    e('s_endpgm')
    L += tramps
    L += rare(name, 0) + rare(name, 1)
    pro_end = L.index(f'{name}_loop:')
    trace = L[:pro_end] + loop + loop + tail + ep
    hz = check_hazards(trace, name)
    hz += check_hazards(loop[-30:] + rare(name, 0) + loop[:30], name + '_rare0')
    hz += check_hazards(loop[-30:] + rare(name, 1) + loop[:30], name + '_rare1')
    for h in hz: print('HAZARD', h)
    return L, kernel_desc(name, 512, 102, 256), f'; @launch kernel={name} grid=(256,1,1) block=(256,1,1) lds=131072'
```

```python
from asmlib import *
import asmlib
from k_small import *
from k_attn import interleave, f2u
import math

def O_(db, qb): return 16 * (2 * db + qb)
def Q_(qb, s_): return 128 + 4 * (8 * qb + s_)
def KF(s_): return 192 + 4 * s_
def VF(ks, db): return 224 + 4 * (4 * ks + db)
KAD = 16
VAD = 24
WAD = 28
WAD2 = 200
def S_(p, qb): return 32 + 32 * p + 16 * qb
def P_(p, qb): return 96 + 16 * p + 8 * qb
def NEGM(qb): return 128 + 16 * qb
LSUM = 160
LB = 162
TMP = 172
MX = 180
VKD0, VKD1, VVD, VWD, VH = 182, 183, 184, 185, 186
RT = 188
PFD = 204
VPF = 208
def QA(db, qb): return 32 + 16 * (2 * db + qb)
def HF(c, ks, qb): return 32 * (c % 4) + 8 * ks + 4 * qb
def WF(st, db): return 192 + 16 * st + 4 * db

SK, SV, SW, SH, SO = 8, 12, 16, 20, 24
S_W, S_HEAD, S_QB, S_CNT, S_KOFF, S_VOFF, S_KSLOT, S_WB, S_WBV, S_THR, S_T0, S_T1 = 28, 29, 30, 31, 32, 33, 34, 35, 36, 37, 38, 39
S_RET = 40
S_H0, S_H1 = 42, 43
S_O0, S_O1, S_O2, S_O3 = 44, 45, 46, 47
S_VSLOT, S_PF = 56, 57
SPFS = [4, 48, 52, 60]

THRESH = 2.0 ** 64
BIAS = 56.0
QSCALE = (128 ** -0.5) * 1.4426950408889634
DK, DV = 5, 4
PREFETCH = True
USE_PK = False
TWOACC = False
ABL = set()

KSL = lambda i: i * 8192
VSL = lambda i: 65536 + i * 8192
HC_LOC = [KSL(0), KSL(1), VSL(0), KSL(2), VSL(1), KSL(3), VSL(2), KSL(4), VSL(3),
          KSL(5), KSL(6), KSL(7), VSL(4), VSL(5), VSL(6), VSL(7)]
KV_AT = {4: [('K', 0), ('K', 1)], 5: [('V', 0), ('K', 2)], 6: [('V', 1), ('K', 3)], 7: [('V', 2), ('K', 4), ('V', 3)]}

CV, CE, CD, CM, CS = 4, 8, 4, 16, 4

LACC = 164
def softmax_ops(p, first=False):
    ops = []
    if not first:
        for qb in range(2):
            ops.append((f'v_add_f32 v{LSUM+qb}, v{LSUM+qb}, v{LB+qb}', CV))
    prev = []
    qi = 0
    for qb in range(2):
        for i in range(8):
            sa, sb = S_(p, qb) + 2 * i, S_(p, qb) + 2 * i + 1
            ta, tb = TMP + 2 * (qi % 4), TMP + 2 * (qi % 4) + 1
            pa = TMP + 2 * ((qi - 1) % 4)
            ops.append((f'v_exp_f32 v{ta}, v{sa}', CE))
            ops += prev[:1]
            ops.append((f'v_exp_f32 v{tb}, v{sb}', CE))
            ops += prev[1:]
            prev = [(f'v_cvt_pk_bf16_f32 v{P_(p,qb)+i}, v{ta}, v{tb}', CV)]
            if USE_PK:
                ac = LACC + 2 * qb
                if i == 1:
                    prev.append((f'v_pk_add_f32 v[{ac}:{ac+1}], v[{pa}:{pa+1}], v[{ta}:{tb}]', CV))
                elif i > 1:
                    prev.append((f'v_pk_add_f32 v[{ac}:{ac+1}], v[{ac}:{ac+1}], v[{ta}:{tb}]', CV))
                if i == 7:
                    prev.append((f'v_add_f32 v{LB+qb}, v{ac}, v{ac+1}', CV))
            elif TWOACC:
                ac = LACC + 2 * qb
                if i == 0:
                    pass
                elif i == 1:
                    prev.append((f'v_add_f32 v{ac}, v{pa}, v{ta}', CV))
                    prev.append((f'v_add_f32 v{ac+1}, v{pa+1}, v{tb}', CV))
                else:
                    prev.append((f'v_add_f32 v{ac}, v{ac}, v{ta}', CV))
                    prev.append((f'v_add_f32 v{ac+1}, v{ac+1}, v{tb}', CV))
                if i == 7:
                    prev.append((f'v_add_f32 v{LB+qb}, v{ac}, v{ac+1}', CV))
            else:
                if i == 0:
                    prev.append((f'v_add_f32 v{LB+qb}, v{ta}, v{tb}', CV))
                else:
                    prev.append((f'v_add_f32 v{LB+qb}, v{LB+qb}, v{ta}', CV))
                    prev.append((f'v_add_f32 v{LB+qb}, v{LB+qb}, v{tb}', CV))
            qi += 1
    ops += prev
    ops.append((f'v_max_f32 v{RT}, v{LB}, v{LB+1}', CV))
    ops.append((f'v_cmp_nle_f32 vcc, v{RT}, v{MX}', CV))
    return ops


def pv_mfmas(p, czero=False):
    m = []
    for ks in range(2):
        for db in range(4):
            for qb in range(2):
                c = '0' if (czero and ks == 0) else a(O_(db, qb), 16)
                m.append((f'v_mfma_f32_32x32x16_bf16 {a(O_(db,qb),16)}, {a(VF(ks,db),4)}, {v(P_(p,qb)+4*ks,4)}, {c}', 24))
    return m

def qk_mfmas(p, czero=False):
    m = []
    for s_ in range(8):
        for qb in range(2):
            c = v(S_(p, qb), 16) if s_ else ('0' if czero else v(NEGM(qb), 16))
            m.append((f'v_mfma_f32_32x32x16_bf16 {v(S_(p,qb),16)}, {a(KF(s_),4)}, {a(Q_(qb,s_),4)}, {c}', 24))
    return m

def k_reads(slot):
    ops = []
    if slot % 4 == 0:
        for s_ in range(8):
            ops.append((f'v_xor_b32 v{KAD+s_}, 0x8000, v{KAD+s_}', CV))
    for s_ in range(8):
        ops.append((f'ds_read_b128 {a(KF(s_),4)}, v{KAD+s_} offset:{(slot%4)*8192}', CD))
    return ops

def v_reads(slot):
    ops = []
    if slot % 4 == 0:
        for db in range(4):
            ops.append((f'v_xor_b32 v{VAD+db}, 0x8000, v{VAD+db}', CV))
    for ks in range(2):
        for db in range(4):
            for aa in range(2):
                ops.append((f'ds_read_b64_tr_b16 {a(VF(ks,db)+2*aa,2)}, v{VAD+db} offset:{(slot%4)*8192 + (16*ks+8*aa)*256}', CD))
    return ops

def dma_ops(pf=None):
    ops = [
        (f's_add_u32 m0, s{S_KSLOT}, s{S_WB}', CS),
        (f's_add_u32 s{S_KSLOT}, s{S_KSLOT}, 8192', CS),
        (f'buffer_load_dwordx4 v{VKD0}, s[{SK}:{SK+3}], s{S_KOFF} offen lds', CM),
        (f's_and_b32 s{S_KSLOT}, s{S_KSLOT}, 0xffff', CS),
        (f'buffer_load_dwordx4 v{VKD1}, s[{SK}:{SK+3}], s{S_KOFF} offen offset:1024 lds', CM),
        (f's_add_u32 m0, s{S_VSLOT}, s{S_WBV}', CS),
        (f's_add_u32 s{S_VSLOT}, s{S_VSLOT}, 8192', CS),
        (f'buffer_load_dwordx4 v{VVD}, s[{SV}:{SV+3}], s{S_VOFF} offen lds', CM),
        (f's_and_b32 s{S_VSLOT}, s{S_VSLOT}, 0xffff', CS),
        (f'buffer_load_dwordx4 v{VVD}, s[{SV}:{SV+3}], s{S_VOFF} offen offset:1024 lds', CM),
        (f's_add_u32 s{S_KOFF}, s{S_KOFF}, 8192', CS),
        (f's_add_u32 s{S_VOFF}, s{S_VOFF}, 8192', CS),
    ]
    if pf is not None:
        ops.append((f'buffer_load_dwordx4 v[{PFD}:{PFD+3}], v{VPF}, s[{SPFS[pf]}:{SPFS[pf]+3}], s{S_PF} offen', CM))
        if pf == 3:
            ops.append((f's_add_u32 s{S_PF}, s{S_PF}, {1<<20}', CS))
    return ops


def body(j, name, tag, do_pv=True, do_qk=True, dma=True, vm=12, pvzero=False, pf=None, first=False):
    p = j % 2
    mf = []
    if do_pv: mf += pv_mfmas(1 - p, pvzero)
    npv = len(mf)
    if do_qk: mf += qk_mfmas(1 - p)
    n = len(mf)
    pre = {}
    L = []
    queues = []
    bar = [f's_waitcnt vmcnt({vm})', 's_barrier']
    if do_pv:
        pre[0] = ['s_waitcnt lgkmcnt(0)']
        pre[1] = list(bar)
        kstart = 1
    else:
        L += bar
        kstart = 0
    if do_qk:
        if do_pv:
            queues.append(dict(items=k_reads((j + 1) % 8), start=kstart, end=min(kstart + 9, npv - 3)))
            pre.setdefault(npv, []).append('s_waitcnt lgkmcnt(0)')
        else:
            L += [t for t, _ in k_reads((j + 1) % 8)]
            pre.setdefault(0, []).append('s_waitcnt lgkmcnt(0)')
    if dma:
        queues.append(dict(items=dma_ops(pf), start=(6 if do_pv else 2), end=(npv + 4 if do_pv else 13)))
    vstart = npv if do_qk else npv - 1
    queues.append(dict(items=v_reads(j % 8), start=vstart, end=min(vstart + 11, n - 1)))
    queues.append(dict(items=softmax_ops(p, first), start=(3 if do_qk else 6) if do_pv else 2, end=n - 2))
    if tag.startswith('l'):
        for q in queues:
            if 'nok' in ABL: q['items'] = [x for x in q['items'] if not x[0].startswith('ds_read_b128')]
            if 'nov' in ABL: q['items'] = [x for x in q['items'] if not x[0].startswith('ds_read_b64')]
            if 'nodma' in ABL: q['items'] = [x for x in q['items'] if not x[0].startswith('buffer_load')]
            if 'nosalu' in ABL: q['items'] = [x for x in q['items'] if not x[0].startswith('s_')]
            if 'noadd' in ABL: q['items'] = [x for x in q['items'] if not x[0].startswith('v_add')]
            if 'nocvt' in ABL: q['items'] = [x for x in q['items'] if not x[0].startswith('v_cvt')]
        if 'nobar' in ABL: pre[1] = []
    L += interleave(mf, queues, pre)
    L.append(f's_cbranch_vccnz {name}_tr_{tag}')
    L.append(f'{name}_back_{tag}:')
    tramp = [f'{name}_tr_{tag}:', f's_call_b64 s[{S_RET}:{S_RET+1}], {name}_rare{p}', f's_branch {name}_back_{tag}']
    return L, tramp


def rowmax_delta(e, p, qb, clamp):
    t1, t2 = RT + 1, RT + 2
    e(f'v_max_f32 v{t1}, v{S_(p,qb)}, v{S_(p,qb)+1}')
    for i in range(1, 8):
        e(f'v_max3_f32 v{t1}, v{t1}, v{S_(p,qb)+2*i}, v{S_(p,qb)+2*i+1}')
    e(f'v_mov_b32 v{t2}, v{t1}')
    e('s_nop 1')
    e(f'v_permlane32_swap_b32 v{t1}, v{t2}')
    e(f'v_max_f32 v{t1}, v{t1}, v{t2}')
    e(f'v_ceil_f32 v{t1}, v{t1}')
    e(f'v_add_f32 v{t1}, 0x{f2u(BIAS):08x}, v{t1}')
    if clamp:
        e(f'v_max_f32 v{t1}, 0, v{t1}')
    return t1

def rare(name, p):
    L = [f'{name}_rare{p}:']
    e = L.append
    e('s_nop 15'); e('s_nop 15')
    for qb in range(2):
        d = rowmax_delta(e, p, qb, True)
        f = RT + 3
        e(f'v_cvt_i32_f32 v{f}, v{d}')
        e(f'v_sub_u32 v{f}, 0, v{f}')
        e(f'v_ldexp_f32 v{f}, 1.0, v{f}')
        e(f'v_sub_f32 v{NEGM(qb)}, v{NEGM(qb)}, v{d}')
        for i in range(1, 16):
            e(f'v_mov_b32 v{NEGM(qb)+i}, v{NEGM(qb)}')
        for pp in range(2):
            for i in range(16):
                e(f'v_sub_f32 v{S_(pp,qb)+i}, v{S_(pp,qb)+i}, v{d}')
        e(f'v_mov_b32 v{LB+qb}, 0')
        for i in range(8):
            e(f'v_exp_f32 v{RT+4}, v{S_(p,qb)+2*i}')
            e(f'v_exp_f32 v{RT+5}, v{S_(p,qb)+2*i+1}')
            e('s_nop 0')
            e(f'v_cvt_pk_bf16_f32 v{P_(p,qb)+i}, v{RT+4}, v{RT+5}')
            e(f'v_add_f32 v{LB+qb}, v{LB+qb}, v{RT+4}')
            e(f'v_add_f32 v{LB+qb}, v{LB+qb}, v{RT+5}')
        e(f'v_mul_f32 v{LSUM+qb}, v{LSUM+qb}, v{f}')
        for db in range(4):
            for i in range(0, 16, 4):
                for k in range(4):
                    e(f'v_accvgpr_read_b32 v{RT+4+k}, a{O_(db,qb)+i+k}')
                for k in range(4):
                    e(f'v_mul_f32 v{RT+4+k}, v{RT+4+k}, v{f}')
                for k in range(4):
                    e(f'v_accvgpr_write_b32 a{O_(db,qb)+i+k}, v{RT+4+k}')
    e('s_nop 1')
    e(f's_setpc_b64 s[{S_RET}:{S_RET+1}]')
    return L


def gen_attn(name='attn_kernel', prof=False):
    L = kernel_header(name)
    e = L.append
    vq = Q(63)
    prof_begin(L)
    dstamp(L, 2, 0)
    e('s_cmp_ge_u32 s2, 256')
    e(f's_cbranch_scc1 {name}_done')
    e(f's_load_dwordx2 s[52:53], s[0:1], {KA["wq"]}')
    e(f's_load_dwordx2 s[54:55], s[0:1], {KA["ws"]}')
    e(f's_load_dwordx4 s[48:51], s[0:1], {KA["k"]}')
    if PREFETCH:
        e(f's_load_dwordx2 s[80:81], s[0:1], {KA["wo"]}')
        e(f's_load_dwordx4 s[84:87], s[0:1], {KA["wg"]}')
        e(f's_load_dwordx2 s[82:83], s[0:1], {KA["wd"]}')
    e('v_lshrrev_b32 v1, 6, v0')
    e('v_and_b32 v2, 63, v0')
    e(f'v_readfirstlane_b32 s{S_W}, v1')
    e(f's_bfe_u32 s{S_T0}, s2, 0x20001')
    e(f's_lshr_b32 s{S_T1}, s2, 3')
    e(f's_lshl_b32 s{S_HEAD}, s{S_T0}, 3')
    e(f's_and_b32 s{S_T0}, s{S_T1}, 7')
    e(f's_add_u32 s{S_HEAD}, s{S_HEAD}, s{S_T0}')
    e(f's_lshr_b32 s{S_QB}, s{S_T1}, 3')
    e(f's_and_b32 s{S_T0}, s2, 1')
    e(f's_lshl_b32 s{S_T0}, s{S_T0}, 2')
    e(f's_add_u32 s{S_QB}, s{S_QB}, s{S_T0}')
    e(f's_lshl_b32 s{S_WB}, s{S_W}, 11')
    e(f's_add_u32 s{S_WBV}, s{S_WB}, 65536')
    e('v_lshrrev_b32 v3, 4, v2')
    e('v_and_b32 v4, 15, v2')
    e(f'v_lshlrev_b32 v{VH}, 4, v2')
    e(f's_lshl_b32 s{S_T0}, s{S_W}, 3')
    e(f'v_add_u32 v10, s{S_T0}, v3')
    e('v_lshlrev_b32 v11, 2, v3')
    e('v_xor_b32 v11, v11, v4')
    e('v_lshlrev_b32 v12, 13, v10')
    e(f'v_lshl_add_u32 v{VWD}, v11, 4, v12')
    e(f's_lshl_b32 s{S_T0}, s{S_HEAD}, 8')
    e(f'v_add_u32 v{VWD}, s{S_T0}, v{VWD}')
    e(f's_lshl_b32 s{S_T0}, s{S_QB}, 3')
    e(f's_lshl_b32 s{S_T1}, s{S_W}, 1')
    e(f's_add_u32 s{S_O0}, s{S_T0}, s{S_T1}')
    e(f's_lshl_b32 s{S_H0}, s{S_O0}, 15')
    e(f's_add_u32 s{S_H1}, s{S_H0}, 32768')
    e('s_waitcnt lgkmcnt(0)')
    srd(L, SW, 52, 512 * 8192)
    srd_off(L, SH, 54, H1_OFF, 2048 * 1024)

    def ops_D(c):
        ops = []
        for hcl in range(2):
            hc = 2 * c + hcl
            for i in range(2):
                ops.append((f's_add_u32 m0, s{S_WB}, {HC_LOC[hc] + i*1024}', CS))
                ops.append((f's_mov_b32 s{S_T0}, {(32*hc + 4*i)*8192}', CS))
                ops.append((f'buffer_load_dwordx4 v{VWD}, s[{SW}:{SW+3}], s{S_T0} offen lds', CM, ('D', c)))
        return ops
    def ops_H(c):
        ops = []
        for ks in range(4):
            for qb in range(2):
                ops.append((f'buffer_load_dwordx4 {a(HF(c,ks,qb),4)}, v{VH}, s[{SH}:{SH+3}], s{S_H0+qb} offen offset:{ks*1024}', CM, ('H', c, ks)))
        ops.append((f's_add_u32 s{S_H0}, s{S_H0}, 4096', CS))
        ops.append((f's_add_u32 s{S_H1}, s{S_H1}, 4096', CS))
        return ops
    def ops_KV(kind, t):
        base = t * 8192 + (0 if kind == 'K' else 65536)
        ops = [(f's_add_u32 m0, s{S_WB}, {base}', CS), (f's_mov_b32 s{S_T0}, {t*8192}', CS)]
        if kind == 'K':
            ops.append((f'buffer_load_dwordx4 v{VKD0}, s[{SK}:{SK+3}], s{S_T0} offen lds', CM, (kind, t)))
            ops.append((f'buffer_load_dwordx4 v{VKD1}, s[{SK}:{SK+3}], s{S_T0} offen offset:1024 lds', CM, (kind, t)))
        else:
            ops.append((f'buffer_load_dwordx4 v{VVD}, s[{SV}:{SV+3}], s{S_T0} offen lds', CM, (kind, t)))
            ops.append((f'buffer_load_dwordx4 v{VVD}, s[{SV}:{SV+3}], s{S_T0} offen offset:1024 lds', CM, (kind, t)))
        return ops
    def emit_ops(ops):
        for o in ops:
            e(o[0])
            if len(o) > 2: vq.issue(o[2])
    def w_reads(kstep):
        hc = kstep // 2
        loc = HC_LOC[hc] + (kstep % 2) * 4096
        base = WAD if loc < 65536 else WAD2
        loc &= 0xffff
        st = kstep % 2
        ops = []
        for db in range(4):
            for aa in range(2):
                ops.append((f'ds_read_b64_tr_b16 {a(WF(st,db)+2*aa,2)}, v{base+db} offset:{loc + aa*1024}', CD))
        return ops

    emit_ops(ops_D(0)); emit_ops(ops_H(0)); emit_ops(ops_D(1))
    dstamp(L, 2, 1)
    e('v_lshrrev_b32 v5, 5, v2')
    e('v_and_b32 v6, 31, v2')
    e('v_and_b32 v7, 1, v3')
    e('v_lshrrev_b32 v8, 2, v4')
    e('v_and_b32 v9, 3, v2')
    e('v_lshlrev_b32 v12, 8, v10')
    e(f'v_lshl_add_u32 v{VVD}, v11, 4, v12')
    e('v_and_b32 v11, 15, v10')
    e('v_xor_b32 v11, v11, v4')
    e(f'v_lshl_add_u32 v{VKD0}, v11, 4, v12')
    e('v_add_u32 v11, 4, v10')
    e('v_and_b32 v11, 15, v11')
    e('v_xor_b32 v11, v11, v4')
    e(f'v_lshl_add_u32 v{VKD1}, v11, 4, v12')
    e('v_and_b32 v10, 15, v6')
    e('v_lshlrev_b32 v12, 8, v6')
    for s_ in range(8):
        e(f'v_add_u32 v11, {2*s_}, v5')
        e('v_xor_b32 v11, v11, v10')
        e(f'v_lshl_add_u32 v{KAD+s_}, v11, 4, v12')
        e(f'v_xor_b32 v{KAD+s_}, 0x8000, v{KAD+s_}')
    e('v_lshl_add_u32 v10, v5, 2, v8')
    e('v_lshlrev_b32 v10, 8, v10')
    e('v_lshl_add_u32 v10, v7, 5, v10')
    e('v_lshl_add_u32 v13, v9, 3, v10')
    e('v_add_u32 v13, 0x18000, v13')
    for db in range(4):
        e(f'v_xor_b32 v11, {db}, v8')
        e(f'v_lshl_add_u32 v{VAD+db}, v11, 6, v13')
    e('v_lshl_add_u32 v10, v5, 3, v8')
    e('v_lshlrev_b32 v10, 8, v10')
    e('v_lshl_add_u32 v10, v7, 5, v10')
    e('v_and_b32 v11, 1, v9')
    e('v_lshlrev_b32 v11, 1, v11')
    e('v_lshrrev_b32 v12, 1, v9')
    e('v_or_b32 v11, v11, v12')
    e('v_lshl_add_u32 v13, v11, 3, v10')
    for db in range(4):
        e(f'v_xor_b32 v11, {db}, v8')
        e(f'v_lshl_add_u32 v{WAD+db}, v11, 6, v13')
        e(f'v_add_u32 v{WAD2+db}, 0x10000, v{WAD+db}')
    e(f'v_mov_b32 v{MX}, 0x{f2u(THRESH):08x}')
    e(f'v_mov_b32 v{LSUM}, 0')
    e(f'v_mov_b32 v{LSUM+1}, 0')
    e(f's_lshl_b32 s{S_T0}, s{S_HEAD}, 19')
    srd_off(L, SK, 48, f's{S_T0}', 524288)
    srd_off(L, SV, 50, f's{S_T0}', 524288)
    srd_off(L, SO, 54, O_OFF, 2048 * 8192)
    e(f's_lshl_b32 s{S_O0}, s{S_O0}, 18')
    e(f's_lshl_b32 s{S_T1}, s{S_HEAD}, 13')
    e(f's_add_u32 s{S_O0}, s{S_O0}, s{S_T1}')
    e(f's_add_u32 s{S_O1}, s{S_O0}, 4096')
    e(f's_add_u32 s{S_O2}, s{S_O0}, {1<<18}')
    e(f's_add_u32 s{S_O3}, s{S_O2}, 4096')
    if PREFETCH:
        srd(L, SPFS[0], 80, 4096 * 1024)
        srd(L, SPFS[1], 84, 512 * 3584)
        srd(L, SPFS[2], 86, 512 * 3584)
        srd(L, SPFS[3], 82, 1792 * 1024)
        e(f's_lshl_b32 s{S_PF}, s2, 12')
        e(f'v_lshlrev_b32 v{VPF}, 4, v0')
    n = vq.wait_for(lambda t: t == ('D', 0))
    e(f's_waitcnt vmcnt({n})')
    e('s_barrier')
    dstamp(L, 2, 2)
    L += [t for t, _ in w_reads(0)]
    plan = {0: ops_H(1) + ops_D(2) + ops_H(2)}
    for c in range(1, 6):
        plan[c] = ops_D(c + 2) + ops_H(c + 2)
    plan[6] = []; plan[7] = []
    def conv_ops(db):
        ops = []
        for qb in range(2):
            for sp in range(2):
                for i in range(4):
                    r = QA(db, qb) + 8 * sp + 2 * i
                    ops.append((f'v_mul_f32 v{r}, s{S_T1}, v{r}', CV))
                    ops.append((f'v_mul_f32 v{r+1}, s{S_T1}, v{r+1}', CV))
                for i in range(4):
                    r = QA(db, qb) + 8 * sp + 2 * i
                    ops.append((f'v_cvt_pk_bf16_f32 v{TMP+4*(sp%2)+i}, v{r}, v{r+1}', CV))
                for i in range(4):
                    ops.append((f'v_accvgpr_write_b32 a{Q_(qb, 2*db+sp)+i}, v{TMP+4*(sp%2)+i}', CV))
        return ops
    for c in range(8):
        vops = list(plan[c])
        nv = len(vops)
        for ks in range(4):
            kstep = 4 * c + ks
            st = kstep % 2
            n = vq.wait_for(lambda t: t == ('H', c, ks))
            if n is not None: e(f's_waitcnt vmcnt({n})')
            e('s_waitcnt lgkmcnt(0)')
            part = []
            if ks < 3:
                k0 = nv * ks // 3; k1 = nv * (ks + 1) // 3
                part = vops[k0:k1]
            else:
                if c < 7:
                    n = vq.wait_for(lambda t: t == ('D', c + 1))
                else:
                    n = vq.wait_for(lambda t: t in (('K', 0),))
                if n is not None:
                    e(f's_waitcnt vmcnt({n})')
                e('s_barrier')
                for kind, t in KV_AT.get(c, []):
                    part += ops_KV(kind, t)
            mf = []
            for db in range(4):
                for qb in range(2):
                    cc = '0' if kstep == 0 else v(QA(db, qb), 16)
                    mf.append((f'v_mfma_f32_32x32x16_bf16 {v(QA(db,qb),16)}, {a(WF(st,db),4)}, {a(HF(c,ks,qb),4)}, {cc}', 24))
            qs = []
            if kstep < 31:
                qs.append(dict(items=w_reads(kstep + 1), start=0, end=5))
            else:
                pass
            if part:
                qs.append(dict(items=[(o[0], o[1]) for o in part], start=0, end=7))
            L += interleave(mf, qs)
            for o in part:
                if len(o) > 2: vq.issue(o[2])
    dstamp(L, 2, 3)
    L += [t for t, _ in k_reads(0)]
    e(f's_mov_b32 s{S_T1}, 0x{f2u(QSCALE):08x}')
    e('s_nop 4')
    L += [t for t, _ in conv_ops(0)]
    e('s_waitcnt lgkmcnt(0)')
    qk0 = qk_mfmas(0, czero=True)
    for db in range(1, 4):
        L += interleave(qk0[4*(db-1):4*db], [dict(items=conv_ops(db), start=0, end=3)])
    e('s_nop 1')
    L += [t for t, _ in qk0[12:]]
    e('s_nop 15')
    for qb in range(2):
        d = rowmax_delta(e, 0, qb, False)
        e(f'v_sub_f32 v{NEGM(qb)}, 0, v{d}')
        for i in range(1, 16):
            e(f'v_mov_b32 v{NEGM(qb)+i}, v{NEGM(qb)}')
        for i in range(16):
            e(f'v_sub_f32 v{S_(0,qb)+i}, v{S_(0,qb)+i}, v{d}')
    e(f's_mov_b32 s{S_KSLOT}, {DK*8192}')
    e(f's_mov_b32 s{S_VSLOT}, {DV*8192}')
    e(f's_mov_b32 s{S_KOFF}, {DK*8192}')
    e(f's_mov_b32 s{S_VOFF}, {DV*8192}')
    dstamp(L, 2, 4)
    tramps = []
    n0 = vq.wait_for(lambda t: t in (('K', 1), ('V', 0)))
    b0, t0 = body(0, name, 'p0', do_pv=False, vm=n0, first=True)
    L += b0; tramps += t0
    for _ in range(4): vq.issue(('it', 0))
    n1 = vq.wait_for(lambda t: t in (('K', 2), ('V', 1)))
    b1, t1 = body(1, name, 'p1', pvzero=True, vm=n1)
    L += b1; tramps += t1
    for _ in range(4): vq.issue(('it', 1))
    e(f's_mov_b32 s{S_CNT}, 15')
    e(f'{name}_loop:')
    loop = []
    per = 5 if PREFETCH else 4
    n2 = min(vq.copy().wait_for(lambda t: t in (('K', 3), ('V', 2))), 3 * per)
    vms = []
    q2 = vq.copy()
    for u in range(4):
        j = 2 + u
        if j < 4:
            need = lambda t, j=j: t in (('K', j + 1), ('V', j))
        else:
            need = lambda t, j=j: t == ('it', j - DV)
        nn = q2.copy().wait_for(need)
        steady = 3 * per + (1 if PREFETCH else 0)
        vms.append(min(nn, steady))
        for _ in range(4): q2.issue(('it', j))
        if PREFETCH: q2.issue(('pf', j))
    for u in range(4):
        b, t = body(2 + u, name, f'l{u}', vm=vms[u], pf=(u if PREFETCH else None))
        loop += b; tramps += t
    L += loop
    e(f's_sub_u32 s{S_CNT}, s{S_CNT}, 1')
    e(f's_cmp_lg_u32 s{S_CNT}, 0')
    e(f's_cbranch_scc1 {name}_loop')
    tail = []
    pfx = 1 if PREFETCH else 0
    b, t = body(62, name, 't62', dma=False, vm=3 * per + pfx); tail += b; tramps += t
    b, t = body(63, name, 't63', dma=False, do_qk=False, vm=2 * per + pfx); tail += b; tramps += t
    L += tail
    if PREFETCH:
        e(f's_bfe_u32 s{S_T0}, s2, 0x20001')
        e(f's_lshl_b32 s{S_T0}, s{S_T0}, 20')
        e(f's_lshr_b32 s{S_T1}, s2, 3')
        e(f's_lshl_b32 s{S_T1}, s{S_T1}, 15')
        e(f's_add_u32 s{S_T0}, s{S_T0}, s{S_T1}')
        e(f's_lshl_b32 s{S_T1}, s{S_W}, 13')
        e(f's_add_u32 s{S_T0}, s{S_T0}, s{S_T1}')
        e(f's_add_u32 s{S_T1}, s{S_T0}, 4096')
        for i in range(8):
            e(f'buffer_load_dwordx4 v[{PFD}:{PFD+3}], v{VH}, s[{SPFS[0]}:{SPFS[0]+3}], s{S_T0 if i < 4 else S_T1} offen offset:{(i%4)*1024}')
    dstamp(L, 2, 5)
    ep = []
    for qb in range(2):
        ep.append(f'v_add_f32 v{LSUM+qb}, v{LSUM+qb}, v{LB+qb}')
        ep.append(f'v_mov_b32 v{RT+2+qb}, v{LSUM+qb}')
    ep.append('s_nop 1')
    for qb in range(2):
        ep.append(f'v_permlane32_swap_b32 v{LSUM+qb}, v{RT+2+qb}')
    for qb in range(2):
        ep.append(f'v_add_f32 v{LSUM+qb}, v{LSUM+qb}, v{RT+2+qb}')
    for qb in range(2):
        ep.append(f'v_rcp_f32 v{RT+qb}, v{LSUM+qb}')
    ep.append('s_waitcnt lgkmcnt(0)')
    def norm_ops(db, qb, k):
        ops = []
        for sp in range(2):
            base = 32 + 8 * ((2 * k + sp) % 8)
            pk = 128 + 4 * ((2 * k + sp) % 8)
            for i in range(8):
                ops.append((f'v_accvgpr_read_b32 v{base+i}, a{O_(db,qb)+8*sp+i}', CV))
            for i in range(8):
                ops.append((f'v_mul_f32 v{base+i}, v{base+i}, v{RT+qb}', CV))
            for i in range(4):
                ops.append((f'v_cvt_pk_bf16_f32 v{pk+i}, v{base+2*i}, v{base+2*i+1}', CV))
            t = 2 * db + sp
            so = S_O0 + 2 * qb + (1 if t >= 4 else 0)
            ops.append((f'buffer_store_dwordx4 {v(pk,4)}, v{VH}, s[{SO}:{SO+3}], s{so} offen offset:{(t%4)*1024}', CM))
        return ops
    pv = pv_mfmas(1)
    ep += [t for t, _ in pv[:12]]
    ep += interleave(pv[12:], [dict(items=[('s_nop 7', 4)] + norm_ops(0, 0, 0), start=0, end=3)])
    k = 1
    for db in range(4):
        for qb in range(2):
            if (db, qb) == (0, 0): continue
            if db == 3 and qb == 0: ep.append('s_nop 0')
            ep += [t for t, _ in norm_ops(db, qb, k)]
            k += 1
    L += ep
    dstamp(L, 2, 6)
    dstamp_store(L, 2, 7)
    prof_end(L, 2, 1)
    e(f'{name}_done:')
    e('s_endpgm')
    L += tramps
    L += rare(name, 0) + rare(name, 1)
    pro_end = L.index(f'{name}_loop:')
    trace = L[:pro_end] + loop + loop + tail + ep
    hz = check_hazards(trace, name)
    hz += check_hazards(loop[-30:] + rare(name, 0) + loop[:30], name + '_rare0')
    hz += check_hazards(loop[-30:] + rare(name, 1) + loop[:30], name + '_rare1')
    for h in hz: print('HAZARD', h)
    print('attn vms', n0, n1, vms)
    return L, kernel_desc(name, 512, 102, 256), f'; @launch kernel={name} grid=(256,1,1) block=(256,1,1) lds=131072'
```

```python
from asmlib import *
import asmlib
from k_small import *
from k_attn import interleave, f2u
import math

def O_(db, qb): return 16 * (2 * db + qb)
def Q_(qb, s_): return 128 + 4 * (8 * qb + s_)
def KF(s_): return 192 + 4 * s_
def VF(ks, db): return 224 + 4 * (4 * ks + db)
KAD = 16
VAD = 24
KADH = 210
VADH = 218
WAD = 28
WAD2 = 200
def S_(p, qb): return 32 + 32 * p + 16 * qb
def P_(p, qb): return 96 + 16 * p + 8 * qb
def NEGM(qb): return 128 + 16 * qb
LSUM = 160
LB = 162
TMP = 172
MX = 180
VKD0, VKD1, VVD, VWD, VH = 182, 183, 184, 185, 186
RT = 188
PFD = 204
VPF = 208
def QA(db, qb): return 32 + 16 * (2 * db + qb)
def HF(c, ks, qb): return 32 * (c % 4) + 8 * ks + 4 * qb
def WF(st, db): return 192 + 16 * st + 4 * db

SK, SV, SW, SH, SO = 8, 12, 16, 20, 24
S_W, S_HEAD, S_QB, S_CNT, S_KOFF, S_VOFF, S_KSLOT, S_WB, S_WBV, S_THR, S_T0, S_T1 = 28, 29, 30, 31, 32, 33, 34, 35, 36, 37, 38, 39
S_RET = 40
S_H0, S_H1 = 42, 43
S_O0, S_O1, S_O2, S_O3 = 44, 45, 46, 47
S_VSLOT, S_PF = 56, 57
S_PW = 58
SPFS = [4, 48, 52, 60]

THRESH = 2.0 ** 80
BIAS = 96.0
QSCALE = (128 ** -0.5) * 1.4426950408889634
DK, DV = 5, 4
PREFETCH = True
USE_PK = False
TWOACC = False
ABL = set()

HC_LOC = [(hc // 2) * 16384 + (hc % 2) * 2048 for hc in range(16)]
KV_AT = {4: [0, 1], 5: [2], 6: [3], 7: [4]}
LMODE = 'valu'
ONES = 168
LM = 222

CV, CE, CD, CM, CS = 4, 8, 4, 16, 4

LACC = 164
def softmax_ops(p, first=False):
    ops = []
    if not first:
        for qb in range(2):
            ops.append((f'v_add_f32 v{LSUM+qb}, v{LSUM+qb}, v{LB+qb}', CV))
    prev = []
    qi = 0
    for qb in range(2):
        for i in range(8):
            sa, sb = S_(p, qb) + 2 * i, S_(p, qb) + 2 * i + 1
            ta, tb = TMP + 2 * (qi % 4), TMP + 2 * (qi % 4) + 1
            pa = TMP + 2 * ((qi - 1) % 4)
            ops.append((f'v_exp_f32 v{ta}, v{sa}', CE))
            ops += prev[:1]
            ops.append((f'v_exp_f32 v{tb}, v{sb}', CE))
            ops += prev[1:]
            prev = [(f'v_cvt_pk_bf16_f32 v{P_(p,qb)+i}, v{ta}, v{tb}', CV)]
            if USE_PK:
                ac = LACC + 2 * qb
                if i == 1:
                    prev.append((f'v_pk_add_f32 v[{ac}:{ac+1}], v[{pa}:{pa+1}], v[{ta}:{tb}]', CV))
                elif i > 1:
                    prev.append((f'v_pk_add_f32 v[{ac}:{ac+1}], v[{ac}:{ac+1}], v[{ta}:{tb}]', CV))
                if i == 7:
                    prev.append((f'v_add_f32 v{LB+qb}, v{ac}, v{ac+1}', CV))
            elif TWOACC:
                ac = LACC + 2 * qb
                if i == 0:
                    pass
                elif i == 1:
                    prev.append((f'v_add_f32 v{ac}, v{pa}, v{ta}', CV))
                    prev.append((f'v_add_f32 v{ac+1}, v{pa+1}, v{tb}', CV))
                else:
                    prev.append((f'v_add_f32 v{ac}, v{ac}, v{ta}', CV))
                    prev.append((f'v_add_f32 v{ac+1}, v{ac+1}, v{tb}', CV))
                if i == 7:
                    prev.append((f'v_add_f32 v{LB+qb}, v{ac}, v{ac+1}', CV))
            else:
                if i == 0:
                    prev.append((f'v_add_f32 v{LB+qb}, v{ta}, v{tb}', CV))
                else:
                    prev.append((f'v_add_f32 v{LB+qb}, v{LB+qb}, v{ta}', CV))
                    prev.append((f'v_add_f32 v{LB+qb}, v{LB+qb}, v{tb}', CV))
            qi += 1
    ops += prev
    ops.append((f'v_max_f32 v{RT}, v{LB}, v{LB+1}', CV))
    ops.append((f'v_cmp_nle_f32 vcc, v{RT}, v{MX}', CV))
    return ops


def pv_mfmas(p, czero=False):
    m = []
    for ks in range(2):
        for db in range(4):
            for qb in range(2):
                c = '0' if (czero and ks == 0) else a(O_(db, qb), 16)
                m.append((f'v_mfma_f32_32x32x16_bf16 {a(O_(db,qb),16)}, {a(VF(ks,db),4)}, {v(P_(p,qb)+4*ks,4)}, {c}', 24))
    return m

def qk_mfmas(p, czero=False):
    m = []
    for s_ in range(8):
        for qb in range(2):
            c = v(S_(p, qb), 16) if s_ else ('0' if czero else v(NEGM(qb), 16))
            m.append((f'v_mfma_f32_32x32x16_bf16 {v(S_(p,qb),16)}, {a(KF(s_),4)}, {a(Q_(qb,s_),4)}, {c}', 24))
    return m

def k_reads(slot):
    ops = []
    base = KAD if slot < 4 else KADH
    for s_ in range(8):
        ops.append((f'ds_read_b128 {a(KF(s_),4)}, v{base+s_} offset:{(slot%4)*16384}', CD))
    return ops

def v_reads(slot):
    ops = []
    base = VAD if slot < 4 else VADH
    for ks in range(2):
        for db in range(4):
            for aa in range(2):
                ops.append((f'ds_read_b64_tr_b16 {a(VF(ks,db)+2*aa,2)}, v{base+db} offset:{(slot%4)*16384 + (2*ks+aa)*4096}', CD))
    return ops

def dma_ops(slot, pf=()):
    ops = [
        (f's_add_u32 m0, s{S_WB}, {slot*16384}', 20),
        (f'buffer_load_dwordx4 v{VKD0}, s[{SK}:{SK+3}], s{S_KOFF} offen lds', CM),
        (f'buffer_load_dwordx4 v{VKD1}, s[{SK}:{SK+3}], s{S_KOFF} offen offset:1024 lds', CM),
        (f'buffer_load_dwordx4 v{VVD}, s[{SV}:{SV+3}], s{S_KOFF} offen offset:2048 lds', CM),
        (f'buffer_load_dwordx4 v{VVD}, s[{SV}:{SV+3}], s{S_KOFF} offen offset:3072 lds', CM),
        (f's_add_u32 s{S_KOFF}, s{S_KOFF}, 8192', CS),
    ]
    for (k, off) in pf:
        if k == 'wo':
            ops.append((f'buffer_load_dwordx4 v[{PFD}:{PFD+3}], v{VH}, s[{SPFS[0]}:{SPFS[0]+3}], s{S_PW + off // 4} offen offset:{(off%4)*1024}', CM))
            continue
        ops.append((f's_add_u32 s{S_T0}, s{S_PF}, {off}', CS))
        ops.append((f'buffer_load_dwordx4 v[{PFD}:{PFD+3}], v{VPF}, s[{SPFS[k]}:{SPFS[k]+3}], s{S_T0} offen', CM))
    return ops


def body(j, name, tag, do_pv=True, do_qk=True, dma=True, vm=12, pvzero=False, pf=(), first=False):
    p = j % 2
    mf = []
    if do_pv: mf += pv_mfmas(1 - p, pvzero)
    npv = len(mf)
    if do_qk: mf += qk_mfmas(1 - p)
    n = len(mf)
    pre = {}
    L = []
    queues = []
    bar = [f's_waitcnt vmcnt({vm})', 's_barrier']
    if do_pv:
        pre[0] = ['s_waitcnt lgkmcnt(0)']
        pre[1] = list(bar)
        kstart = 1
    else:
        L += bar
        kstart = 0
    if do_qk:
        if do_pv:
            queues.append(dict(items=k_reads((j + 1) % 8), start=kstart, end=min(kstart + 9, npv - 3)))
            pre.setdefault(npv, []).append('s_waitcnt lgkmcnt(0)')
        else:
            L += [t for t, _ in k_reads((j + 1) % 8)]
            pre.setdefault(0, []).append('s_waitcnt lgkmcnt(0)')
    if dma:
        queues.append(dict(items=dma_ops((j + DK) % 8, pf), start=(4 if do_pv else 2), end=(npv + 4 if do_pv else 13)))
    elif pf:
        queues.append(dict(items=dma_ops(0, pf)[6:], start=2, end=n - 4))
    vstart = npv if do_qk else npv - 1
    queues.append(dict(items=v_reads((j + 1) % 8), start=vstart, end=min(vstart + 11, n - 1)))
    queues.append(dict(items=softmax_ops(p, first), start=(3 if do_qk else 6) if do_pv else 2, end=n - 2))
    if tag.startswith('l'):
        for q in queues:
            if 'nok' in ABL: q['items'] = [x for x in q['items'] if not x[0].startswith('ds_read_b128')]
            if 'nov' in ABL: q['items'] = [x for x in q['items'] if not x[0].startswith('ds_read_b64')]
            if 'nodma' in ABL: q['items'] = [x for x in q['items'] if not x[0].startswith('buffer_load')]
            if 'nosalu' in ABL: q['items'] = [x for x in q['items'] if not x[0].startswith('s_')]
            if 'noadd' in ABL: q['items'] = [x for x in q['items'] if not x[0].startswith('v_add')]
            if 'nocvt' in ABL: q['items'] = [x for x in q['items'] if not x[0].startswith('v_cvt')]
        if 'nobar' in ABL: pre[1] = []
    L += interleave(mf, queues, pre)
    L.append(f's_cbranch_vccnz {name}_tr_{tag}')
    L.append(f'{name}_back_{tag}:')
    tramp = [f'{name}_tr_{tag}:', f's_call_b64 s[{S_RET}:{S_RET+1}], {name}_rare{p}', f's_branch {name}_back_{tag}']
    return L, tramp


def rowmax_delta(e, p, qb, clamp):
    t1, t2 = RT + 1, RT + 2
    e(f'v_max_f32 v{t1}, v{S_(p,qb)}, v{S_(p,qb)+1}')
    for i in range(1, 8):
        e(f'v_max3_f32 v{t1}, v{t1}, v{S_(p,qb)+2*i}, v{S_(p,qb)+2*i+1}')
    e(f'v_mov_b32 v{t2}, v{t1}')
    e('s_nop 1')
    e(f'v_permlane32_swap_b32 v{t1}, v{t2}')
    e(f'v_max_f32 v{t1}, v{t1}, v{t2}')
    e(f'v_ceil_f32 v{t1}, v{t1}')
    e(f'v_add_f32 v{t1}, 0x{f2u(BIAS):08x}, v{t1}')
    if clamp:
        e(f'v_max_f32 v{t1}, 0, v{t1}')
    return t1

def rare(name, p):
    L = [f'{name}_rare{p}:']
    e = L.append
    e('s_nop 15'); e('s_nop 15')
    for qb in range(2):
        d = rowmax_delta(e, p, qb, True)
        f = RT + 3
        e(f'v_cvt_i32_f32 v{f}, v{d}')
        e(f'v_sub_u32 v{f}, 0, v{f}')
        e(f'v_ldexp_f32 v{f}, 1.0, v{f}')
        e(f'v_sub_f32 v{NEGM(qb)}, v{NEGM(qb)}, v{d}')
        for i in range(1, 16):
            e(f'v_mov_b32 v{NEGM(qb)+i}, v{NEGM(qb)}')
        for pp in range(2):
            for i in range(16):
                e(f'v_sub_f32 v{S_(pp,qb)+i}, v{S_(pp,qb)+i}, v{d}')
        e(f'v_mov_b32 v{LB+qb}, 0')
        for i in range(8):
            e(f'v_exp_f32 v{RT+4}, v{S_(p,qb)+2*i}')
            e(f'v_exp_f32 v{RT+5}, v{S_(p,qb)+2*i+1}')
            e('s_nop 0')
            e(f'v_cvt_pk_bf16_f32 v{P_(p,qb)+i}, v{RT+4}, v{RT+5}')
            e(f'v_add_f32 v{LB+qb}, v{LB+qb}, v{RT+4}')
            e(f'v_add_f32 v{LB+qb}, v{LB+qb}, v{RT+5}')
        e(f'v_mul_f32 v{LSUM+qb}, v{LSUM+qb}, v{f}')
        for db in range(4):
            for i in range(0, 16, 4):
                for k in range(4):
                    e(f'v_accvgpr_read_b32 v{RT+4+k}, a{O_(db,qb)+i+k}')
                for k in range(4):
                    e(f'v_mul_f32 v{RT+4+k}, v{RT+4+k}, v{f}')
                for k in range(4):
                    e(f'v_accvgpr_write_b32 a{O_(db,qb)+i+k}, v{RT+4+k}')
    e('s_nop 1')
    e(f's_setpc_b64 s[{S_RET}:{S_RET+1}]')
    return L


def gen_attn(name='attn_kernel', prof=False):
    L = kernel_header(name)
    e = L.append
    vq = Q(63)
    prof_begin(L)
    dstamp(L, 2, 0)
    claim(L, name, 131072, vb=232)
    e(f's_load_dwordx2 s[52:53], s[0:1], {KA["wq"]}')
    e(f's_load_dwordx2 s[54:55], s[0:1], {KA["ws"]}')
    e(f's_load_dwordx4 s[48:51], s[0:1], {KA["k"]}')
    if PREFETCH:
        e(f's_load_dwordx2 s[80:81], s[0:1], {KA["wo"]}')
        e(f's_load_dwordx4 s[84:87], s[0:1], {KA["wg"]}')
        e(f's_load_dwordx2 s[82:83], s[0:1], {KA["wd"]}')
    e('v_lshrrev_b32 v1, 6, v0')
    e('v_and_b32 v2, 63, v0')
    e(f'v_readfirstlane_b32 s{S_W}, v1')
    e(f's_bfe_u32 s{S_T0}, s2, 0x20001')
    e(f's_lshr_b32 s{S_T1}, s2, 3')
    e(f's_lshl_b32 s{S_HEAD}, s{S_T0}, 3')
    e(f's_and_b32 s{S_T0}, s{S_T1}, 7')
    e(f's_add_u32 s{S_HEAD}, s{S_HEAD}, s{S_T0}')
    e(f's_lshr_b32 s{S_QB}, s{S_T1}, 3')
    e(f's_and_b32 s{S_T0}, s2, 1')
    e(f's_lshl_b32 s{S_T0}, s{S_T0}, 2')
    e(f's_add_u32 s{S_QB}, s{S_QB}, s{S_T0}')
    e(f's_lshl_b32 s{S_WB}, s{S_W}, 12')
    e('v_lshrrev_b32 v3, 4, v2')
    e('v_and_b32 v4, 15, v2')
    e(f'v_lshlrev_b32 v{VH}, 4, v2')
    e(f's_lshl_b32 s{S_T0}, s{S_W}, 3')
    e(f'v_add_u32 v10, s{S_T0}, v3')
    e('v_lshlrev_b32 v11, 2, v3')
    e('v_xor_b32 v11, v11, v4')
    e('v_lshlrev_b32 v12, 13, v10')
    e(f'v_lshl_add_u32 v{VWD}, v11, 4, v12')
    e(f's_lshl_b32 s{S_T0}, s{S_HEAD}, 8')
    e(f'v_add_u32 v{VWD}, s{S_T0}, v{VWD}')
    e(f's_lshl_b32 s{S_T0}, s{S_QB}, 3')
    e(f's_lshl_b32 s{S_T1}, s{S_W}, 1')
    e(f's_add_u32 s{S_O0}, s{S_T0}, s{S_T1}')
    e(f's_lshl_b32 s{S_H0}, s{S_O0}, 15')
    e(f's_add_u32 s{S_H1}, s{S_H0}, 32768')
    e('s_waitcnt lgkmcnt(0)')
    srd(L, SW, 52, 512 * 8192)
    srd_off(L, SH, 54, H1_OFF, 2048 * 1024)

    def ops_D(c):
        ops = []
        for hcl in range(2):
            hc = 2 * c + hcl
            for i in range(2):
                ops.append((f's_add_u32 m0, s{S_WB}, {HC_LOC[hc] + i*1024}', CS))
                ops.append((f's_mov_b32 s{S_T0}, {(32*hc + 4*i)*8192}', CS))
                ops.append((f'buffer_load_dwordx4 v{VWD}, s[{SW}:{SW+3}], s{S_T0} offen lds', CM, ('D', c)))
        return ops
    def ops_H(c):
        ops = []
        for ks in range(4):
            for qb in range(2):
                ops.append((f'buffer_load_dwordx4 {a(HF(c,ks,qb),4)}, v{VH}, s[{SH}:{SH+3}], s{S_H0+qb} offen offset:{ks*1024}', CM, ('H', c, ks)))
        ops.append((f's_add_u32 s{S_H0}, s{S_H0}, 4096', CS))
        ops.append((f's_add_u32 s{S_H1}, s{S_H1}, 4096', CS))
        return ops
    def ops_KV(t):
        ops = [(f's_add_u32 m0, s{S_WB}, {t*16384}', CS), (f's_mov_b32 s{S_T0}, {t*8192}', CS)]
        ops.append((f'buffer_load_dwordx4 v{VKD0}, s[{SK}:{SK+3}], s{S_T0} offen lds', CM, ('SL', t)))
        ops.append((f'buffer_load_dwordx4 v{VKD1}, s[{SK}:{SK+3}], s{S_T0} offen offset:1024 lds', CM, ('SL', t)))
        if t > 0:
            ops.append((f'buffer_load_dwordx4 v{VVD}, s[{SV}:{SV+3}], s{S_T0} offen offset:2048 lds', CM, ('SL', t)))
            ops.append((f'buffer_load_dwordx4 v{VVD}, s[{SV}:{SV+3}], s{S_T0} offen offset:3072 lds', CM, ('SL', t)))
        return ops
    def emit_ops(ops):
        for o in ops:
            e(o[0])
            if len(o) > 2: vq.issue(o[2])
    def w_reads(kstep):
        hc = kstep // 2
        loc = HC_LOC[hc] + (kstep % 2) * 8192
        base = WAD if loc < 65536 else WAD2
        loc &= 0xffff
        st = kstep % 2
        ops = []
        for db in range(4):
            for aa in range(2):
                ops.append((f'ds_read_b64_tr_b16 {a(WF(st,db)+2*aa,2)}, v{base+db} offset:{loc + aa*1024}', CD))
        return ops

    emit_ops(ops_D(0)); emit_ops(ops_H(0)); emit_ops(ops_D(1))
    dstamp(L, 2, 1)
    e('v_lshrrev_b32 v5, 5, v2')
    e('v_and_b32 v6, 31, v2')
    e('v_and_b32 v7, 1, v3')
    e('v_lshrrev_b32 v8, 2, v4')
    e('v_and_b32 v9, 3, v2')
    e('v_lshlrev_b32 v12, 8, v10')
    e(f'v_lshl_add_u32 v{VVD}, v11, 4, v12')
    e('v_and_b32 v11, 15, v10')
    e('v_xor_b32 v11, v11, v4')
    e(f'v_lshl_add_u32 v{VKD0}, v11, 4, v12')
    e('v_add_u32 v11, 4, v10')
    e('v_and_b32 v11, 15, v11')
    e('v_xor_b32 v11, v11, v4')
    e(f'v_lshl_add_u32 v{VKD1}, v11, 4, v12')
    e('v_and_b32 v10, 15, v6')
    e('v_lshrrev_b32 v12, 3, v6')
    e('v_lshlrev_b32 v12, 12, v12')
    e('v_and_b32 v13, 7, v6')
    e('v_lshl_add_u32 v12, v13, 8, v12')
    for s_ in range(8):
        e(f'v_add_u32 v11, {2*s_}, v5')
        e('v_xor_b32 v11, v11, v10')
        e(f'v_lshl_add_u32 v{KAD+s_}, v11, 4, v12')
        e(f'v_add_u32 v{KADH+s_}, 0x10000, v{KAD+s_}')
    e('v_lshl_add_u32 v10, v5, 2, v8')
    e('v_lshlrev_b32 v10, 8, v10')
    e('v_lshl_add_u32 v10, v7, 5, v10')
    e('v_lshl_add_u32 v13, v9, 3, v10')
    e('v_add_u32 v13, 2048, v13')
    for db in range(4):
        e(f'v_xor_b32 v11, {db}, v8')
        e(f'v_lshl_add_u32 v{VAD+db}, v11, 6, v13')
        e(f'v_add_u32 v{VADH+db}, 0x10000, v{VAD+db}')
    e('v_lshlrev_b32 v10, 12, v5')
    e('v_lshl_add_u32 v10, v8, 8, v10')
    e('v_lshl_add_u32 v10, v7, 5, v10')
    e('v_and_b32 v11, 1, v9')
    e('v_lshlrev_b32 v11, 1, v11')
    e('v_lshrrev_b32 v12, 1, v9')
    e('v_or_b32 v11, v11, v12')
    e('v_lshl_add_u32 v13, v11, 3, v10')
    for db in range(4):
        e(f'v_xor_b32 v11, {db}, v8')
        e(f'v_lshl_add_u32 v{WAD+db}, v11, 6, v13')
        e(f'v_add_u32 v{WAD2+db}, 0x10000, v{WAD+db}')
    e(f'v_mov_b32 v{MX}, 0x{f2u(THRESH):08x}')
    e(f'v_mov_b32 v{LSUM}, 0')
    e(f'v_mov_b32 v{LSUM+1}, 0')
    e(f's_lshl_b32 s{S_T0}, s{S_HEAD}, 19')
    srd_off(L, SK, 48, f's{S_T0}', 524288)
    e(f's_sub_u32 s50, s50, 10240')
    e(f's_subb_u32 s51, s51, 0')
    srd_off(L, SV, 50, f's{S_T0}', 524288 + 10240)
    srd_off(L, SO, 54, O_OFF, 2048 * 8192)
    e(f's_lshl_b32 s{S_O0}, s{S_O0}, 18')
    e(f's_lshl_b32 s{S_T1}, s{S_HEAD}, 13')
    e(f's_add_u32 s{S_O0}, s{S_O0}, s{S_T1}')
    e(f's_add_u32 s{S_O1}, s{S_O0}, 4096')
    e(f's_add_u32 s{S_O2}, s{S_O0}, {1<<18}')
    e(f's_add_u32 s{S_O3}, s{S_O2}, 4096')
    if PREFETCH:
        srd(L, SPFS[0], 80, 4096 * 1024)
        srd(L, SPFS[1], 84, 512 * 3584)
        srd(L, SPFS[2], 86, 512 * 3584)
        srd(L, SPFS[3], 82, 1792 * 1024)
        e(f's_lshl_b32 s{S_PF}, s2, 12')
        e(f's_bfe_u32 s{S_T0}, s2, 0x20001')
        e(f's_lshl_b32 s{S_T0}, s{S_T0}, 20')
        e(f's_lshr_b32 s{S_T1}, s2, 3')
        e(f's_lshl_b32 s{S_T1}, s{S_T1}, 15')
        e(f's_add_u32 s{S_T0}, s{S_T0}, s{S_T1}')
        e(f's_lshl_b32 s{S_T1}, s{S_W}, 13')
        e(f's_add_u32 s{S_PW}, s{S_T0}, s{S_T1}')
        e(f's_add_u32 s{S_PW+1}, s{S_PW}, 4096')
        e(f'v_lshlrev_b32 v{VPF}, 4, v0')
    n = vq.wait_for(lambda t: t == ('D', 0))
    e(f's_waitcnt vmcnt({n})')
    e('s_barrier')
    dstamp(L, 2, 2)
    L += [t for t, _ in w_reads(0)]
    plan = {0: ops_H(1) + ops_D(2) + ops_H(2)}
    for c in range(1, 6):
        plan[c] = ops_D(c + 2) + ops_H(c + 2)
    plan[6] = []; plan[7] = []
    def conv_ops(db):
        ops = []
        for qb in range(2):
            for sp in range(2):
                for i in range(4):
                    r = QA(db, qb) + 8 * sp + 2 * i
                    ops.append((f'v_mul_f32 v{r}, s{S_T1}, v{r}', CV))
                    ops.append((f'v_mul_f32 v{r+1}, s{S_T1}, v{r+1}', CV))
                for i in range(4):
                    r = QA(db, qb) + 8 * sp + 2 * i
                    ops.append((f'v_cvt_pk_bf16_f32 v{TMP+4*(sp%2)+i}, v{r}, v{r+1}', CV))
                for i in range(4):
                    ops.append((f'v_accvgpr_write_b32 a{Q_(qb, 2*db+sp)+i}, v{TMP+4*(sp%2)+i}', CV))
        return ops
    for c in range(8):
        vops = list(plan[c])
        nv = len(vops)
        for ks in range(4):
            kstep = 4 * c + ks
            st = kstep % 2
            n = vq.wait_for(lambda t: t == ('H', c, ks))
            if n is not None: e(f's_waitcnt vmcnt({n})')
            e('s_waitcnt lgkmcnt(0)')
            part = []
            if ks < 3:
                k0 = nv * ks // 3; k1 = nv * (ks + 1) // 3
                part = vops[k0:k1]
            else:
                if c < 7:
                    n = vq.wait_for(lambda t: t == ('D', c + 1))
                else:
                    n = vq.wait_for(lambda t: t in (('SL', 0),))
                if n is not None:
                    e(f's_waitcnt vmcnt({n})')
                e('s_barrier')
                for t in KV_AT.get(c, []):
                    part += ops_KV(t)
            mf = []
            for db in range(4):
                for qb in range(2):
                    cc = '0' if kstep == 0 else v(QA(db, qb), 16)
                    mf.append((f'v_mfma_f32_32x32x16_bf16 {v(QA(db,qb),16)}, {a(WF(st,db),4)}, {a(HF(c,ks,qb),4)}, {cc}', 24))
            qs = []
            if kstep < 31:
                qs.append(dict(items=w_reads(kstep + 1), start=0, end=5))
            else:
                pass
            if part:
                qs.append(dict(items=[(o[0], o[1]) for o in part], start=0, end=7))
            L += interleave(mf, qs)
            for o in part:
                if len(o) > 2: vq.issue(o[2])
    dstamp(L, 2, 3)
    L += [t for t, _ in k_reads(0)]
    e(f's_mov_b32 s{S_T1}, 0x{f2u(QSCALE):08x}')
    e('s_nop 4')
    L += [t for t, _ in conv_ops(0)]
    e('s_waitcnt lgkmcnt(0)')
    qk0 = qk_mfmas(0, czero=True)
    for db in range(1, 4):
        L += interleave(qk0[4*(db-1):4*db], [dict(items=conv_ops(db), start=0, end=3)])
    e('s_nop 1')
    L += [t for t, _ in qk0[12:]]
    e('s_nop 15')
    for qb in range(2):
        d = rowmax_delta(e, 0, qb, False)
        e(f'v_sub_f32 v{NEGM(qb)}, 0, v{d}')
        for i in range(1, 16):
            e(f'v_mov_b32 v{NEGM(qb)+i}, v{NEGM(qb)}')
        for i in range(16):
            e(f'v_sub_f32 v{S_(0,qb)+i}, v{S_(0,qb)+i}, v{d}')
    e(f's_mov_b32 s{S_KOFF}, {DK*8192}')
    dstamp(L, 2, 4)
    tramps = []
    pfl = [(0, i << 20) for i in range(4)] + [(k, i << 20) for k in (1, 2, 3) for i in range(2)] if PREFETCH else []
    def mk(j, tag, **kw):
        need = (lambda t: t == ('SL', j + 1))
        nn = vq.wait_for(need)
        if nn is None: nn = 63
        if 'vmmax' in kw: nn = min(nn, kw.pop('vmmax'))
        b, t = body(j, name, tag, vm=nn, **kw)
        if kw.get('dma', True):
            for _ in range(4): vq.issue(('SL', j + DK))
        for _ in kw.get('pf', ()): vq.issue(('pf', j))
        return b, t
    b0, t0 = mk(0, 'p0', do_pv=False, first=True)
    L += b0; tramps += t0
    b1, t1 = mk(1, 'p1', pvzero=True)
    L += b1; tramps += t1
    e(f's_mov_b32 s{S_CNT}, 7')
    e(f'{name}_loop:')
    loop = []
    for u in range(8):
        b, t = mk(2 + u, f'l{u}', vmmax=12)
        loop += b; tramps += t
    L += loop
    e(f's_sub_u32 s{S_CNT}, s{S_CNT}, 1')
    e(f's_cmp_lg_u32 s{S_CNT}, 0')
    e(f's_cbranch_scc1 {name}_loop')
    tail = []
    vq.items = [('SL', t) for t in range(59, 63) for _ in range(4)]
    for j in range(58, 64):
        pf = ()
        if PREFETCH and j == 60: pf = [('wo', i) for i in range(8)]
        if PREFETCH and j == 61: pf = pfl[4:]
        b, t = mk(j, f't{j}', dma=(j + DK <= 64), do_qk=(j < 63), pf=pf)
        tail += b; tramps += t
    L += tail
    dstamp(L, 2, 5)
    ep = []
    for qb in range(2):
        ep.append(f'v_add_f32 v{LSUM+qb}, v{LSUM+qb}, v{LB+qb}')
        ep.append(f'v_mov_b32 v{RT+2+qb}, v{LSUM+qb}')
    ep.append('s_nop 1')
    for qb in range(2):
        ep.append(f'v_permlane32_swap_b32 v{LSUM+qb}, v{RT+2+qb}')
    for qb in range(2):
        ep.append(f'v_add_f32 v{LSUM+qb}, v{LSUM+qb}, v{RT+2+qb}')
    for qb in range(2):
        ep.append(f'v_rcp_f32 v{RT+qb}, v{LSUM+qb}')
    ep.append('s_waitcnt lgkmcnt(0)')
    def norm_ops(db, qb, k):
        ops = []
        for sp in range(2):
            base = 32 + 8 * ((2 * k + sp) % 8)
            pk = 128 + 4 * ((2 * k + sp) % 8)
            for i in range(8):
                ops.append((f'v_accvgpr_read_b32 v{base+i}, a{O_(db,qb)+8*sp+i}', CV))
            for i in range(8):
                ops.append((f'v_mul_f32 v{base+i}, v{base+i}, v{RT+qb}', CV))
            for i in range(4):
                ops.append((f'v_cvt_pk_bf16_f32 v{pk+i}, v{base+2*i}, v{base+2*i+1}', CV))
            t = 2 * db + sp
            so = S_O0 + 2 * qb + (1 if t >= 4 else 0)
            ops.append((f'buffer_store_dwordx4 {v(pk,4)}, v{VH}, s[{SO}:{SO+3}], s{so} offen offset:{(t%4)*1024}', CM))
        return ops
    pv = pv_mfmas(1)
    ep += [t for t, _ in pv[:12]]
    ep += interleave(pv[12:], [dict(items=[('s_nop 7', 4)] + norm_ops(0, 0, 0), start=0, end=3)])
    k = 1
    for db in range(4):
        for qb in range(2):
            if (db, qb) == (0, 0): continue
            if db == 3 and qb == 0: ep.append('s_nop 0')
            ep += [t for t, _ in norm_ops(db, qb, k)]
            k += 1
    L += ep
    dstamp(L, 2, 6)
    dstamp_store(L, 2, 7)
    prof_end(L, 2, 1)
    e(f'{name}_done:')
    e('s_endpgm')
    L += tramps
    L += rare(name, 0) + rare(name, 1)
    L = hoist(L)
    pro_end = L.index(f'{name}_loop:')
    trace = L[:pro_end] + loop + loop + tail + ep
    hz = check_hazards(trace, name)
    hz += check_hazards(loop[-30:] + rare(name, 0) + loop[:30], name + '_rare0')
    hz += check_hazards(loop[-30:] + rare(name, 1) + loop[:30], name + '_rare1')
    for h in hz: print('HAZARD', h)
    return L, kernel_desc(name, 512, 102, 256), f'; @launch kernel={name} grid=(256,1,1) block=(256,1,1) lds=131328'
```

```python
from asmlib import *
import asmlib
from k_small import *
from k_attn import interleave

FFN_LIM = [6, 6]
SPK = [2, 10]
def gen_splitk(name, shape, K, w_ka, b_off, b_bytes, res, gmod_off, dst):
    NS = K // 4 // 32
    D = 6
    L = kernel_header(name)
    e = L.append
    vq = Q(63)
    SWT, SB, SR, SM, SD = 8, 12, 16, 20, 24
    S_W, S_MT, S_NT, S_T0, S_T1, S_LB = 28, 29, 30, 31, 32, 33
    S_B = 34
    S_WO = 38
    VWD, VH, VAD = 10, 11, 12
    ACC = 32
    def BF(t, i): return 16 * (t % 8) + 4 * i
    def AF(st, i): return 128 + 16 * st + 4 * i
    prof_begin(L)
    KI = 3 if shape == 32 else 6
    dstamp(L, KI, 0)
    e('s_cmp_ge_u32 s2, 256')
    e(f's_cbranch_scc1 {name}_done')
    e(f's_load_dwordx2 s[48:49], s[0:1], {w_ka}')
    e(f's_load_dwordx2 s[50:51], s[0:1], {KA["ws"]}')
    if res[0] == 'in':
        e(f's_load_dwordx2 s[52:53], s[0:1], {res[1]}')
    if dst[0] == 'out':
        e(f's_load_dwordx2 s[54:55], s[0:1], {KA["out"]}')
    e('v_lshrrev_b32 v1, 6, v0')
    e('v_and_b32 v2, 63, v0')
    e(f'v_readfirstlane_b32 s{S_W}, v1')
    e(f's_and_b32 s{S_T0}, s2, 1')
    e(f's_lshl_b32 s{S_MT}, s{S_T0}, 4')
    e(f's_bfe_u32 s{S_T0}, s2, 0x10002')
    e(f's_lshl_b32 s{S_T0}, s{S_T0}, 3')
    e(f's_add_u32 s{S_MT}, s{S_MT}, s{S_T0}')
    e(f's_lshr_b32 s{S_T1}, s2, 3')
    e(f's_and_b32 s{S_T0}, s{S_T1}, 7')
    e(f's_add_u32 s{S_MT}, s{S_MT}, s{S_T0}')
    e(f's_lshr_b32 s{S_NT}, s{S_T1}, 3')
    e(f's_bfe_u32 s{S_T0}, s2, 0x10001')
    e(f's_lshl_b32 s{S_T0}, s{S_T0}, 2')
    e(f's_add_u32 s{S_NT}, s{S_NT}, s{S_T0}')
    e(f's_lshl_b32 s{S_LB}, s{S_W}, 15')
    e('v_lshrrev_b32 v3, 3, v2')
    e('v_and_b32 v4, 7, v2')
    e('v_lshrrev_b32 v5, 1, v3')
    if shape == 32:
        e('v_and_b32 v5, 1, v5'); e('v_lshlrev_b32 v5, 2, v5')
    else:
        e('v_and_b32 v5, 3, v5'); e('v_lshlrev_b32 v5, 1, v5')
    e('v_xor_b32 v4, v4, v5')
    e('v_lshlrev_b32 v3, 10, v3')
    e(f'v_lshl_add_u32 v{VWD}, v4, 4, v3')
    e(f's_lshl_b32 s{S_T0}, s{S_NT}, 7')
    e(f'v_add_u32 v{VWD}, s{S_T0}, v{VWD}')
    e(f'v_lshlrev_b32 v{VH}, 4, v2')
    e(f's_mul_i32 s{S_WO}, s{S_W}, {K//4*1024}')
    if shape == 32:
        nrb = 2; fr_per_blk = K // 16; per_slot = 2
    else:
        nrb = 4; fr_per_blk = K // 32; per_slot = 1
    e(f's_mul_i32 s{S_T0}, s{S_MT}, {nrb*fr_per_blk*1024}')
    e(f's_mul_i32 s{S_T1}, s{S_W}, {fr_per_blk//4*1024}')
    e(f's_add_u32 s{S_B}, s{S_T0}, s{S_T1}')
    for rb in range(1, nrb):
        e(f's_add_u32 s{S_B+rb}, s{S_B+rb-1}, {fr_per_blk*1024}')
    e('v_lshrrev_b32 v3, 4, v2')
    e('v_and_b32 v4, 15, v2')
    e('v_lshrrev_b32 v5, 2, v4')
    e('v_and_b32 v6, 3, v2')
    if shape == 32:
        e('v_lshrrev_b32 v7, 1, v3')
        e('v_and_b32 v8, 1, v3')
        e('v_lshl_add_u32 v7, v7, 2, v5')
        e('v_lshlrev_b32 v7, 7, v7')
        e('v_lshl_add_u32 v7, v8, 5, v7')
        e('v_lshl_add_u32 v7, v6, 3, v7')
        e(f'v_add_u32 v7, s{S_LB}, v7')
        e('v_lshrrev_b32 v8, 1, v5')
        for nb in range(2):
            e(f'v_xor_b32 v9, {nb}, v8')
            e(f'v_lshl_add_u32 v{VAD+nb}, v9, 6, v7')
    else:
        e('v_lshl_add_u32 v7, v3, 2, v5')
        e('v_lshrrev_b32 v8, 1, v7')
        e('v_and_b32 v8, 3, v8')
        e('v_lshlrev_b32 v7, 7, v7')
        e('v_lshl_add_u32 v7, v6, 3, v7')
        e(f'v_add_u32 v7, s{S_LB}, v7')
        for nt in range(4):
            e(f'v_xor_b32 v9, {nt}, v8')
            e(f'v_lshl_add_u32 v{VAD+nt}, v9, 5, v7')
    e('s_waitcnt lgkmcnt(0)')
    srd(L, SWT, 48, K * 1024)
    srd_off(L, SB, 50, b_off, b_bytes)
    if res[0] == 'in': srd(L, SR, 52, 2048 * 1024)
    else: srd_off(L, SR, 50, res[1], 2048 * 1024)
    srd_off(L, SM, 50, MOD_OFF + gmod_off, 1024)
    if dst[0] == 'out': srd(L, SD, 54, 2048 * 1024)
    else: srd_off(L, SD, 50, dst[1], 2048 * 1024)

    def issue(t):
        ops = []
        for i in range(4):
            ops.append((f's_add_u32 m0, s{S_LB}, {(t%8)*4096 + i*1024}', 2))
            ops.append((f's_add_u32 s{S_T0}, s{S_WO}, {(32*t + 8*i)*1024}', 2))
            ops.append((f'buffer_load_dwordx4 v{VWD}, s[{SWT}:{SWT+3}], s{S_T0} offen lds', 8, ('W', t)))
        for i in range(4):
            if shape == 32:
                ks, rb = i // 2, i % 2
                off = (2 * t + ks) * 1024
            else:
                rb = i; off = t * 1024
            ops.append((f's_add_u32 s{S_T1}, s{S_B+rb}, {off}', 2))
            ops.append((f'buffer_load_dwordx4 {a(BF(t,i),4)}, v{VH}, s[{SB}:{SB+3}], s{S_T1} offen', 8, ('B', t)))
        return ops
    def emit_ops(ops):
        for o in ops:
            e(o[0])
            if len(o) > 2: vq.issue(o[2])
    def a_reads(t):
        ops = []
        st = t % 2
        base = (t % 8) * 4096
        if shape == 32:
            for ks in range(2):
                for nb in range(2):
                    for aa in range(2):
                        ops.append((f'ds_read_b64_tr_b16 {a(AF(st, 2*ks+nb)+2*aa,2)}, v{VAD+nb} offset:{base + (16*ks+8*aa)*128}', 4))
        else:
            for nt in range(4):
                for aa in range(2):
                    ops.append((f'ds_read_b64_tr_b16 {a(AF(st, nt)+2*aa,2)}, v{VAD+nt} offset:{base + 16*aa*128}', 4))
        return ops
    def mfmas(t):
        st = t % 2
        m = []
        if shape == 32:
            for ks in range(2):
                for nb in range(2):
                    for rb in range(2):
                        acc = ACC + 16 * (2 * nb + rb)
                        c = '0' if (t == 0 and ks == 0) else v(acc, 16)
                        m.append((f'v_mfma_f32_32x32x16_bf16 {v(acc,16)}, {a(AF(st,2*ks+nb),4)}, {a(BF(t,2*ks+rb),4)}, {c}', 24))
        else:
            for nt in range(4):
                for rb in range(4):
                    acc = ACC + 4 * (4 * nt + rb)
                    c = '0' if t == 0 else v(acc, 4)
                    m.append((f'v_mfma_f32_16x16x32_bf16 {v(acc,4)}, {a(AF(st,nt),4)}, {a(BF(t,rb),4)}, {c}', 8))
        return m
    dstamp(L, KI, 1)
    for t in range(SPK[0]):
        emit_ops(issue(t))
    pend = []
    nxt = SPK[0]
    dstamp(L, KI, 2)
    e('v_lshrrev_b32 v16, 2, v0')
    e('v_and_b32 v17, 3, v0')
    e('v_lshlrev_b32 v18, 5, v17')
    e(f's_lshl_b32 s{S_T0}, s{S_NT}, 7')
    e(f'v_add_u32 v18, s{S_T0}, v18')
    e('v_lshl_add_u32 v19, v16, 10, v18')
    n = vq.wait_for(lambda x: x == ('W', 0))
    e(f's_waitcnt vmcnt({n})')
    dstamp(L, KI, 3)
    L += [x[0] for x in a_reads(0)]
    for t in range(NS):
        if t == NS // 2: dstamp(L, KI, 4)
        n = vq.wait_for(lambda x: x == ('B', t) or x == ('W', t + 1))
        if n is not None: e(f's_waitcnt vmcnt({n})')
        e('s_waitcnt lgkmcnt(0)')
        qs = []
        mf = mfmas(t)
        if t + 1 < NS:
            qs.append(dict(items=a_reads(t + 1), start=0, end=len(mf) * 5 // 8))
        while nxt < NS and nxt <= t + D:
            pend += issue(nxt); nxt += 1
        iss = []; cnt = 0
        while pend and cnt < SPK[1]:
            o = pend.pop(0); iss.append(o)
            if len(o) > 2: cnt += 1
        if iss:
            qs.append(dict(items=[(o[0], o[1]) for o in iss], start=0, end=len(mf) - 1))
        L += interleave(mf, qs)
        for o in iss:
            if len(o) > 2: vq.issue(o[2])
    dstamp(L, KI, 5)
    e(f's_lshl_b32 s{S_T1}, s{S_MT}, 16')
    if res[0] == 'wsf':
        e('v_lshrrev_b32 v20, 4, v16')
        e('v_lshlrev_b32 v20, 14, v20')
        e('v_lshrrev_b32 v21, 1, v17')
        e('v_lshl_add_u32 v20, v21, 10, v20')
        e('v_and_b32 v21, 1, v17')
        e('v_lshl_add_u32 v20, v21, 9, v20')
        e('v_and_b32 v21, 15, v16')
        e('v_lshl_add_u32 v20, v21, 4, v20')
        e(f's_lshl_b32 s{S_T0}, s{S_NT}, 11')
        e(f's_add_u32 s{S_T0}, s{S_T0}, s{S_T1}')
        e(f'buffer_load_dwordx4 v[124:127], v20, s[{SR}:{SR+3}], s{S_T0} offen')
        e(f'buffer_load_dwordx4 v[96:99], v20, s[{SR}:{SR+3}], s{S_T0} offen offset:256')
    else:
        e(f'buffer_load_dwordx4 v[100:103], v19, s[{SR}:{SR+3}], s{S_T1} offen')
        e(f'buffer_load_dwordx4 v[104:107], v19, s[{SR}:{SR+3}], s{S_T1} offen offset:16')
    e(f'buffer_load_dwordx4 v[108:111], v18, s[{SM}:{SM+3}], 0 offen')
    e(f'buffer_load_dwordx4 v[112:115], v18, s[{SM}:{SM+3}], 0 offen offset:16')
    e('s_barrier')
    RS = 272
    if shape == 32:
        e('v_and_b32 v3, 31, v2')
        e('v_lshrrev_b32 v4, 5, v2')
        e(f'v_mul_u32_u24 v3, {RS}, v3')
        e('v_lshl_add_u32 v3, v4, 4, v3')
    else:
        e('v_and_b32 v3, 15, v2')
        e('v_lshrrev_b32 v4, 4, v2')
        e(f'v_mul_u32_u24 v3, {RS}, v3')
        e('v_lshl_add_u32 v3, v4, 4, v3')
    e(f's_mul_i32 s{S_T0}, s{S_W}, {64*RS}')
    e(f'v_add_u32 v3, s{S_T0}, v3')
    e('s_nop 7')
    if shape == 32:
        for nb in range(2):
            for rb in range(2):
                for g in range(4):
                    acc = ACC + 16 * (2 * nb + rb) + 4 * g
                    e(f'ds_write_b128 v3, {v(acc,4)} offset:{32*rb*RS + (32*nb + 8*g)*4}')
    else:
        for nt in range(4):
            for rb in range(4):
                acc = ACC + 4 * (4 * nt + rb)
                e(f'ds_write_b128 v3, {v(acc,4)} offset:{16*rb*RS + 16*nt*4}')
    e('s_waitcnt lgkmcnt(0)')
    e('s_barrier')
    e(f'v_mul_u32_u24 v3, {RS}, v16')
    e('v_lshl_add_u32 v3, v17, 6, v3')
    for w in range(4):
        for q in range(4):
            e(f'ds_read_b128 v[{32+16*w+4*q}:{35+16*w+4*q}], v3 offset:{w*64*RS + 16*q}')
    e('s_waitcnt lgkmcnt(0)')
    for i in range(16):
        e(f'v_add_f32 v{32+i}, v{32+i}, v{48+i}')
        e(f'v_add_f32 v{64+i}, v{64+i}, v{80+i}')
    for i in range(16):
        e(f'v_add_f32 v{32+i}, v{32+i}, v{64+i}')
    e('s_waitcnt vmcnt(0)')
    if res[0] == 'wsf':
        for d, srcr in ((100, 124), (101, 125), (102, 96), (103, 97), (104, 126), (105, 127), (106, 98), (107, 99)):
            e(f'v_mov_b32 v{d}, v{srcr}')
    for i in range(8):
        x0, x1 = 32 + 2 * i, 33 + 2 * i
        rnd_pair(e, x0, x1, x0, x1, 20)
        e(f'v_lshlrev_b32 v21, 16, v{108+i}')
        e(f'v_and_b32 v22, 0xffff0000, v{108+i}')
        e(f'v_mul_f32 v{x0}, v{x0}, v21')
        e(f'v_mul_f32 v{x1}, v{x1}, v22')
        rnd_pair(e, x0, x1, x0, x1, 20)
        e(f'v_lshlrev_b32 v21, 16, v{100+i}')
        e(f'v_and_b32 v22, 0xffff0000, v{100+i}')
        e(f'v_add_f32 v{x0}, v{x0}, v21')
        e(f'v_add_f32 v{x1}, v{x1}, v22')
        e(f'v_cvt_pk_bf16_f32 v{116+i}, v{x0}, v{x1}')
    e(f'buffer_store_dwordx4 v[116:119], v19, s[{SD}:{SD+3}], s{S_T1} offen')
    e(f'buffer_store_dwordx4 v[120:123], v19, s[{SD}:{SD+3}], s{S_T1} offen offset:16')
    dstamp(L, KI, 6)
    dstamp_store(L, KI, 7)
    prof_end(L, 3 if shape == 32 else 6, 1)
    e(f'{name}_done:')
    e('s_endpgm')
    for h in check_hazards(L, name): print('HAZARD', h)
    return L, kernel_desc(name, 128 + 160, 102, 128), f'; @launch kernel={name} grid=(256,1,1) block=(256,1,1) lds=131072'


def gen_ffn1(name='ffn1_kernel'):
    L = kernel_header(name)
    e = L.append
    vq = Q(63)
    SG, SU, SB, SD = 8, 12, 16, 20
    S_W, S_MT, S_FT, S_T0, S_T1, S_WO, S_LW = 28, 29, 30, 31, 32, 33, 34
    S_SEL = 36
    S_B0, S_B1 = 40, 41
    VD = 10
    VH = 17
    VA = 18
    ACC = 32
    def acc(mat, ft, rb): return ACC + 4 * ((mat * 7 + ft) * 2 + rb)
    def BF(T, rb): return 8 * T + 4 * rb
    def AF(st, i): return 128 + 56 * st + 4 * i
    NCH = 8; RING = 4; CH = 28672
    prof_begin(L)
    dstamp(L, 5, 0)
    e('s_cmp_ge_u32 s2, 256')
    e(f's_cbranch_scc1 {name}_done')
    e(f's_load_dwordx4 s[48:51], s[0:1], {KA["wg"]}')
    e(f's_load_dwordx2 s[52:53], s[0:1], {KA["ws"]}')
    e('v_lshrrev_b32 v1, 6, v0')
    e('v_and_b32 v2, 63, v0')
    e(f'v_readfirstlane_b32 s{S_W}, v1')
    e(f's_and_b32 s{S_T0}, s2, 1')
    e(f's_lshr_b32 s{S_T1}, s2, 3')
    e(f's_lshl_b32 s{S_MT}, s{S_T0}, 3')
    e(f's_and_b32 s{S_T0}, s{S_T1}, 7')
    e(f's_add_u32 s{S_MT}, s{S_MT}, s{S_T0}')
    e(f's_lshr_b32 s{S_FT}, s{S_T1}, 3')
    e(f's_bfe_u32 s{S_T0}, s2, 0x20001')
    e(f's_lshl_b32 s{S_T0}, s{S_T0}, 2')
    e(f's_add_u32 s{S_FT}, s{S_FT}, s{S_T0}')
    e(f's_mul_i32 s{S_T0}, s{S_FT}, 224')
    e(f's_lshr_b32 s{S_T1}, s{S_W}, 1')
    e(f's_mul_i32 s{S_WO}, s{S_T1}, {32*3584}')
    e(f's_add_u32 s{S_T0}, s{S_T0}, s{S_WO}')
    e('s_mov_b32 s42, 0x12492493')
    e('s_movk_i32 s43, 3584')
    for i in range(7):
        e(f'v_add_u32 v3, {64*i}, v2')
        e('v_mul_hi_u32 v4, v3, s42')
        e('v_mul_u32_u24 v5, 14, v4')
        e('v_sub_u32 v5, v3, v5')
        e('v_mul_lo_u32 v4, v4, s43')
        e(f'v_lshl_add_u32 v{VD+i}, v5, 4, v4')
        e(f'v_add_u32 v{VD+i}, s{S_T0}, v{VD+i}')
    e(f's_and_b32 s{S_T0}, s{S_W}, 1')
    e(f's_mul_i32 s{S_LW}, s{S_T0}, 14336')
    e(f's_mul_i32 s{S_T1}, s{S_T1}, 7168')
    e(f's_add_u32 s{S_LW}, s{S_LW}, s{S_T1}')
    e(f'v_lshlrev_b32 v{VH}, 4, v2')
    e('v_lshrrev_b32 v3, 4, v2')
    e('v_and_b32 v4, 15, v2')
    e('v_lshrrev_b32 v4, 2, v4')
    e('v_and_b32 v5, 3, v2')
    e('v_lshrrev_b32 v6, 1, v3')
    e('v_lshl_add_u32 v6, v6, 4, v4')
    e('v_and_b32 v7, 1, v3')
    e('v_lshl_add_u32 v6, v7, 2, v6')
    e('v_mul_u32_u24 v6, 224, v6')
    e(f'v_lshl_add_u32 v{VA}, v5, 3, v6')
    e(f'v_add_u32 v{VA+1}, 0x{2*CH:x}, v{VA}')
    e(f's_lshl_b32 s{S_T0}, s{S_MT}, 3')
    e(f's_lshl_b32 s{S_T1}, s{S_W}, 1')
    e(f's_add_u32 s{S_T0}, s{S_T0}, s{S_T1}')
    e(f's_lshl_b32 s{S_B0}, s{S_T0}, 14')
    e(f's_add_u32 s{S_B1}, s{S_B0}, 16384')
    e('s_waitcnt lgkmcnt(0)')
    srd(L, SG, 48, 512 * 3584)
    srd(L, SU, 50, 512 * 3584)
    srd_off(L, SB, 52, H2_OFF, 2048 * 1024)
    srd_off(L, SD, 52, ACT_OFF, 2048 * 3584)
    e(f's_and_b32 s{S_T0}, s{S_W}, 1')
    e(f's_cmp_eq_u32 s{S_T0}, 0')
    e(f's_cselect_b32 s{S_SEL}, s{SG}, s{SU}')
    e(f's_cselect_b32 s{S_SEL+1}, s{SG+1}, s{SU+1}')
    e(f's_mov_b32 s{S_SEL+2}, {512*3584}')
    e(f's_mov_b32 s{S_SEL+3}, 0x00020000')
    def issue_W(c):
        ops = []
        for i in range(7):
            ops.append((f's_add_u32 m0, s{S_LW}, {(c%RING)*CH + i*1024}', 2))
            if i == 0:
                ops.append((f's_mov_b32 s56, {64*c*3584}', 2))
            else:
                ops.append(('s_nop 0', 2))
            ops.append((f'buffer_load_dwordx4 v{VD+i}, s[{S_SEL}:{S_SEL+3}], s56 offen lds', 8, ('W', c)))
        return ops
    def issue_B(c):
        ops = []
        for ks in range(2):
            T = 2 * c + ks
            for rb in range(2):
                so = S_B0 + rb
                ops.append((f's_add_u32 s{S_T1}, s{so}, {T*1024}', 2))
                ops.append((f'buffer_load_dwordx4 {a(BF(T,rb),4)}, v{VH}, s[{SB}:{SB+3}], s{S_T1} offen', 8, ('B', c)))
        return ops
    def emit_ops(ops):
        for o in ops:
            e(o[0])
            if len(o) > 2: vq.issue(o[2])
    def a_reads(T):
        c = T // 2; ks = T % 2; st = T % 2
        slot = c % RING
        base = slot * CH; va = VA
        if slot >= 2: base -= 2 * CH; va = VA + 1
        ops = []
        for mat in range(2):
            for ft in range(7):
                for aa in range(2):
                    off = base + mat * 14336 + ks * 7168 + aa * 8 * 224 + ft * 32
                    ops.append((f'ds_read_b64_tr_b16 {a(AF(st, mat*7+ft)+2*aa,2)}, v{va} offset:{off}', 4))
        return ops
    def mfmas(T):
        st = T % 2
        m = []
        for ft in range(7):
            for mat in range(2):
                for rb in range(2):
                    ac = acc(mat, ft, rb)
                    cc = '0' if T == 0 else v(ac, 4)
                    m.append((f'v_mfma_f32_16x16x32_bf16 {v(ac,4)}, {a(AF(st,mat*7+ft),4)}, {a(BF(T,rb),4)}, {cc}', 8))
        return m
    dstamp(L, 5, 1)
    emit_ops(issue_W(0)); emit_ops(issue_B(0)); emit_ops(issue_W(1))
    dstamp(L, 5, 2)
    n = vq.wait_for(lambda x: x == ('W', 0))
    e(f's_waitcnt vmcnt({n})')
    e('s_barrier')
    dstamp(L, 5, 3)
    L += [x[0] for x in a_reads(0)]
    pend = issue_B(1) + issue_W(2) + issue_B(2) + issue_W(3) + issue_B(3)
    for T in range(16):
        if T == 8: dstamp(L, 5, 4)
        c = T // 2
        if T % 2 == 0:
            n = vq.wait_for(lambda x: x == ('B', c))
            if n is not None: e(f's_waitcnt vmcnt({n})')
        e('s_waitcnt lgkmcnt(0)')
        if T % 2 == 1 and c + 1 < NCH:
            n = vq.wait_for(lambda x: x == ('W', c + 1))
            if n is not None: e(f's_waitcnt vmcnt({n})')
            e('s_barrier')
            if c + 4 < NCH:
                pend += issue_W(c + 4) + issue_B(c + 4)
        take = []; cnt = 0
        lim = FFN_LIM[0] if T < 4 else FFN_LIM[1]
        while pend and cnt < lim:
            o = pend.pop(0); take.append(o)
            if len(o) > 2: cnt += 1
        mf = mfmas(T)
        qs = []
        if T + 1 < 16:
            qs.append(dict(items=a_reads(T + 1), start=0, end=22))
        if take:
            qs.append(dict(items=[(o[0], o[1]) for o in take], start=0, end=27))
        L += interleave(mf, qs)
        for o in take:
            if len(o) > 2: vq.issue(o[2])
    assert not pend
    dstamp(L, 5, 5)
    e(f's_load_dwordx2 s[58:59], s[0:1], {KA["wd"]}')
    e('v_lshrrev_b32 v3, 5, v2')
    e('v_and_b32 v4, 31, v2')
    e('v_lshlrev_b32 v4, 4, v4')
    e('v_lshl_add_u32 v3, v3, 10, v4')
    e(f's_lshr_b32 s{S_T0}, s2, 3')
    e(f's_mul_i32 s{S_T0}, s{S_T0}, 56')
    e(f's_mul_i32 s{S_T1}, s{S_W}, 14')
    e(f's_add_u32 s{S_T0}, s{S_T0}, s{S_T1}')
    e(f's_lshl_b32 s{S_T0}, s{S_T0}, 10')
    e(f's_bfe_u32 s{S_T1}, s2, 0x10001')
    e(f's_lshl_b32 s{S_T1}, s{S_T1}, 9')
    e(f's_add_u32 s{S_T0}, s{S_T0}, s{S_T1}')
    e('s_waitcnt lgkmcnt(0)')
    srd(L, 60, 58, 1792 * 1024)
    for i in range(7):
        e(f'buffer_load_dwordx4 v[4:7], v3, s[60:63], s{S_T0} offen')
        e(f's_add_u32 s{S_T0}, s{S_T0}, 2048')
    e('s_nop 7')
    C1 = 0.7978845608028654; C2 = 0.044715
    import struct
    f2u = lambda x: struct.unpack('<I', struct.pack('<f', x))[0]
    e(f's_mov_b32 s44, 0x{f2u(-2*C1*1.4426950408889634):08x}')
    e(f's_mov_b32 s45, 0x{f2u(-2*C1*C2*1.4426950408889634):08x}')
    e(f's_lshl_b32 s{S_T0}, s{S_MT}, 3')
    e(f's_lshl_b32 s{S_T1}, s{S_W}, 1')
    e(f's_add_u32 s{S_T0}, s{S_T0}, s{S_T1}')
    e(f's_mul_i32 s{S_B0}, s{S_T0}, {56*1024}')
    e(f's_mul_i32 s{S_T1}, s{S_FT}, {7*512}')
    e(f's_and_b32 s46, s{S_FT}, 1')
    e(f's_lshl_b32 s47, s46, 9')
    e(f's_sub_u32 s{S_T1}, s{S_T1}, s47')
    e(f's_add_u32 s{S_B0}, s{S_B0}, s{S_T1}')
    e(f's_add_u32 s{S_B1}, s{S_B0}, {56*1024}')
    PK = 150
    e('v_mov_b32 v199, s44')
    for ft in range(7):
        for rb in range(2):
            g0 = acc(0, ft, rb); u0 = acc(1, ft, rb)
            t = 200 + 8 * ((ft * 2 + rb) % 2)
            for k in range(4):
                e(f'v_mul_f32 v{t+k}, v{g0+k}, v{g0+k}')
            for k in range(4):
                e(f'v_fma_f32 v{t+k}, s45, v{t+k}, v199')
            for k in range(4):
                e(f'v_mul_f32 v{t+k}, v{t+k}, v{g0+k}')
            for k in range(4):
                e(f'v_exp_f32 v{t+k}, v{t+k}')
            for k in range(4):
                e(f'v_mul_f32 v{g0+k}, v{g0+k}, v{u0+k}')
            for k in range(4):
                e(f'v_add_f32 v{t+k}, 1.0, v{t+k}')
            for k in range(4):
                e(f'v_rcp_f32 v{t+k}, v{t+k}')
            e('s_nop 0')
            for k in range(4):
                e(f'v_mul_f32 v{g0+k}, v{g0+k}, v{t+k}')
            r = PK + 2 * (rb * 7 + ft)
            e(f'v_cvt_pk_bf16_f32 v{r}, v{g0}, v{g0+1}')
            e(f'v_cvt_pk_bf16_f32 v{r+1}, v{g0+2}, v{g0+3}')
    dstamp(L, 5, 6)
    e('s_cmp_eq_u32 s46, 0')
    e(f's_cbranch_scc0 {name}_odd')
    for par in range(2):
        if par == 1:
            e(f'{name}_odd:')
        for rb in range(2):
            ft = 0
            while ft < 7:
                q = ft + par
                off = (q >> 1) * 1024 + (q & 1) * 8
                r = PK + 2 * (rb * 7 + ft)
                if q % 2 == 0 and ft + 1 < 7:
                    e(f'buffer_store_dwordx4 {v(r,4)}, v{VH}, s[{SD}:{SD+3}], s{S_B0+rb} offen offset:{off}')
                    ft += 2
                else:
                    e(f'buffer_store_dwordx2 {v(r,2)}, v{VH}, s[{SD}:{SD+3}], s{S_B0+rb} offen offset:{off}')
                    ft += 1
        if par == 0:
            e(f's_branch {name}_fin')
    e(f'{name}_fin:')
    dstamp_store(L, 5, 7)
    prof_end(L, 5, 1)
    e(f'{name}_done:')
    e('s_endpgm')
    for h in check_hazards(L, name): print('HAZARD', h)
    return L, kernel_desc(name, 256 + 240, 102, 256), f'; @launch kernel={name} grid=(256,1,1) block=(256,1,1) lds={RING*CH}'
```

```python
from asmlib import *
import asmlib
from k_small import *

SLEEP = 0
PF_LATE = True
SC = 'sc0 sc1'
def gen_pre(name='pre_kernel'):
    L = kernel_header(name)
    e = L.append
    prof_begin(L)
    if asmlib.STAMPK == 1:
        asmlib.STAMPI = 's_memrealtime'; asmlib.STAMPB = 80
        for i in range(1, 6): e(f's_mov_b32 s{80+2*i}, 0')
    dstamp(L, 1, 0)
    SX, SM, SH, SWQ, SKK, SVV, SCC_, SWM, SDB = 8, 12, 16, 20, 24, 40, 52, 56, 60
    e('s_cmp_ge_u32 s2, 256')
    e(f's_cbranch_scc1 {name}_done')
    e(f's_load_dwordx2 s[4:5], s[0:1], {KA["x"]}')
    e(f's_load_dwordx4 s[64:67], s[0:1], {KA["dbg"]}')
    e(f's_load_dwordx4 s[68:71], s[0:1], {KA["c"]}')
    e(f's_load_dwordx4 s[44:47], s[0:1], {KA["k"]}')
    e(f's_load_dwordx2 s[48:49], s[0:1], {KA["wq"]}')
    e('v_and_b32 v1, 63, v0')
    e('v_lshrrev_b32 v2, 6, v0')
    e('v_and_b32 v3, 7, v1')
    e('v_lshrrev_b32 v4, 3, v1')
    e('v_readfirstlane_b32 s36, v2')
    e('s_and_b32 s28, s2, 1')
    e('s_lshl_b32 s28, s28, 7')
    e('s_bfe_u32 s29, s2, 0x20001')
    e('s_lshl_b32 s30, s29, 5')
    e('s_add_u32 s28, s28, s30')
    e('s_lshr_b32 s31, s2, 3')
    e('s_add_u32 s28, s28, s31')
    e('s_lshl_b32 s30, s28, 13')
    e('v_lshlrev_b32 v5, 4, v4')
    e('v_lshl_add_u32 v5, v2, 8, v5')
    e('v_lshl_add_u32 v6, v3, 10, v5')
    e('s_waitcnt lgkmcnt(0)')
    srd(L, SX, 4, 2048 * 1024)
    srd_off(L, SM, 66, MOD_OFF, 6144)
    srd_off(L, SH, 66, H1_OFF, 2048 * 1024)
    srd(L, SDB, 64, 256)
    for i in range(2):
        e(f'buffer_load_dwordx4 v[{108+4*i}:{111+4*i}], v6, s[{SX}:{SX+3}], s30 offen offset:{128*i}')
    e('s_cmp_ge_u32 s2, 96')
    e(f's_cbranch_scc1 {name}_nomod')
    srd(L, SCC_, 68, 1024)
    srd(L, SWM, 70, 512 * 6144)
    e('v_and_b32 v100, 3, v0')
    e('v_lshrrev_b32 v101, 2, v0')
    e('s_movk_i32 s3, 6144')
    e('v_mul_lo_u32 v102, v101, s3')
    e('v_lshl_add_u32 v102, v100, 4, v102')
    e('v_lshlrev_b32 v103, 1, v101')
    e('s_lshl_b32 s72, s2, 6')
    for i in range(1, 8):
        e(f's_add_u32 s{72+i}, s{71+i}, {64*6144}')
    for i in range(8):
        e(f'buffer_load_ushort v{8+i}, v103, s[{SCC_}:{SCC_+3}], 0 offen offset:{128*i}')
    for i in range(8):
        e(f'buffer_load_dwordx4 v[{16+4*i}:{19+4*i}], v102, s[{SWM}:{SWM+3}], s{72+i} offen')
    for j in range(8):
        e(f'v_mov_b32 v{48+j}, 0')
    e('s_waitcnt vmcnt(8)')
    for i in range(8):
        e(f'v_lshlrev_b32 v{8+i}, 16, v{8+i}')
    for i in range(8):
        e(f'v_mul_f32 v{56+i}, 0x{NLOG2E:08x}, v{8+i}')
    for i in range(8):
        e(f'v_exp_f32 v{56+i}, v{56+i}')
    for i in range(8):
        e(f'v_add_f32 v{56+i}, 1.0, v{56+i}')
    for i in range(8):
        e(f'v_rcp_f32 v{56+i}, v{56+i}')
    for i in range(8):
        e(f'v_mul_f32 v{56+i}, v{8+i}, v{56+i}')
    for i in range(8):
        e(f'v_cvt_pk_bf16_f32 v{56+i}, v{56+i}, v{56+i}')
    for i in range(8):
        e(f'v_lshlrev_b32 v{56+i}, 16, v{56+i}')
    for i in range(8):
        e(f's_waitcnt vmcnt({7-i})')
        for j in range(4):
            w = 16 + 4*i + j
            e(f'v_lshlrev_b32 v64, 16, v{w}')
            e(f'v_and_b32 v65, 0xffff0000, v{w}')
            e(f'v_fmac_f32 v{48+2*j}, v64, v{56+i}')
            e(f'v_fmac_f32 v{49+2*j}, v65, v{56+i}')
    e('s_nop 1')
    for j in range(8):
        e(f'v_add_f32_dpp v{64+j}, v{48+j}, v{48+j} row_ror:4 row_mask:0xf bank_mask:0xf')
    e('s_nop 1')
    for j in range(8):
        e(f'v_add_f32_dpp v{48+j}, v{64+j}, v{64+j} row_ror:8 row_mask:0xf bank_mask:0xf')
    e('v_lshrrev_b32 v104, 4, v0')
    e('v_lshlrev_b32 v104, 7, v104')
    e('v_lshl_add_u32 v104, v100, 5, v104')
    e('ds_write_b128 v104, v[48:51] offset:2048')
    e('ds_write_b128 v104, v[52:55] offset:2064')
    e('s_waitcnt lgkmcnt(0)')
    e('s_barrier')
    e('s_cmp_lg_u32 s36, 0')
    e(f's_cbranch_scc1 {name}_nomod')
    e('v_and_b32 v105, 15, v0')
    e('v_lshlrev_b32 v106, 3, v105')
    for p in range(16):
        e(f'ds_read_b64 v[{8+2*p}:{9+2*p}], v106 offset:{2048+128*p}')
    e('s_waitcnt lgkmcnt(0)')
    for p in range(1, 16):
        e(f'v_add_f32 v8, v8, v{8+2*p}')
        e(f'v_add_f32 v9, v9, v{9+2*p}')
    e('v_cvt_pk_bf16_f32 v8, v8, v9')
    e('v_lshlrev_b32 v107, 2, v105')
    e('s_lshl_b32 s3, s2, 6')
    e('v_cmp_gt_u32 vcc, 16, v0')
    e('s_and_saveexec_b64 s[32:33], vcc')
    e(f'buffer_store_dword v8, v107, s[{SM}:{SM+3}], s3 offen {SC}')
    e('s_mov_b64 exec, s[32:33]')
    e('s_cmp_ge_u32 s2, 32')
    e(f's_cbranch_scc1 {name}_nomod')
    dstamp(L, 1, 1)
    e('s_waitcnt vmcnt(0)')
    dstamp(L, 1, 2)
    e('v_mov_b32 v8, 1')
    e('v_mov_b32 v9, 0')
    e('s_lshl_b32 s3, s2, 2')
    e('v_cmp_eq_u32 vcc, 0, v0')
    e('s_and_saveexec_b64 s[32:33], vcc')
    e(f'buffer_store_dword v8, v9, s[{SDB}:{SDB+3}], s3 offen {SC}')
    e('s_mov_b64 exec, s[32:33]')
    e(f'{name}_nomod:')
    npf = 0
    if not PF_LATE:
        npf = 0
        srd(L, SWQ, 48, 512 * 8192)
        srd(L, SKK, 44, 16 << 20)
        srd(L, SVV, 46, 16 << 20)
        e('v_lshlrev_b32 v7, 4, v1')
        e('s_lshl_b32 s32, s31, 4')
        e('s_lshl_b32 s33, s36, 2')
        e('s_add_u32 s32, s32, s33')
        e('s_lshl_b32 s32, s32, 13')
        e('s_lshl_b32 s33, s29, 11')
        e('s_add_u32 s32, s32, s33')
        for r in range(4):
            for hf in range(2):
                e(f'buffer_load_dwordx4 v[96:99], v7, s[{SWQ}:{SWQ+3}], s32 offen offset:{hf*1024}')
                npf += 1
            e('s_add_u32 s32, s32, 8192')
        e('s_lshl_b32 s32, s29, 3')
        e('s_lshr_b32 s33, s31, 2')
        e('s_add_u32 s32, s32, s33')
        e('s_lshl_b32 s32, s32, 19')
        e('s_and_b32 s33, s31, 3')
        e('s_lshl_b32 s33, s33, 2')
        e('s_add_u32 s33, s33, s36')
        e('s_lshl_b32 s33, s33, 11')
        e('s_add_u32 s32, s32, s33')
        for sr in (SKK, SVV):
            for hf in range(2):
                e(f'buffer_load_dwordx4 v[96:99], v7, s[{sr}:{sr+3}], s32 offen offset:{hf*1024}')
                npf += 1
    e('v_lshl_add_u32 v32, v2, 3, v4')
    e('v_lshlrev_b32 v32, 2, v32')
    e('v_lshl_add_u32 v33, v3, 7, v32')
    e('v_lshlrev_b32 v34, 7, v3')
    e(f's_waitcnt vmcnt({npf})')
    for r in range(8):
        e(f'v_lshlrev_b32 v{40+2*r}, 16, v{108+r}')
        e(f'v_and_b32 v{41+2*r}, 0xffff0000, v{108+r}')
    e('v_add_f32 v35, v40, v41')
    e('v_add_f32 v36, v42, v43')
    for r in range(4, 16, 2):
        e(f'v_add_f32 v35, v35, v{40+r}')
        e(f'v_add_f32 v36, v36, v{41+r}')
    e('v_add_f32 v35, v35, v36')
    def reduce(src, off, dst):
        e(f'ds_write_b32 v33, v{src} offset:{off}')
        e('s_waitcnt lgkmcnt(0)')
        e('s_barrier')
        for q in range(8):
            e(f'ds_read_b128 v[{64+4*q}:{67+4*q}], v34 offset:{off + 16*q}')
        e('s_waitcnt lgkmcnt(0)')
        for q in range(16):
            e(f'v_add_f32 v{64+q}, v{64+q}, v{80+q}')
        for q in range(8):
            e(f'v_add_f32 v{64+q}, v{64+q}, v{72+q}')
        for q in range(4):
            e(f'v_add_f32 v{64+q}, v{64+q}, v{68+q}')
        e('v_add_f32 v64, v64, v66')
        e('v_add_f32 v65, v65, v67')
        e('v_add_f32 v64, v64, v65')
        e(f'v_mul_f32 v{dst}, 0x3b000000, v64')
    reduce(35, 0, 35)
    e('v_sub_f32 v36, v40, v35')
    e('v_mul_f32 v37, v36, v36')
    e('v_sub_f32 v36, v41, v35')
    e('v_mul_f32 v38, v36, v36')
    for r in range(2, 16):
        e(f'v_sub_f32 v36, v{40+r}, v35')
        e(f'v_fmac_f32 v{37 + (r & 1)}, v36, v36')
    e('v_add_f32 v37, v37, v38')
    reduce(37, 1024, 36)
    rnd_pair(e, 35, 36, 35, 36, 39)
    e('v_add_f32 v36, 0x3727c5ac, v36')
    e('v_cvt_pk_bf16_f32 v36, v36, v36')
    e('v_lshlrev_b32 v36, 16, v36')
    e('v_sqrt_f32 v36, v36')
    e('s_nop 0')
    e('v_cvt_pk_bf16_f32 v36, v36, v36')
    e('v_lshlrev_b32 v36, 16, v36')
    e('v_rcp_f32 v36, v36')
    for pr in range(8):
        x0, x1 = 40 + 2 * pr, 41 + 2 * pr
        e(f'v_sub_f32 v{x0}, v{x0}, v35')
        e(f'v_sub_f32 v{x1}, v{x1}, v35')
        rnd_pair(e, x0, x1, x0, x1, 39)
        e(f'v_mul_f32 v{x0}, v{x0}, v36')
        e(f'v_mul_f32 v{x1}, v{x1}, v36')
        rnd_pair(e, x0, x1, x0, x1, 39)
    def pf_block():
        srd(L, SWQ, 48, 512 * 8192)
        srd(L, SKK, 44, 16 << 20)
        srd(L, SVV, 46, 16 << 20)
        e('v_lshlrev_b32 v7, 4, v1')
        e('s_lshl_b32 s32, s31, 4')
        e('s_lshl_b32 s33, s36, 2')
        e('s_add_u32 s32, s32, s33')
        e('s_lshl_b32 s32, s32, 13')
        e('s_lshl_b32 s33, s29, 11')
        e('s_add_u32 s32, s32, s33')
        for r in range(4):
            for hf in range(2):
                e(f'buffer_load_dwordx4 v[96:99], v7, s[{SWQ}:{SWQ+3}], s32 offen offset:{hf*1024}')
            e('s_add_u32 s32, s32, 8192')
        e('s_lshl_b32 s32, s29, 3')
        e('s_lshr_b32 s33, s31, 2')
        e('s_add_u32 s32, s32, s33')
        e('s_lshl_b32 s32, s32, 19')
        e('s_and_b32 s33, s31, 3')
        e('s_lshl_b32 s33, s33, 2')
        e('s_add_u32 s33, s33, s36')
        e('s_lshl_b32 s33, s33, 11')
        e('s_add_u32 s32, s32, s33')
        for sr in (SKK, SVV):
            for hf in range(2):
                e(f'buffer_load_dwordx4 v[96:99], v7, s[{sr}:{sr+3}], s32 offen offset:{hf*1024}')
    e('s_cmp_eq_u32 s36, 0')
    e(f's_cbranch_scc1 {name}_nopf')
    pf_block()
    e(f'{name}_nopf:')
    e('v_lshrrev_b32 v8, 1, v4')
    e('v_lshl_add_u32 v8, v2, 3, v8')
    e('v_lshlrev_b32 v8, 10, v8')
    e('v_and_b32 v9, 1, v4')
    e('v_lshl_add_u32 v9, v9, 5, v3')
    e('s_and_b32 s32, s28, 3')
    e('s_lshl_b32 s32, s32, 3')
    e('v_add_u32 v9, s32, v9')
    e('v_lshl_add_u32 v8, v9, 4, v8')
    e('s_lshr_b32 s32, s28, 2')
    e('s_lshl_b32 s32, s32, 15')
    e('s_add_u32 s33, s32, 4096')
    dstamp(L, 1, 3)
    e('s_cmp_lg_u32 s36, 0')
    e(f's_cbranch_scc1 {name}_wait')
    e('v_and_b32 v10, 31, v0')
    e('v_lshlrev_b32 v10, 2, v10')
    e('s_mov_b32 s34, 0x100000')
    e(f'{name}_poll:')
    if SLEEP: e(f's_sleep {SLEEP}')
    e(f'buffer_load_dword v11, v10, s[{SDB}:{SDB+3}], 0 offen {SC}')
    e('s_waitcnt vmcnt(0)')
    e('v_cmp_eq_u32 vcc, 0, v11')
    e('s_sub_u32 s34, s34, 1')
    e('s_cmp_eq_u32 s34, 0')
    e(f's_cbranch_scc1 {name}_wait')
    e(f's_cbranch_vccnz {name}_poll')
    e(f'{name}_wait:')
    e('s_barrier')
    dstamp(L, 1, 4)
    for i in range(2):
        e(f'buffer_load_dwordx4 v[{16+4*i}:{19+4*i}], v5, s[{SM}:{SM+3}], 0 offen offset:{128*i} {SC}')
    for i in range(2):
        e(f'buffer_load_dwordx4 v[{24+4*i}:{27+4*i}], v5, s[{SM}:{SM+3}], 0 offen offset:{1024+128*i} {SC}')
    e('s_waitcnt vmcnt(0)')
    for pr in range(8):
        x0, x1 = 40 + 2 * pr, 41 + 2 * pr
        e(f'v_lshlrev_b32 v37, 16, v{24+pr}')
        e(f'v_and_b32 v38, 0xffff0000, v{24+pr}')
        e('v_add_f32 v37, 1.0, v37')
        e('v_add_f32 v38, 1.0, v38')
        rnd_pair(e, 37, 38, 37, 38, 39)
        e(f'v_mul_f32 v{x0}, v{x0}, v37')
        e(f'v_mul_f32 v{x1}, v{x1}, v38')
        rnd_pair(e, x0, x1, x0, x1, 39)
        e(f'v_lshlrev_b32 v37, 16, v{16+pr}')
        e(f'v_and_b32 v38, 0xffff0000, v{16+pr}')
        e(f'v_add_f32 v{x0}, v{x0}, v37')
        e(f'v_add_f32 v{x1}, v{x1}, v38')
        e(f'v_cvt_pk_bf16_f32 v{56+pr}, v{x0}, v{x1}')
    e(f'buffer_store_dwordx4 v[56:59], v8, s[{SH}:{SH+3}], s32 offen')
    e(f'buffer_store_dwordx4 v[60:63], v8, s[{SH}:{SH+3}], s33 offen')
    e('s_cmp_lg_u32 s36, 0')
    e(f's_cbranch_scc1 {name}_nopf2')
    pf_block()
    e(f'{name}_nopf2:')
    dstamp(L, 1, 5)
    dstamp_store(L, 1, 6)
    if asmlib.STAMPK == 1:
        asmlib.STAMPI = 's_memtime'; asmlib.STAMPB = 64
    prof_end(L, 1, 1)
    e(f'{name}_done:')
    e('s_endpgm')
    for h in check_hazards(L, name): print('HAZARD', h)
    return L, kernel_desc(name, 120, 102, 120), f'; @launch kernel={name} grid=(256,1,1) block=(256,1,1) lds=4096'
```

```python
from asmlib import *
import asmlib
from k_small import *

def gen_pre3(name='pre_kernel'):
    L = kernel_header(name)
    e = L.append
    prof_begin(L)
    asmlib.STAMPB = 76
    dstamp(L, 1, 0)
    SX, SM, SH, SWQ, SKK, SVV, SCV, SWM = 8, 12, 16, 20, 24, 40, 52, 56
    e('s_cmp_ge_u32 s2, 256')
    e(f's_cbranch_scc1 {name}_done')
    e(f's_load_dwordx2 s[4:5], s[0:1], {KA["x"]}')
    e(f's_load_dwordx2 s[66:67], s[0:1], {KA["ws"]}')
    e(f's_load_dwordx4 s[68:71], s[0:1], {KA["c"]}')
    e(f's_load_dwordx4 s[44:47], s[0:1], {KA["k"]}')
    e(f's_load_dwordx2 s[48:49], s[0:1], {KA["wq"]}')
    e('v_and_b32 v1, 63, v0')
    e('v_lshrrev_b32 v2, 6, v0')
    e('s_lshr_b32 s31, s2, 3')
    e('v_readfirstlane_b32 s36, v2')
    e('s_and_b32 s28, s2, 1')
    e('s_lshl_b32 s28, s28, 3')
    e('s_and_b32 s30, s31, 7')
    e('s_add_u32 s28, s28, s30')
    e('s_bfe_u32 s29, s2, 0x20001')
    e('s_lshl_b32 s30, s29, 2')
    e('s_lshr_b32 s37, s31, 3')
    e('s_add_u32 s37, s37, s30')
    e('v_and_b32 v3, 3, v0')
    e('v_lshrrev_b32 v4, 2, v0')
    e('s_movk_i32 s3, 6144')
    e('v_mul_lo_u32 v5, v4, s3')
    e('v_lshl_add_u32 v5, v3, 4, v5')
    e('v_lshlrev_b32 v6, 1, v4')
    e('v_and_b32 v7, 7, v1')
    e('v_lshrrev_b32 v8, 3, v1')
    e('v_lshl_add_u32 v9, v2, 4, v8')
    e('v_lshlrev_b32 v10, 10, v9')
    e('v_lshl_add_u32 v10, v7, 4, v10')
    e('s_lshl_b32 s30, s28, 17')
    e('s_add_u32 s32, s30, 8192')
    e('s_lshl_b32 s72, s37, 6')
    for i in range(1, 4):
        e(f's_add_u32 s{72+i}, s{71+i}, {128*6144}')
    e('s_waitcnt lgkmcnt(0)')
    srd(L, SX, 4, 2048 * 1024)
    srd(L, SCV, 68, 1024)
    srd(L, SWM, 70, 512 * 6144)
    srd_off(L, SM, 66, MOD_OFF, 6144)
    srd_off(L, SH, 66, H1_OFF, 2048 * 1024)
    dstamp(L, 1, 1)
    for i in range(4):
        e(f'buffer_load_ushort v{12+i}, v6, s[{SCV}:{SCV+3}], 0 offen offset:{256*i}')
    for sl in range(2):
        for i in range(4):
            r = 16 + 16 * sl + 4 * i
            e(f'buffer_load_dwordx4 v[{r}:{r+3}], v5, s[{SWM}:{SWM+3}], s{72+i} offen offset:{1024*sl}')
    for g in range(2):
        for sg in range(8):
            r = 64 + 32 * g + 4 * sg
            e(f'buffer_load_dwordx4 v[{r}:{r+3}], v10, s[{SX}:{SX+3}], s{30 if g == 0 else 32} offen offset:{128*sg}')
    e('s_and_b32 s33, s2, 7')
    e('s_lshl_b32 s33, s33, 5')
    e('s_add_u32 s33, s33, s31')
    e('s_lshl_b32 s38, s33, 4')
    e('s_add_u32 s38, s38, 2048')
    e('v_mul_lo_u32 v11, v0, s3')
    e('v_lshlrev_b32 v52, 1, v0')
    e(f'buffer_load_ushort v53, v52, s[{SCV}:{SCV+3}], 0 offen')
    e(f'buffer_load_dwordx4 v[48:51], v11, s[{SWM}:{SWM+3}], s38 offen')
    srd(L, SWQ, 48, 512 * 8192)
    srd(L, SKK, 44, 16 << 20)
    srd(L, SVV, 46, 16 << 20)
    e('v_lshlrev_b32 v170, 4, v1')
    e('s_lshl_b32 s34, s31, 4')
    e('s_lshl_b32 s35, s36, 1')
    e('s_add_u32 s34, s34, s35')
    e('s_lshl_b32 s34, s34, 13')
    e('s_lshl_b32 s35, s29, 11')
    e('s_add_u32 s34, s34, s35')
    for r in range(2):
        for hf in range(2):
            e(f'buffer_load_dwordx4 v[172:175], v170, s[{SWQ}:{SWQ+3}], s34 offen offset:{hf*1024}')
        e('s_add_u32 s34, s34, 8192')
    e('s_lshl_b32 s34, s29, 3')
    e('s_lshr_b32 s35, s31, 2')
    e('s_add_u32 s34, s34, s35')
    e('s_lshl_b32 s34, s34, 19')
    e('s_and_b32 s35, s31, 3')
    e('s_lshl_b32 s35, s35, 3')
    e('s_add_u32 s35, s35, s36')
    e('s_lshl_b32 s35, s35, 10')
    e('s_add_u32 s34, s34, s35')
    for sr in (SKK, SVV):
        e(f'buffer_load_dwordx4 v[172:175], v170, s[{sr}:{sr+3}], s34 offen')
    dstamp(L, 1, 2)
    e('s_waitcnt vmcnt(32)')
    for i in range(4):
        e(f'v_lshlrev_b32 v{12+i}, 16, v{12+i}')
    for i in range(4):
        e(f'v_mul_f32 v{128+i}, 0x{NLOG2E:08x}, v{12+i}')
    for i in range(4):
        e(f'v_exp_f32 v{128+i}, v{128+i}')
    for i in range(4):
        e(f'v_add_f32 v{128+i}, 1.0, v{128+i}')
    for i in range(4):
        e(f'v_rcp_f32 v{128+i}, v{128+i}')
    for i in range(4):
        e(f'v_mul_f32 v{128+i}, v{12+i}, v{128+i}')
    for i in range(4):
        e(f'v_cvt_pk_bf16_f32 v{128+i}, v{128+i}, v{128+i}')
    for i in range(4):
        e(f'v_lshlrev_b32 v{128+i}, 16, v{128+i}')
    def slab(base, accb):
        for i in range(4):
            for j in range(4):
                w = base + 4 * i + j
                e(f'v_lshlrev_b32 v132, 16, v{w}')
                e(f'v_and_b32 v133, 0xffff0000, v{w}')
                if i == 0:
                    e(f'v_mul_f32 v{accb+2*j}, v132, v{128+i}')
                    e(f'v_mul_f32 v{accb+2*j+1}, v133, v{128+i}')
                else:
                    e(f'v_fmac_f32 v{accb+2*j}, v132, v{128+i}')
                    e(f'v_fmac_f32 v{accb+2*j+1}, v133, v{128+i}')
        e('s_nop 1')
        for j in range(8):
            e(f'v_add_f32_dpp v{134+j}, v{accb+j}, v{accb+j} row_ror:4 row_mask:0xf bank_mask:0xf')
        e('s_nop 1')
        for j in range(8):
            e(f'v_add_f32_dpp v{accb+j}, v{134+j}, v{134+j} row_ror:8 row_mask:0xf bank_mask:0xf')
    e('v_lshrrev_b32 v142, 4, v0')
    e('v_mul_u32_u24 v142, 384, v142')
    e('v_lshl_add_u32 v142, v3, 5, v142')
    e('s_waitcnt vmcnt(24)')
    dstamp(L, 1, 3)
    slab(16, 144); slab(32, 152)
    e('ds_write_b128 v142, v[144:147] offset:2048')
    e('ds_write_b128 v142, v[148:151] offset:2064')
    e('ds_write_b128 v142, v[152:155] offset:2176')
    e('ds_write_b128 v142, v[156:159] offset:2192')
    e('v_mov_b32 v143, 0x3f803f80')
    e('s_waitcnt vmcnt(8)')
    dstamp(L, 1, 4)
    for g in range(2):
        a0, a1 = 160 + 2 * g, 161 + 2 * g
        e(f'v_mov_b32 v{a0}, 0')
        e(f'v_mov_b32 v{a1}, 0')
        for q in range(32):
            r = 64 + 32 * g + q
            e(f'v_dot2c_f32_bf16 v{a0}, v{r}, v143')
            e(f'v_dot2c_f32_bf16 v{a1}, v{r}, v{r}')
    e('s_nop 3')
    for k in range(4):
        e(f'v_add_f32_dpp v{164+k}, v{160+k}, v{160+k} quad_perm:[1,0,3,2] row_mask:0xf bank_mask:0xf')
    e('s_nop 1')
    for k in range(4):
        e(f'v_add_f32_dpp v{160+k}, v{164+k}, v{164+k} quad_perm:[2,3,0,1] row_mask:0xf bank_mask:0xf')
    e('s_nop 1')
    for k in range(4):
        e(f'v_add_f32_dpp v{164+k}, v{160+k}, v{160+k} row_half_mirror row_mask:0xf bank_mask:0xf')
    for g in range(2):
        sm, sq = 164 + 2 * g, 165 + 2 * g
        e(f'v_mul_f32 v{sm}, 0x3b000000, v{sm}')
        e(f'v_mul_f32 v{sq}, 0x3b000000, v{sq}')
        e(f'v_fma_f32 v{sq}, -v{sm}, v{sm}, v{sq}')
        e(f'v_max_f32 v{sq}, 0, v{sq}')
        rnd_pair(e, sm, sq, sm, sq, 168)
        e(f'v_add_f32 v{sq}, 0x3727c5ac, v{sq}')
        e(f'v_cvt_pk_bf16_f32 v{sq}, v{sq}, v{sq}')
        e(f'v_lshlrev_b32 v{sq}, 16, v{sq}')
        e(f'v_sqrt_f32 v{sq}, v{sq}')
        e('s_nop 0')
        e(f'v_cvt_pk_bf16_f32 v{sq}, v{sq}, v{sq}')
        e(f'v_lshlrev_b32 v{sq}, 16, v{sq}')
        e(f'v_rcp_f32 v{sq}, v{sq}')
    e('v_lshlrev_b32 v169, 3, v9')
    e('s_nop 0')
    e('ds_write_b64 v169, v[164:165]')
    e('ds_write_b64 v169, v[166:167] offset:64')
    e('s_waitcnt vmcnt(6)')
    e('v_lshlrev_b32 v53, 16, v53')
    e(f'v_mul_f32 v54, 0x{NLOG2E:08x}, v53')
    e('v_exp_f32 v54, v54')
    e('s_nop 0')
    e('v_add_f32 v54, 1.0, v54')
    e('v_rcp_f32 v54, v54')
    e('s_nop 0')
    e('v_mul_f32 v54, v53, v54')
    e('v_cvt_pk_bf16_f32 v54, v54, v54')
    e('v_lshlrev_b32 v54, 16, v54')
    for j in range(4):
        e(f'v_lshlrev_b32 v132, 16, v{48+j}')
        e(f'v_and_b32 v133, 0xffff0000, v{48+j}')
        e(f'v_mul_f32 v{144+2*j}, v132, v54')
        e(f'v_mul_f32 v{145+2*j}, v133, v54')
    for (src, dst, rr) in ((144, 134, 1), (134, 144, 2), (144, 134, 4), (134, 144, 8)):
        e('s_nop 1')
        for j in range(8):
            e(f'v_add_f32_dpp v{dst+j}, v{src+j}, v{src+j} row_ror:{rr} row_mask:0xf bank_mask:0xf')
    e('v_lshrrev_b32 v55, 4, v0')
    e('v_mul_u32_u24 v55, 384, v55')
    e('ds_write_b128 v55, v[144:147] offset:2304')
    e('ds_write_b128 v55, v[148:151] offset:2320')
    e('v_and_b32 v12, 31, v1')
    e('v_lshrrev_b32 v13, 5, v1')
    e('v_lshrrev_b32 v14, 1, v2')
    e('v_lshl_add_u32 v14, v14, 5, v12')
    e('v_and_b32 v15, 1, v2')
    e('v_lshlrev_b32 v16, 5, v15')
    e('v_lshl_add_u32 v16, v13, 4, v16')
    e('v_lshl_add_u32 v17, v14, 10, v16')
    e('s_add_u32 s33, s30, s72')
    e(f'buffer_load_dwordx4 v[20:23], v17, s[{SX}:{SX+3}], s33 offen')
    e('s_waitcnt lgkmcnt(0)')
    e('s_barrier')
    dstamp(L, 1, 5)
    e('v_and_b32 v24, 127, v0')
    e('v_min_u32 v24, 71, v24')
    e('v_lshrrev_b32 v25, 7, v0')
    e('v_mul_u32_u24 v26, 3072, v25')
    e('v_lshl_add_u32 v26, v24, 2, v26')
    for p in range(8):
        e(f'ds_read_b32 v{28+p}, v26 offset:{2048 + 384*p}')
    e('v_lshlrev_b32 v27, 3, v14')
    e('ds_read_b64 v[40:41], v27')
    e('s_waitcnt lgkmcnt(1)')
    for p in range(1, 8):
        e(f'v_add_f32 v28, v28, v{28+p}')
    e('v_lshlrev_b32 v26, 9, v25')
    e('v_lshl_add_u32 v26, v24, 2, v26')
    e('ds_write_b32 v26, v28 offset:14336')
    e('s_waitcnt lgkmcnt(0)')
    e('s_barrier')
    e('v_lshlrev_b32 v26, 1, v16')
    for sl in range(2):
        for pt in range(4):
            for hf in range(2):
                r = 64 + 32 * sl + 8 * pt + 4 * hf
                e(f'ds_read_b128 v[{r}:{r+3}], v26 offset:{14336 + 512*pt + 128*sl + 16*hf}')
    e('s_cmp_lg_u32 s36, 0')
    e(f's_cbranch_scc1 {name}_no3c')
    e('v_and_b32 v42, 3, v0')
    e('v_lshlrev_b32 v43, 3, v42')
    for pt in range(4):
        e(f'ds_read_b64 v[{44+2*pt}:{45+2*pt}], v43 offset:{14336 + 512*pt + 256}')
    e('s_waitcnt lgkmcnt(0)')
    for pt in range(1, 4):
        e(f'v_add_f32 v44, v44, v{44+2*pt}')
        e(f'v_add_f32 v45, v45, v{45+2*pt}')
    e('v_cvt_pk_bf16_f32 v44, v44, v45')
    e('v_lshlrev_b32 v43, 2, v42')
    e(f'buffer_store_dword v44, v43, s[{SM}:{SM+3}], s38 offen')
    e(f'{name}_no3c:')
    e('s_waitcnt lgkmcnt(0)')
    for sl in range(2):
        b = 64 + 32 * sl
        for k in range(8):
            e(f'v_add_f32 v{b+k}, v{b+k}, v{b+8+k}')
            e(f'v_add_f32 v{b+16+k}, v{b+16+k}, v{b+24+k}')
        for k in range(8):
            e(f'v_add_f32 v{b+k}, v{b+k}, v{b+16+k}')
    for k in range(0, 8, 2):
        rnd_pair(e, 64 + k, 65 + k, 64 + k, 65 + k, 50)
        rnd_pair(e, 96 + k, 97 + k, 96 + k, 97 + k, 50)
        e(f'v_add_f32 v{96+k}, 1.0, v{96+k}')
        e(f'v_add_f32 v{97+k}, 1.0, v{97+k}')
        rnd_pair(e, 96 + k, 97 + k, 96 + k, 97 + k, 50)
    e('s_waitcnt vmcnt(0)' if False else 's_waitcnt vmcnt(1)')
    e('s_waitcnt vmcnt(0)')
    for pr in range(4):
        x0, x1 = 52 + 2 * pr, 53 + 2 * pr
        e(f'v_lshlrev_b32 v{x0}, 16, v{20+pr}')
        e(f'v_and_b32 v{x1}, 0xffff0000, v{20+pr}')
        e(f'v_sub_f32 v{x0}, v{x0}, v40')
        e(f'v_sub_f32 v{x1}, v{x1}, v40')
        rnd_pair(e, x0, x1, x0, x1, 50)
        e(f'v_mul_f32 v{x0}, v{x0}, v41')
        e(f'v_mul_f32 v{x1}, v{x1}, v41')
        rnd_pair(e, x0, x1, x0, x1, 50)
        e(f'v_mul_f32 v{x0}, v{x0}, v{96+2*pr}')
        e(f'v_mul_f32 v{x1}, v{x1}, v{97+2*pr}')
        rnd_pair(e, x0, x1, x0, x1, 50)
        e(f'v_add_f32 v{x0}, v{x0}, v{64+2*pr}')
        e(f'v_add_f32 v{x1}, v{x1}, v{65+2*pr}')
        e(f'v_cvt_pk_bf16_f32 v{60+pr}, v{x0}, v{x1}')
    e('v_lshrrev_b32 v24, 1, v2')
    e('v_lshlrev_b32 v24, 15, v24')
    e('v_lshl_add_u32 v24, v15, 10, v24')
    e('v_lshl_add_u32 v24, v1, 4, v24')
    e('s_lshl_b32 s34, s28, 17')
    e('s_lshl_b32 s35, s37, 11')
    e('s_add_u32 s34, s34, s35')
    e(f'buffer_store_dwordx4 v[60:63], v24, s[{SH}:{SH+3}], s34 offen')
    dstamp(L, 1, 6)
    dstamp_store(L, 1, 7)
    asmlib.STAMPB = 64
    return L, e, locals()

def gen_pre3_full(name='pre_kernel', pf_early=True):
    L, e, lc = gen_pre3(name)
    prof_end(L, 1, 1)
    e(f'{name}_done:')
    e('s_endpgm')
    for h in check_hazards(L, name): print('HAZARD', h)
    return L, kernel_desc(name, 176, 102, 176), f'; @launch kernel={name} grid=(256,1,1) block=(512,1,1) lds=16384'
```

```python
from asmlib import *
import asmlib

MOD_OFF = 0
H1_OFF = 1 << 20
O_OFF = 4 << 20
X1_OFF = 20 << 20
H2_OFF = 22 << 20
ACT_OFF = 24 << 20
WS_BYTES = 268435456

KA = dict(x=0, k=8, v=16, wq=24, wo=32, bx=40, wg=48, wu=56, wd=64, c=72, wmod=80, out=88, dbg=96, ws=104)

LOG2E = 0x3fb8aa3b
NLOG2E = 0xbfb8aa3b

def gen_mod(name='mod_kernel'):
    L = kernel_header(name)
    e = L.append
    prof_begin(L)
    e('s_cmp_ge_u32 s2, 96')
    e(f's_cbranch_scc1 {name}_done')
    e(f's_load_dwordx2 s[4:5], s[0:1], {KA["c"]}')
    e(f's_load_dwordx2 s[6:7], s[0:1], {KA["wmod"]}')
    e(f's_load_dwordx2 s[28:29], s[0:1], {KA["ws"]}')
    e('v_and_b32 v1, 3, v0')
    e('v_lshrrev_b32 v2, 2, v0')
    e('s_movk_i32 s3, 6144')
    e('v_mul_lo_u32 v3, v2, s3')
    e('v_lshl_add_u32 v3, v1, 4, v3')
    e('v_lshlrev_b32 v4, 1, v2')
    e('s_lshl_b32 s20, s2, 6')
    for i in range(1, 8):
        e(f's_add_u32 s{20+i}, s{19+i}, {64*6144}')
    e('s_waitcnt lgkmcnt(0)')
    srd(L, 8, 4, 1024)
    srd(L, 12, 6, 512*6144)
    srd_off(L, 16, 28, MOD_OFF, 6144)
    for i in range(8):
        e(f'buffer_load_ushort v{8+i}, v4, s[8:11], 0 offen offset:{128*i}')
    for i in range(8):
        e(f'buffer_load_dwordx4 v[{16+4*i}:{19+4*i}], v3, s[12:15], s{20+i} offen')
    for j in range(8):
        e(f'v_mov_b32 v{48+j}, 0')
    e('s_waitcnt vmcnt(8)')
    for i in range(8):
        e(f'v_lshlrev_b32 v{8+i}, 16, v{8+i}')
    for i in range(8):
        e(f'v_mul_f32 v{56+i}, 0x{NLOG2E:08x}, v{8+i}')
    for i in range(8):
        e(f'v_exp_f32 v{56+i}, v{56+i}')
    for i in range(8):
        e(f'v_add_f32 v{56+i}, 1.0, v{56+i}')
    for i in range(8):
        e(f'v_rcp_f32 v{56+i}, v{56+i}')
    for i in range(8):
        e(f'v_mul_f32 v{56+i}, v{8+i}, v{56+i}')
    for i in range(8):
        e(f'v_cvt_pk_bf16_f32 v{56+i}, v{56+i}, v{56+i}')
    for i in range(8):
        e(f'v_lshlrev_b32 v{56+i}, 16, v{56+i}')
    for i in range(8):
        e(f's_waitcnt vmcnt({7-i})')
        for j in range(4):
            w = 16 + 4*i + j
            e(f'v_lshlrev_b32 v64, 16, v{w}')
            e(f'v_and_b32 v65, 0xffff0000, v{w}')
            e(f'v_fmac_f32 v{48+2*j}, v64, v{56+i}')
            e(f'v_fmac_f32 v{49+2*j}, v65, v{56+i}')
    e('s_nop 1')
    for j in range(8):
        e(f'v_add_f32_dpp v{64+j}, v{48+j}, v{48+j} row_ror:4 row_mask:0xf bank_mask:0xf')
    e('s_nop 1')
    for j in range(8):
        e(f'v_add_f32_dpp v{48+j}, v{64+j}, v{64+j} row_ror:8 row_mask:0xf bank_mask:0xf')
    e('v_lshrrev_b32 v5, 4, v0')
    e('v_lshlrev_b32 v5, 7, v5')
    e('v_lshl_add_u32 v5, v1, 5, v5')
    e('ds_write_b128 v5, v[48:51]')
    e('ds_write_b128 v5, v[52:55] offset:16')
    e('s_waitcnt lgkmcnt(0)')
    e('s_barrier')
    e('v_cmp_gt_u32 vcc, 32, v0')
    e('s_and_saveexec_b64 s[30:31], vcc')
    e(f's_cbranch_execz {name}_done')
    e('v_lshlrev_b32 v6, 2, v0')
    for p in range(16):
        e(f'ds_read_b32 v{8+p}, v6 offset:{128*p}')
    e('s_waitcnt lgkmcnt(0)')
    for p in range(1, 16):
        e(f'v_add_f32 v8, v8, v{8+p}')
    e('v_cvt_pk_bf16_f32 v8, v8, v8')
    e('v_lshlrev_b32 v7, 1, v0')
    e('s_lshl_b32 s3, s2, 6')
    e('buffer_store_short v8, v7, s[16:19], s3 offen')
    prof_end(L, 0, 1)
    e(f'{name}_done:')
    e('s_endpgm')
    return L, kernel_desc(name, 72, 102 if asmlib.PROF else 40, 72), f'; @launch kernel={name} grid=(96,1,1) block=(256,1,1) lds=2048'


def rnd_pair(e, d0, d1, s0, s1, tmp):
    e(f'v_cvt_pk_bf16_f32 v{tmp}, v{s0}, v{s1}')
    e(f'v_lshlrev_b32 v{d0}, 16, v{tmp}')
    e(f'v_and_b32 v{d1}, 0xffff0000, v{tmp}')


def gen_ln2(name, src, shift_off, scale_off, dst_off, RF):
    LG = 64 // RF
    NWV = 8 if RF == 32 else 4
    NWG = 2048 // RF
    KSTEP = 8 * LG
    L = kernel_header(name)
    e = L.append
    prof_begin(L)
    e(f's_cmp_ge_u32 s2, {NWG}')
    e(f's_cbranch_scc1 {name}_done')
    if src[0] == 'in':
        e(f's_load_dwordx2 s[4:5], s[0:1], {src[1]}')
    e(f's_load_dwordx2 s[6:7], s[0:1], {KA["ws"]}')
    e('v_and_b32 v1, 63, v0')
    e('v_lshrrev_b32 v2, 6, v0')
    e(f'v_and_b32 v3, {RF-1}, v1')
    e(f'v_lshrrev_b32 v4, {RF.bit_length()-1}, v1')
    if RF == 32:
        e(f'v_lshlrev_b32 v5, 4, v4')
    else:
        e('v_lshrrev_b32 v5, 1, v4')
        e('v_lshlrev_b32 v5, 5, v5')
        e('v_and_b32 v7, 1, v4')
        e('v_lshl_add_u32 v5, v7, 3, v5')
    e(f'v_lshl_add_u32 v5, v2, {(8*KSTEP).bit_length()-1}, v5')
    e(f'v_lshl_add_u32 v6, v3, 10, v5')
    e(f's_lshl_b32 s3, s2, {(RF*1024).bit_length()-1}')
    e(f's_movk_i32 s20, {shift_off}')
    e(f's_movk_i32 s21, {scale_off}')
    e('s_waitcnt lgkmcnt(0)')
    if src[0] == 'in':
        srd(L, 8, 4, 2048*1024)
    else:
        srd_off(L, 8, 6, src[1], 2048*1024)
    srd_off(L, 12, 6, MOD_OFF, 6144)
    srd_off(L, 16, 6, dst_off, 2048*1024)
    def ld(dst, va, sr, so, off):
        if RF == 32:
            e(f'buffer_load_dwordx4 v[{dst}:{dst+3}], v{va}, s[{sr}:{sr+3}], {so} offen offset:{off}')
        else:
            e(f'buffer_load_dwordx2 v[{dst}:{dst+1}], v{va}, s[{sr}:{sr+3}], {so} offen offset:{off}')
            e(f'buffer_load_dwordx2 v[{dst+2}:{dst+3}], v{va}, s[{sr}:{sr+3}], {so} offen offset:{off+16}')
    for i in range(4):
        ld(8+4*i, 6, 8, 's3', 2*KSTEP*i)
    for i in range(4):
        ld(24+4*i, 5, 12, 's20', 2*KSTEP*i)
    for i in range(4):
        ld(40+4*i, 5, 12, 's21', 2*KSTEP*i)
    e(f'v_lshlrev_b32 v7, 6, v3')
    e(f'v_lshl_add_u32 v56, v2, {LG.bit_length()-1}, v4')
    e(f'v_lshl_add_u32 v56, v56, 2, v7')
    e(f's_waitcnt vmcnt({8 if RF == 32 else 16})')
    for r in range(16):
        e(f'v_lshlrev_b32 v{64+2*r}, 16, v{8+r}')
        e(f'v_and_b32 v{65+2*r}, 0xffff0000, v{8+r}')
    e('v_add_f32 v57, v64, v65')
    e('v_add_f32 v58, v66, v67')
    for r in range(2, 16):
        e(f'v_add_f32 v{57 + (r & 1)}, v{57 + (r & 1)}, v{64+2*r}')
        e(f'v_add_f32 v{57 + (r & 1)}, v{57 + (r & 1)}, v{65+2*r}')
    e('v_add_f32 v57, v57, v58')
    e('ds_write_b32 v56, v57')
    e('s_waitcnt lgkmcnt(0)')
    e('s_barrier')
    for q in range(4):
        e(f'ds_read_b128 v[{96+4*q}:{99+4*q}], v7 offset:{16*q}')
    e('s_waitcnt lgkmcnt(0)')
    for q in range(1, 16):
        e(f'v_add_f32 v96, v96, v{96+q}')
    e('v_mul_f32 v57, 0x3b000000, v96')
    e('v_sub_f32 v58, v64, v57')
    e('v_mul_f32 v59, v58, v58')
    e('v_sub_f32 v58, v65, v57')
    e('v_mul_f32 v60, v58, v58')
    for r in range(2, 32):
        e(f'v_sub_f32 v58, v{64+r}, v57')
        e(f'v_fmac_f32 v{59 + (r & 1)}, v58, v58')
    e('v_add_f32 v59, v59, v60')
    e(f'ds_write_b32 v56, v59 offset:{RF*64}')
    e('s_waitcnt lgkmcnt(0)')
    e('s_barrier')
    for q in range(4):
        e(f'ds_read_b128 v[{96+4*q}:{99+4*q}], v7 offset:{RF*64 + 16*q}')
    e('s_waitcnt lgkmcnt(0)')
    for q in range(1, 16):
        e(f'v_add_f32 v96, v96, v{96+q}')
    e('v_mul_f32 v58, 0x3b000000, v96')
    rnd_pair(e, 57, 58, 57, 58, 59)
    e('v_add_f32 v58, 0x3727c5ac, v58')
    e('v_cvt_pk_bf16_f32 v58, v58, v58')
    e('v_lshlrev_b32 v58, 16, v58')
    e('v_sqrt_f32 v58, v58')
    e('s_nop 0')
    e('v_cvt_pk_bf16_f32 v58, v58, v58')
    e('v_lshlrev_b32 v58, 16, v58')
    e('v_rcp_f32 v58, v58')
    e('s_waitcnt vmcnt(0)')
    for r in range(16):
        x0, x1 = 64+2*r, 65+2*r
        e(f'v_sub_f32 v{x0}, v{x0}, v57')
        e(f'v_sub_f32 v{x1}, v{x1}, v57')
        rnd_pair(e, x0, x1, x0, x1, 59)
        e(f'v_mul_f32 v{x0}, v{x0}, v58')
        e(f'v_mul_f32 v{x1}, v{x1}, v58')
        rnd_pair(e, x0, x1, x0, x1, 59)
        e(f'v_lshlrev_b32 v60, 16, v{40+r}')
        e(f'v_and_b32 v61, 0xffff0000, v{40+r}')
        e('v_add_f32 v60, 1.0, v60')
        e('v_add_f32 v61, 1.0, v61')
        rnd_pair(e, 60, 61, 60, 61, 59)
        e(f'v_mul_f32 v{x0}, v{x0}, v60')
        e(f'v_mul_f32 v{x1}, v{x1}, v61')
        rnd_pair(e, x0, x1, x0, x1, 59)
        e(f'v_lshlrev_b32 v60, 16, v{24+r}')
        e(f'v_and_b32 v61, 0xffff0000, v{24+r}')
        e(f'v_add_f32 v{x0}, v{x0}, v60')
        e(f'v_add_f32 v{x1}, v{x1}, v61')
        e(f'v_cvt_pk_bf16_f32 v{8+r}, v{x0}, v{x1}')
    NST = 512 // KSTEP
    e('v_lshlrev_b32 v6, 4, v1')
    e('v_lshl_add_u32 v6, v2, 12, v6')
    e(f's_lshl_b32 s3, s2, {(NST*1024).bit_length()-1}')
    for i in range(4):
        e(f'buffer_store_dwordx4 v[{8+4*i}:{11+4*i}], v6, s[16:19], s3 offen offset:{1024*i}')
    prof_end(L, 1 if RF == 32 else 4, 1)
    e(f'{name}_done:')
    e('s_endpgm')
    return L, kernel_desc(name, 112, 102 if asmlib.PROF else 40, 112), f'; @launch kernel={name} grid=({NWG},1,1) block=({NWV*64},1,1) lds={RF*128}'


def gen_mod2(name='mod_kernel'):
    L, desc, launch = gen_mod(name)
    idx = L.index('s_cmp_ge_u32 s2, 96')
    pre = []
    e = pre.append
    e('s_cmp_ge_u32 s2, 256')
    e(f's_cbranch_scc1 {name}_done')
    e(f's_load_dwordx2 s[32:33], s[0:1], {KA["x"]}')
    e('s_and_b32 s34, s2, 1')
    e('s_lshl_b32 s34, s34, 7')
    e('s_bfe_u32 s35, s2, 0x20001')
    e('s_lshl_b32 s35, s35, 5')
    e('s_add_u32 s34, s34, s35')
    e('s_lshr_b32 s35, s2, 3')
    e('s_add_u32 s34, s34, s35')
    e('s_lshl_b32 s34, s34, 13')
    e('v_lshlrev_b32 v70, 4, v0')
    e('s_waitcnt lgkmcnt(0)')
    srd(pre, 36, 32, 2048 * 1024)
    e('buffer_load_dwordx4 v[72:75], v70, s[36:39], s34 offen')
    e('s_add_u32 s34, s34, 4096')
    e('buffer_load_dwordx4 v[72:75], v70, s[36:39], s34 offen')
    L = L[:idx] + pre + L[idx:]
    return L, kernel_desc(name, 80, 102 if asmlib.PROF else 48, 80), f'; @launch kernel={name} grid=(256,1,1) block=(256,1,1) lds=2048'


def gen_ln1v2(name='ln1_kernel', prefetch=True):
    L = kernel_header(name)
    e = L.append
    prof_begin(L)
    SX, SM, SH, SWQ, SKK, SVV = 8, 12, 16, 20, 24, 40
    e('s_cmp_ge_u32 s2, 256')
    e(f's_cbranch_scc1 {name}_done')
    e(f's_load_dwordx2 s[4:5], s[0:1], {KA["x"]}')
    e(f's_load_dwordx2 s[6:7], s[0:1], {KA["ws"]}')
    e(f's_load_dwordx4 s[44:47], s[0:1], {KA["k"]}')
    e(f's_load_dwordx2 s[48:49], s[0:1], {KA["wq"]}')
    e('v_and_b32 v1, 63, v0')
    e('v_lshrrev_b32 v2, 6, v0')
    e('v_and_b32 v3, 7, v1')
    e('v_lshrrev_b32 v4, 3, v1')
    e('v_readfirstlane_b32 s36, v2')
    e('s_and_b32 s28, s2, 1')
    e('s_lshl_b32 s28, s28, 7')
    e('s_bfe_u32 s29, s2, 0x20001')
    e('s_lshl_b32 s30, s29, 5')
    e('s_add_u32 s28, s28, s30')
    e('s_lshr_b32 s31, s2, 3')
    e('s_add_u32 s28, s28, s31')
    e('s_lshl_b32 s30, s28, 13')
    e('v_lshlrev_b32 v5, 4, v4')
    e('v_lshl_add_u32 v5, v2, 8, v5')
    e('v_lshl_add_u32 v6, v3, 10, v5')
    e('s_waitcnt lgkmcnt(0)')
    srd(L, SX, 4, 2048 * 1024)
    srd_off(L, SM, 6, MOD_OFF, 6144)
    srd_off(L, SH, 6, H1_OFF, 2048 * 1024)
    for i in range(2):
        e(f'buffer_load_dwordx4 v[{8+4*i}:{11+4*i}], v6, s[{SX}:{SX+3}], s30 offen offset:{128*i}')
    for i in range(2):
        e(f'buffer_load_dwordx4 v[{16+4*i}:{19+4*i}], v5, s[{SM}:{SM+3}], 0 offen offset:{128*i}')
    for i in range(2):
        e(f'buffer_load_dwordx4 v[{24+4*i}:{27+4*i}], v5, s[{SM}:{SM+3}], 0 offen offset:{1024+128*i}')
    npf = 0
    if prefetch:
        srd(L, SWQ, 48, 512 * 8192)
        srd(L, SKK, 44, 16 << 20)
        srd(L, SVV, 46, 16 << 20)
        e('v_lshlrev_b32 v7, 4, v1')
        e('s_lshl_b32 s32, s31, 4')
        e('s_lshl_b32 s33, s36, 2')
        e('s_add_u32 s32, s32, s33')
        e('s_lshl_b32 s32, s32, 13')
        e('s_lshl_b32 s33, s29, 11')
        e('s_add_u32 s32, s32, s33')
        for r in range(4):
            for hf in range(2):
                e(f'buffer_load_dwordx4 v[96:99], v7, s[{SWQ}:{SWQ+3}], s32 offen offset:{hf*1024}')
                npf += 1
            e('s_add_u32 s32, s32, 8192')
        e('s_lshl_b32 s32, s29, 3')
        e('s_lshr_b32 s33, s31, 2')
        e('s_add_u32 s32, s32, s33')
        e('s_lshl_b32 s32, s32, 19')
        e('s_and_b32 s33, s31, 3')
        e('s_lshl_b32 s33, s33, 2')
        e('s_add_u32 s33, s33, s36')
        e('s_lshl_b32 s33, s33, 11')
        e('s_add_u32 s32, s32, s33')
        for sr in (SKK, SVV):
            for hf in range(2):
                e(f'buffer_load_dwordx4 v[96:99], v7, s[{sr}:{sr+3}], s32 offen offset:{hf*1024}')
                npf += 1
    e('v_lshl_add_u32 v32, v2, 3, v4')
    e('v_lshlrev_b32 v32, 2, v32')
    e('v_lshl_add_u32 v33, v3, 7, v32')
    e('v_lshlrev_b32 v34, 7, v3')
    e(f's_waitcnt vmcnt({4+npf})')
    for r in range(8):
        e(f'v_lshlrev_b32 v{40+2*r}, 16, v{8+r}')
        e(f'v_and_b32 v{41+2*r}, 0xffff0000, v{8+r}')
    e('v_add_f32 v35, v40, v41')
    e('v_add_f32 v36, v42, v43')
    for r in range(4, 16, 2):
        e(f'v_add_f32 v35, v35, v{40+r}')
        e(f'v_add_f32 v36, v36, v{41+r}')
    e('v_add_f32 v35, v35, v36')
    def reduce(src, off, dst):
        e(f'ds_write_b32 v33, v{src} offset:{off}')
        e('s_waitcnt lgkmcnt(0)')
        e('s_barrier')
        for q in range(8):
            e(f'ds_read_b128 v[{64+4*q}:{67+4*q}], v34 offset:{off + 16*q}')
        e('s_waitcnt lgkmcnt(0)')
        for q in range(16):
            e(f'v_add_f32 v{64+q}, v{64+q}, v{80+q}')
        for q in range(8):
            e(f'v_add_f32 v{64+q}, v{64+q}, v{72+q}')
        for q in range(4):
            e(f'v_add_f32 v{64+q}, v{64+q}, v{68+q}')
        e('v_add_f32 v64, v64, v66')
        e('v_add_f32 v65, v65, v67')
        e('v_add_f32 v64, v64, v65')
        e(f'v_mul_f32 v{dst}, 0x3b000000, v64')
    reduce(35, 0, 35)
    e('v_sub_f32 v36, v40, v35')
    e('v_mul_f32 v37, v36, v36')
    e('v_sub_f32 v36, v41, v35')
    e('v_mul_f32 v38, v36, v36')
    for r in range(2, 16):
        e(f'v_sub_f32 v36, v{40+r}, v35')
        e(f'v_fmac_f32 v{37 + (r & 1)}, v36, v36')
    e('v_add_f32 v37, v37, v38')
    reduce(37, 1024, 36)
    rnd_pair(e, 35, 36, 35, 36, 39)
    e('v_add_f32 v36, 0x3727c5ac, v36')
    e('v_cvt_pk_bf16_f32 v36, v36, v36')
    e('v_lshlrev_b32 v36, 16, v36')
    e('v_sqrt_f32 v36, v36')
    e('s_nop 0')
    e('v_cvt_pk_bf16_f32 v36, v36, v36')
    e('v_lshlrev_b32 v36, 16, v36')
    e('v_rcp_f32 v36, v36')
    e(f's_waitcnt vmcnt({npf})')
    for pr in range(8):
        x0, x1 = 40 + 2 * pr, 41 + 2 * pr
        e(f'v_sub_f32 v{x0}, v{x0}, v35')
        e(f'v_sub_f32 v{x1}, v{x1}, v35')
        rnd_pair(e, x0, x1, x0, x1, 39)
        e(f'v_mul_f32 v{x0}, v{x0}, v36')
        e(f'v_mul_f32 v{x1}, v{x1}, v36')
        rnd_pair(e, x0, x1, x0, x1, 39)
        e(f'v_lshlrev_b32 v37, 16, v{24+pr}')
        e(f'v_and_b32 v38, 0xffff0000, v{24+pr}')
        e('v_add_f32 v37, 1.0, v37')
        e('v_add_f32 v38, 1.0, v38')
        rnd_pair(e, 37, 38, 37, 38, 39)
        e(f'v_mul_f32 v{x0}, v{x0}, v37')
        e(f'v_mul_f32 v{x1}, v{x1}, v38')
        rnd_pair(e, x0, x1, x0, x1, 39)
        e(f'v_lshlrev_b32 v37, 16, v{16+pr}')
        e(f'v_and_b32 v38, 0xffff0000, v{16+pr}')
        e(f'v_add_f32 v{x0}, v{x0}, v37')
        e(f'v_add_f32 v{x1}, v{x1}, v38')
        e(f'v_cvt_pk_bf16_f32 v{56+pr}, v{x0}, v{x1}')
    e('v_lshrrev_b32 v5, 1, v4')
    e('v_lshl_add_u32 v5, v2, 3, v5')
    e('v_lshlrev_b32 v5, 10, v5')
    e('v_and_b32 v6, 1, v4')
    e('v_lshl_add_u32 v6, v6, 5, v3')
    e('s_and_b32 s32, s28, 3')
    e('s_lshl_b32 s32, s32, 3')
    e('v_add_u32 v6, s32, v6')
    e('v_lshl_add_u32 v5, v6, 4, v5')
    e('s_lshr_b32 s32, s28, 2')
    e('s_lshl_b32 s32, s32, 15')
    e('s_add_u32 s33, s32, 4096')
    e(f'buffer_store_dwordx4 v[56:59], v5, s[{SH}:{SH+3}], s32 offen')
    e(f'buffer_store_dwordx4 v[60:63], v5, s[{SH}:{SH+3}], s33 offen')
    prof_end(L, 1, 1)
    e(f'{name}_done:')
    e('s_endpgm')
    for h in check_hazards(L, name): print('HAZARD', h)
    return L, kernel_desc(name, 104, 102 if asmlib.PROF else 56, 104), f'; @launch kernel={name} grid=(256,1,1) block=(256,1,1) lds=2048'
```

```python
from asmlib import *
import asmlib
from k_small import *
from k_attn import interleave

PART_OFF = 40 << 20
X1F_OFF = X1_OFF
PF_W = True
BF16P = True

def gen_wo2(name='wo_kernel'):
    KI = 3
    NST = 16
    L = kernel_header(name)
    e = L.append
    vq = Q(63)
    SWT, SB, SD = 8, 12, 16
    S_W, S_MT, S_NT, S_KS, S_T0, S_T1, S_WO, S_BO, S_LW, S_LB = 28, 29, 30, 31, 32, 33, 34, 35, 36, 37
    S_D = 38
    VWD, VH, VAD, VBD = 10, 11, 12, 14
    ACC = 32
    def AF(st, ks, nb): return 16 * st + 8 * 0 + 4 * nb + 8 * 0
    def AFR(st, nb): return 16 * st + 4 * nb
    def BFR(st, rb): return 16 * st + 8 + 4 * rb
    prof_begin(L)
    dstamp(L, KI, 0)
    e('s_cmp_ge_u32 s2, 256')
    e(f's_cbranch_scc1 {name}_done')
    e(f's_load_dwordx2 s[48:49], s[0:1], {KA["wo"]}')
    e(f's_load_dwordx2 s[50:51], s[0:1], {KA["ws"]}')
    e('v_lshrrev_b32 v1, 6, v0')
    e('v_and_b32 v2, 63, v0')
    e(f'v_readfirstlane_b32 s{S_W}, v1')
    e(f's_and_b32 s{S_T0}, s2, 7')
    e(f's_lshr_b32 s{S_T1}, s2, 3')
    e(f's_lshr_b32 s{S_KS}, s{S_T0}, 1')
    e(f's_and_b32 s{S_T0}, s{S_T0}, 1')
    e(f's_lshl_b32 s{S_MT}, s{S_T0}, 3')
    e(f's_and_b32 s{S_T0}, s{S_T1}, 7')
    e(f's_add_u32 s{S_MT}, s{S_MT}, s{S_T0}')
    e(f's_lshr_b32 s{S_NT}, s{S_T1}, 3')
    e('v_lshrrev_b32 v3, 4, v2')
    e('v_and_b32 v4, 15, v2')
    e('v_lshlrev_b32 v5, 2, v3')
    e('v_xor_b32 v5, v5, v4')
    e(f's_lshl_b32 s{S_T0}, s{S_W}, 4')
    e(f'v_add_u32 v6, s{S_T0}, v3')
    e('v_lshlrev_b32 v6, 10, v6')
    e(f'v_lshl_add_u32 v{VWD}, v5, 4, v6')
    e(f's_lshl_b32 s{S_T0}, s{S_NT}, 8')
    e(f'v_add_u32 v{VWD}, s{S_T0}, v{VWD}')
    e(f'v_lshlrev_b32 v{VH}, 4, v2')
    e(f's_lshl_b32 s{S_WO}, s{S_KS}, 20')
    e(f's_lshl_b32 s{S_T0}, s{S_MT}, 2')
    e(f's_add_u32 s{S_T0}, s{S_T0}, s{S_W}')
    e(f's_lshl_b32 s{S_BO}, s{S_T0}, 18')
    e(f's_lshl_b32 s{S_T1}, s{S_KS}, 16')
    e(f's_add_u32 s{S_BO}, s{S_BO}, s{S_T1}')
    e(f's_lshl_b32 s{S_LW}, s{S_W}, 12')
    e(f's_add_u32 s{S_LB}, s{S_LW}, 16384')
    e('s_waitcnt lgkmcnt(0)')
    srd(L, SWT, 48, 4096 * 1024)
    srd_off(L, SB, 50, O_OFF, 2048 * 8192)
    def issue(s_):
        ops = []
        base = (s_ % 4) * 32768
        ops.append((f's_add_u32 m0, s{S_LB}, {base}', 2))
        ops.append((f's_add_u32 s{S_T1}, s{S_BO}, {s_*4096}', 2))
        for i in range(4):
            ops.append((f'buffer_load_dwordx4 v{VH}, s[{SB}:{SB+3}], s{S_T1} offen offset:{i*1024} lds', 8, ('S', s_)))
        for i in range(4):
            ops.append((f's_add_u32 m0, s{S_LW}, {base + i*1024}', 2))
            ops.append((f's_add_u32 s{S_T0}, s{S_WO}, {(64*s_ + 4*i)*1024}', 2))
            ops.append((f'buffer_load_dwordx4 v{VWD}, s[{SWT}:{SWT+3}], s{S_T0} offen lds', 8, ('S', s_)))
        return ops
    def emit_ops(ops):
        for o in ops:
            e(o[0])
            if len(o) > 2: vq.issue(o[2])
    dstamp(L, KI, 1)
    emit_ops(issue(0)); emit_ops(issue(1))
    dstamp(L, KI, 2)
    e('v_lshrrev_b32 v5, 2, v4')
    e('v_and_b32 v6, 3, v2')
    e('v_lshrrev_b32 v7, 1, v3')
    e('v_and_b32 v8, 1, v3')
    e('v_lshl_add_u32 v7, v7, 2, v5')
    e('v_lshlrev_b32 v7, 8, v7')
    e('v_lshl_add_u32 v7, v8, 5, v7')
    e('v_lshl_add_u32 v7, v6, 3, v7')
    e(f's_and_b32 s{S_T0}, s{S_W}, 1')
    e(f's_lshl_b32 s{S_T0}, s{S_T0}, 1')
    for nb in range(2):
        e(f's_add_u32 s{S_T1}, s{S_T0}, {nb}')
        e(f'v_xor_b32 v9, s{S_T1}, v5')
        e(f'v_lshl_add_u32 v{VAD+nb}, v9, 6, v7')
        e(f'v_add_u32 v{VAD+4+nb}, 0x10000, v{VAD+nb}')
    e(f's_lshr_b32 s{S_T0}, s{S_W}, 1')
    e(f's_lshl_b32 s{S_T0}, s{S_T0}, 13')
    e(f's_add_u32 s{S_T0}, s{S_T0}, 16384')
    e(f'v_add_u32 v{VBD}, s{S_T0}, v{VH}')
    e(f'v_add_u32 v{VBD+4}, 0x10000, v{VBD}')
    srd_off(L, SD, 50, PART_OFF, 16 << 20)
    e(f's_lshl_b32 s{S_T0}, s{S_MT}, 2')
    e(f's_lshr_b32 s{S_T1}, s{S_W}, 1')
    e(f's_lshl_b32 s{S_T1}, s{S_T1}, 1')
    e(f's_add_u32 s{S_T0}, s{S_T0}, s{S_T1}')
    e(f's_lshl_b32 s{S_T0}, s{S_T0}, 4')
    e(f's_lshl_b32 s{S_T1}, s{S_NT}, 2')
    e(f's_add_u32 s{S_T0}, s{S_T0}, s{S_T1}')
    e(f's_and_b32 s{S_T1}, s{S_W}, 1')
    e(f's_lshl_b32 s{S_T1}, s{S_T1}, 1')
    e(f's_add_u32 s{S_T0}, s{S_T0}, s{S_T1}')
    SH_ = 1 if BF16P else 0
    e(f's_lshl_b32 s{S_T0}, s{S_T0}, {12-SH_}')
    e(f's_lshl_b32 s{S_T1}, s{S_KS}, {22-SH_}')
    e(f's_add_u32 s{S_D}, s{S_T0}, s{S_T1}')
    e(f's_add_u32 s{S_D+1}, s{S_D}, {4096>>SH_}')
    e(f's_add_u32 s{S_D+2}, s{S_D}, {65536>>SH_}')
    e(f's_add_u32 s{S_D+3}, s{S_D+2}, {4096>>SH_}')
    def reads(kk):
        s_, ks = kk // 4, kk % 4
        st = kk % 2
        base = (s_ % 4) * 32768
        hi = 4 if base >= 65536 else 0
        base &= 0xffff
        ops = []
        for rb in range(2):
            ops.append((f'ds_read_b128 {a(BFR(st,rb),4)}, v{VBD+hi} offset:{base + rb*4096 + ks*1024}', 4))
        for nb in range(2):
            for aa in range(2):
                ops.append((f'ds_read_b64_tr_b16 {a(AFR(st,nb)+2*aa,2)}, v{VAD+hi+nb} offset:{base + (16*ks+8*aa)*256}', 4))
        return ops
    def mfmas(kk):
        st = kk % 2
        m = []
        for nb in range(2):
            for rb in range(2):
                acc = ACC + 16 * (2 * rb + nb)
                c = '0' if kk == 0 else v(acc, 16)
                m.append((f'v_mfma_f32_32x32x16_bf16 {v(acc,16)}, {a(AFR(st,nb),4)}, {a(BFR(st,rb),4)}, {c}', 24))
        return m
    n = vq.wait_for(lambda x: x == ('S', 0))
    e(f's_waitcnt vmcnt({n})')
    e('s_barrier')
    dstamp(L, KI, 3)
    L += [x[0] for x in reads(0)]
    pend = issue(2) + issue(3)
    for kk in range(4 * NST):
        s_, ks = kk // 4, kk % 4
        if kk == 2 * NST: dstamp(L, KI, 4)
        e('s_waitcnt lgkmcnt(0)')
        if ks == 3 and s_ + 1 < NST:
            n = vq.wait_for(lambda x: x == ('S', s_ + 1))
            if n is not None: e(f's_waitcnt vmcnt({n})')
            e('s_barrier')
            if s_ + 4 < NST:
                pend += issue(s_ + 4)
        take = []
        if pend:
            cnt = 0
            lim = 4 if s_ == 0 else 2
            while pend and (cnt < lim or len(pend[0]) == 2 and False):
                o = pend.pop(0); take.append(o)
                if len(o) > 2: cnt += 1
        qs = []
        if kk + 1 < 4 * NST:
            qs.append(dict(items=reads(kk + 1), start=0, end=2))
        if take:
            qs.append(dict(items=[(o[0], o[1]) for o in take], start=0, end=3))
        L += interleave(mfmas(kk), qs)
        for o in take:
            if len(o) > 2: vq.issue(o[2])
    assert not pend
    dstamp(L, KI, 5)
    e('s_nop 11')
    for rb in range(2):
        for nb in range(2):
            acc = ACC + 16 * (2 * rb + nb)
            if BF16P:
                for b in range(2):
                    pk = 20 + 4 * b
                    for i in range(4):
                        e(f'v_cvt_pk_bf16_f32 v{pk+i}, v{acc+8*b+2*i}, v{acc+8*b+2*i+1}')
                    e(f'buffer_store_dwordx4 {v(pk,4)}, v{VH}, s[{SD}:{SD+3}], s{S_D+2*rb+nb} offen offset:{b*1024}')
                e('s_nop 0')
            else:
                for g in range(4):
                    e(f'buffer_store_dwordx4 {v(acc+4*g,4)}, v{VH}, s[{SD}:{SD+3}], s{S_D+2*rb+nb} offen offset:{g*1024}')
    dstamp(L, KI, 6)
    dstamp_store(L, KI, 7)
    prof_end(L, KI, 1)
    e(f'{name}_done:')
    e('s_endpgm')
    for h in check_hazards(L, name): print('HAZARD', h)
    return L, kernel_desc(name, 96 + 32, 102, 96), f'; @launch kernel={name} grid=(256,1,1) block=(256,1,1) lds=131072'


def gen_ln2r(name='ln2_kernel'):
    L = kernel_header(name)
    e = L.append
    prof_begin(L)
    SP, SX, SM, SH2, SX1 = 8, 12, 16, 20, 24
    e('s_cmp_ge_u32 s2, 256')
    e(f's_cbranch_scc1 {name}_done')
    e(f's_load_dwordx2 s[4:5], s[0:1], {KA["x"]}')
    e(f's_load_dwordx2 s[6:7], s[0:1], {KA["ws"]}')
    e('v_and_b32 v1, 63, v0')
    e('v_lshrrev_b32 v2, 6, v0')
    e('v_and_b32 v3, 7, v1')
    e('v_bfe_u32 v4, v1, 3, 1')
    e('v_bfe_u32 v5, v1, 4, 1')
    e('v_lshrrev_b32 v6, 5, v1')
    e('v_lshl_add_u32 v7, v2, 2, v6')
    e('s_and_b32 s38, s2, 1')
    e('s_lshl_b32 s38, s38, 7')
    e('s_bfe_u32 s39, s2, 0x20001')
    e('s_lshl_b32 s39, s39, 5')
    e('s_add_u32 s38, s38, s39')
    e('s_lshr_b32 s39, s2, 3')
    e('s_add_u32 s38, s38, s39')
    e('s_and_b32 s3, s38, 3')
    e('s_lshl_b32 s3, s3, 3')
    e('v_add_u32 v8, s3, v3')
    e('s_lshr_b32 s28, s38, 2')
    SH_ = 1 if BF16P else 0
    e('v_lshl_add_u32 v9, v4, 5, v8')
    e('v_lshlrev_b32 v9, 4, v9')
    e(f'v_lshl_add_u32 v9, v5, {11-SH_}, v9')
    e(f'v_lshl_add_u32 v9, v7, {12-SH_}, v9')
    e(f'v_add_u32 v10, {0x2000>>SH_}, v9')
    e(f's_lshl_b32 s29, s28, {16-SH_}')
    for ks in range(1, 4):
        e(f's_add_u32 s{29+ks}, s{28+ks}, {(4<<20)>>SH_}')
    e('v_lshlrev_b32 v11, 6, v7')
    e('v_lshl_add_u32 v11, v5, 5, v11')
    e('v_lshl_add_u32 v11, v4, 3, v11')
    e('v_lshl_add_u32 v12, v3, 10, v11')
    e('s_lshl_b32 s33, s38, 13')
    e('s_waitcnt lgkmcnt(0)')
    srd_off(L, SP, 6, PART_OFF, 16 << 20)
    srd(L, SX, 4, 2048 * 1024)
    srd_off(L, SM, 6, MOD_OFF, 6144)
    srd_off(L, SH2, 6, H2_OFF, 2048 * 1024)
    srd_off(L, SX1, 6, X1F_OFF, 2048 * 1024)
    for ks in range(4):
        for i in range(2):
            if BF16P:
                r = 64 + 8 * ks + 4 * i
                e(f'buffer_load_dwordx4 v[{r}:{r+3}], v{9+i}, s[{SP}:{SP+3}], s{29+ks} offen')
                continue
            for aa in range(2):
                r = 32 + 16 * ks + 4 * (2 * i + aa)
                e(f'buffer_load_dwordx4 v[{r}:{r+3}], v{9+i}, s[{SP}:{SP+3}], s{29+ks} offen offset:{aa*1024}')
    for i in range(2):
        for aa in range(2):
            q = 2 * i + aa
            e(f'buffer_load_dwordx2 v[{96+2*q}:{97+2*q}], v12, s[{SX}:{SX+3}], s33 offen offset:{128*i + 16*aa}')
    e('s_movk_i32 s34, 4096')
    for (base, off) in ((104, 2048), (112, 3072), (120, None)):
        for i in range(2):
            for aa in range(2):
                q = 2 * i + aa
                if off is None:
                    e(f'buffer_load_dwordx2 v[{base+2*q}:{base+1+2*q}], v11, s[{SM}:{SM+3}], s34 offen offset:{128*i + 16*aa}')
                else:
                    e(f'buffer_load_dwordx2 v[{base+2*q}:{base+1+2*q}], v11, s[{SM}:{SM+3}], 0 offen offset:{off + 128*i + 16*aa}')
    e('v_lshrrev_b32 v13, 3, v1')
    e('v_lshl_add_u32 v13, v2, 3, v13')
    e('v_lshlrev_b32 v13, 2, v13')
    e('v_lshl_add_u32 v13, v3, 7, v13')
    e('v_lshlrev_b32 v14, 7, v3')
    npf = 0
    if PF_W:
        e(f's_load_dwordx4 s[40:43], s[0:1], {KA["wg"]}')
        e('v_lshlrev_b32 v22, 4, v1')
        e('v_min_u32 v22, 880, v22')
        e('v_readfirstlane_b32 s36, v2')
        e('s_lshr_b32 s37, s2, 3')
        e('s_lshl_b32 s37, s37, 4')
        e('s_lshl_b32 s36, s36, 2')
        e('s_add_u32 s37, s37, s36')
        e('s_mul_i32 s37, s37, 3584')
        e('s_bfe_u32 s36, s2, 0x20001')
        e('s_mul_i32 s36, s36, 896')
        e('s_add_u32 s37, s37, s36')
        e('s_waitcnt lgkmcnt(0)')
        srd(L, 44, 40, 512 * 3584)
        srd(L, 48, 42, 512 * 3584)
        for r in range(4):
            for sr in (44, 48):
                e(f'buffer_load_dwordx4 v[24:27], v22, s[{sr}:{sr+3}], s37 offen')
                npf += 1
            e('s_add_u32 s37, s37, 3584')
    e(f's_waitcnt vmcnt({16+npf})')
    if BF16P:
        for q in range(8):
            e(f'v_lshlrev_b32 v{32+2*q}, 16, v{64+q}')
            e(f'v_and_b32 v{33+2*q}, 0xffff0000, v{64+q}')
        for ks in range(1, 4):
            for q in range(8):
                e(f'v_lshlrev_b32 v16, 16, v{64+8*ks+q}')
                e(f'v_and_b32 v17, 0xffff0000, v{64+8*ks+q}')
                e(f'v_add_f32 v{32+2*q}, v{32+2*q}, v16')
                e(f'v_add_f32 v{33+2*q}, v{33+2*q}, v17')
    else:
        for i in range(16):
            e(f'v_add_f32 v{32+i}, v{32+i}, v{48+i}')
            e(f'v_add_f32 v{64+i}, v{64+i}, v{80+i}')
        for i in range(16):
            e(f'v_add_f32 v{32+i}, v{32+i}, v{64+i}')
    e(f's_waitcnt vmcnt({8+npf})')
    for pr in range(8):
        x0, x1 = 32 + 2 * pr, 33 + 2 * pr
        rnd_pair(e, x0, x1, x0, x1, 15)
        e(f'v_lshlrev_b32 v16, 16, v{104+pr}')
        e(f'v_and_b32 v17, 0xffff0000, v{104+pr}')
        e(f'v_mul_f32 v{x0}, v{x0}, v16')
        e(f'v_mul_f32 v{x1}, v{x1}, v17')
        rnd_pair(e, x0, x1, x0, x1, 15)
        e(f'v_lshlrev_b32 v16, 16, v{96+pr}')
        e(f'v_and_b32 v17, 0xffff0000, v{96+pr}')
        e(f'v_add_f32 v{x0}, v{x0}, v16')
        e(f'v_add_f32 v{x1}, v{x1}, v17')
        e(f'v_cvt_pk_bf16_f32 v{48+pr}, v{x0}, v{x1}')
        e(f'v_lshlrev_b32 v{x0}, 16, v{48+pr}')
        e(f'v_and_b32 v{x1}, 0xffff0000, v{48+pr}')
    e('v_and_b32 v18, 15, v8')
    e('v_lshl_add_u32 v19, v5, 1, v4')
    e('v_lshl_add_u32 v18, v19, 4, v18')
    e('v_lshlrev_b32 v18, 4, v18')
    e('v_lshl_add_u32 v18, v7, 10, v18')
    e('s_lshr_b32 s35, s38, 1')
    e('s_lshl_b32 s35, s35, 14')
    e(f'buffer_store_dwordx4 v[48:51], v18, s[{SX1}:{SX1+3}], s35 offen')
    e(f'buffer_store_dwordx4 v[52:55], v18, s[{SX1}:{SX1+3}], s35 offen offset:2048')
    e('v_add_f32 v20, v32, v33')
    e('v_add_f32 v21, v34, v35')
    for r in range(4, 16, 2):
        e(f'v_add_f32 v20, v20, v{32+r}')
        e(f'v_add_f32 v21, v21, v{33+r}')
    e('v_add_f32 v20, v20, v21')
    e('ds_write_b32 v13, v20')
    e('s_waitcnt lgkmcnt(0)')
    e('s_barrier')
    for q in range(8):
        e(f'ds_read_b128 v[{64+4*q}:{67+4*q}], v14 offset:{16*q}')
    e('s_waitcnt lgkmcnt(0)')
    for q in range(16):
        e(f'v_add_f32 v{64+q}, v{64+q}, v{80+q}')
    for q in range(8):
        e(f'v_add_f32 v{64+q}, v{64+q}, v{72+q}')
    for q in range(4):
        e(f'v_add_f32 v{64+q}, v{64+q}, v{68+q}')
    e('v_add_f32 v64, v64, v66')
    e('v_add_f32 v65, v65, v67')
    e('v_add_f32 v64, v64, v65')
    e('v_mul_f32 v20, 0x3b000000, v64')
    e('v_sub_f32 v21, v32, v20')
    e('v_mul_f32 v22, v21, v21')
    e('v_sub_f32 v21, v33, v20')
    e('v_mul_f32 v23, v21, v21')
    for r in range(2, 16):
        e(f'v_sub_f32 v21, v{32+r}, v20')
        e(f'v_fmac_f32 v{22 + (r & 1)}, v21, v21')
    e('v_add_f32 v22, v22, v23')
    e('ds_write_b32 v13, v22 offset:1024')
    e('s_waitcnt lgkmcnt(0)')
    e('s_barrier')
    for q in range(8):
        e(f'ds_read_b128 v[{64+4*q}:{67+4*q}], v14 offset:{1024 + 16*q}')
    e('s_waitcnt lgkmcnt(0)')
    for q in range(16):
        e(f'v_add_f32 v{64+q}, v{64+q}, v{80+q}')
    for q in range(8):
        e(f'v_add_f32 v{64+q}, v{64+q}, v{72+q}')
    for q in range(4):
        e(f'v_add_f32 v{64+q}, v{64+q}, v{68+q}')
    e('v_add_f32 v64, v64, v66')
    e('v_add_f32 v65, v65, v67')
    e('v_add_f32 v64, v64, v65')
    e('v_mul_f32 v21, 0x3b000000, v64')
    rnd_pair(e, 20, 21, 20, 21, 15)
    e('v_add_f32 v21, 0x3727c5ac, v21')
    e('v_cvt_pk_bf16_f32 v21, v21, v21')
    e('v_lshlrev_b32 v21, 16, v21')
    e('v_sqrt_f32 v21, v21')
    e('s_nop 0')
    e('v_cvt_pk_bf16_f32 v21, v21, v21')
    e('v_lshlrev_b32 v21, 16, v21')
    e('v_rcp_f32 v21, v21')
    e(f's_waitcnt vmcnt({2+npf})')
    for pr in range(8):
        x0, x1 = 32 + 2 * pr, 33 + 2 * pr
        e(f'v_sub_f32 v{x0}, v{x0}, v20')
        e(f'v_sub_f32 v{x1}, v{x1}, v20')
        rnd_pair(e, x0, x1, x0, x1, 15)
        e(f'v_mul_f32 v{x0}, v{x0}, v21')
        e(f'v_mul_f32 v{x1}, v{x1}, v21')
        rnd_pair(e, x0, x1, x0, x1, 15)
        e(f'v_lshlrev_b32 v16, 16, v{120+pr}')
        e(f'v_and_b32 v17, 0xffff0000, v{120+pr}')
        e('v_add_f32 v16, 1.0, v16')
        e('v_add_f32 v17, 1.0, v17')
        rnd_pair(e, 16, 17, 16, 17, 15)
        e(f'v_mul_f32 v{x0}, v{x0}, v16')
        e(f'v_mul_f32 v{x1}, v{x1}, v17')
        rnd_pair(e, x0, x1, x0, x1, 15)
        e(f'v_lshlrev_b32 v16, 16, v{112+pr}')
        e(f'v_and_b32 v17, 0xffff0000, v{112+pr}')
        e(f'v_add_f32 v{x0}, v{x0}, v16')
        e(f'v_add_f32 v{x1}, v{x1}, v17')
        e(f'v_cvt_pk_bf16_f32 v{56+pr}, v{x0}, v{x1}')
    e(f'buffer_store_dwordx4 v[56:59], v18, s[{SH2}:{SH2+3}], s35 offen')
    e(f'buffer_store_dwordx4 v[60:63], v18, s[{SH2}:{SH2+3}], s35 offen offset:2048')
    prof_end(L, 4, 1)
    e(f'{name}_done:')
    e('s_endpgm')
    for h in check_hazards(L, name): print('HAZARD', h)
    return L, kernel_desc(name, 128, 102, 128), f'; @launch kernel={name} grid=(256,1,1) block=(256,1,1) lds=2048'
```

```python
import sys
from asmlib import *
from k_small import *
from k_attn import *
from k_gemm import *
import k_attn2, k_attn3
from k_wo2 import *
from k_pre import *
from k_pre3 import *

def build(kernels, path):
    hdr = [l.rstrip('\n') for l in open('adaLN_cond__mha_block_cached__geglu_ffn__prompt.s.ref') if l.startswith(';') and '@launch' not in l]
    out = hdr + [k[2] for k in kernels]
    out += ['.amdgcn_target "amdgcn-amd-amdhsa--gfx950"', '.text']
    seen = set()
    for k in kernels:
        nm = k[0][0]
        if nm in seen: continue
        seen.add(nm)
        out += k[0]
    out += ['.section .rodata,"a"']
    seen = set()
    for k in kernels:
        nm = k[0][0]
        if nm in seen: continue
        seen.add(nm)
        out += ['.p2align 6'] + k[1]
    open(path, 'w').write('\n'.join(out) + '\n')

if __name__ == '__main__':
    import k_attn, asmlib
    asmlib.PROF = 'tl' in sys.argv
    asmlib.CLAIM = 'noclaim' not in sys.argv
    for x in sys.argv:
        if x.startswith('st='): asmlib.STAMPK = int(x[3:])
    k_attn.FAKE16 = 'fake16' in sys.argv
    k_attn.NOVALU = 'novalu' in sys.argv
    k_attn.NOLDS = 'nolds' in sys.argv
    k_attn.NODMA = 'nodma' in sys.argv
    k_attn.PROFQ = 'profq' in sys.argv
    k_attn.WQLIN = 'wqlin' in sys.argv
    k_attn.NOH = 'noh' in sys.argv
    k_attn2.USE_PK = 'pk' in sys.argv
    k_attn2.ABL = set(x[4:] for x in sys.argv if x.startswith('abl-'))
    k_attn2.TWOACC = 'two' in sys.argv
    for x in sys.argv:
        if x.startswith('cost='):
            k_attn2.CV, k_attn2.CE, k_attn2.CD, k_attn2.CM, k_attn2.CS = [int(y) for y in x[5:].split(',')]
    import k_gemm, k_pre
    for x in sys.argv:
        if x.startswith('sleep='): k_pre.SLEEP = int(x[6:])
        if x == 'sc1': k_pre.SC = 'sc1'
    for x in sys.argv:
        if x.startswith('ffnlim='): k_gemm.FFN_LIM = [int(y) for y in x[7:].split(',')]
        if x.startswith('spk='): k_gemm.SPK = [int(y) for y in x[4:].split(',')]
    ks = ([gen_mod2(), gen_ln1v2()] if 'nofuse' in sys.argv else [gen_pre()] if 'pre2' in sys.argv else [gen_pre3_full()]) + [ (gen_attn(prof='prof' in sys.argv) if 'old' in sys.argv else k_attn2.gen_attn() if 'a2' in sys.argv else k_attn3.gen_attn())]
    ks.append(gen_wo2())
    ks.append(gen_ln2r())
    ks.append(gen_ffn1())
    ks.append(gen_splitk('down_kernel', 16, 1792, KA['wd'], ACT_OFF, 2048*3584, ('wsf', X1_OFF), 5120, ('out',)))
    if 'dup' in sys.argv:
        k2 = gen_splitk('wo2_kernel', 32, 4096, KA['wo'], O_OFF, 2048*8192, ('in', KA['x']), 2048, ('ws', X1_OFF))
        k2 = ([l.replace(str(asmlib.PROF_OFF + 3*65536), str(asmlib.PROF_OFF + 7*65536)) for l in k2[0]], k2[1], k2[2])
        ks = ks[:4] + [k2]
    build(ks, sys.argv[1] if len(sys.argv) > 1 else 'cur.s')
```

```python
import re

TRANS = ('v_exp_f32', 'v_log_f32', 'v_rcp_f32', 'v_rsq_f32', 'v_sqrt_f32', 'v_sin_f32', 'v_cos_f32', 'v_rcp_iflag_f32')

def v(i, n=1):
    return f'v{i}' if n == 1 else f'v[{i}:{i+n-1}]'
def a(i, n=1):
    return f'a{i}' if n == 1 else f'a[{i}:{i+n-1}]'
def s(i, n=1):
    return f's{i}' if n == 1 else f's[{i}:{i+n-1}]'

_REG = re.compile(r'^(-|abs\()?([vas])(?:(\d+)|\[(\d+):(\d+)\])\)?$')

def regs_of(tok):
    tok = tok.strip()
    tok = tok.strip('|')
    if tok in ('vcc', 'exec', 'm0', 'scc'):
        return {(tok, 0)}
    m = _REG.match(tok)
    if not m:
        return set()
    f = m.group(2)
    if m.group(3) is not None:
        lo = hi = int(m.group(3))
    else:
        lo, hi = int(m.group(4)), int(m.group(5))
    return {(f, i) for i in range(lo, hi + 1)}

class Ins:
    __slots__ = ('text', 'op', 'ops', 'wr', 'rd', 'kind', 'passes', 'srcc', 'states', 'ab')
    def __init__(self, text):
        self.text = text
        t = text.split(';')[0].strip()
        self.kind = None; self.wr = set(); self.rd = set(); self.passes = 0; self.srcc = set(); self.states = 1; self.ab = set()
        if not t or t.endswith(':') or t.startswith('.'):
            self.op = None; self.states = 0
            return
        parts = t.split(None, 1)
        op = parts[0]; self.op = op
        rest = parts[1] if len(parts) > 1 else ''
        ops = []; depth = 0; cur = ''
        for ch in rest:
            if ch == '[' or ch == '(': depth += 1
            if ch == ']' or ch == ')': depth -= 1
            if ch == ',' and depth == 0:
                ops.append(cur.strip()); cur = ''
            else:
                cur += ch
        if cur.strip(): ops.append(cur.strip())
        mods = ''
        if ops:
            sp = ops[-1].split(None, 1)
            ops[-1] = sp[0]
            mods = sp[1] if len(sp) > 1 else ''
        self.ops = ops
        R = [regs_of(o) for o in ops]
        if op.startswith('v_mfma'):
            self.kind = 'mfma'
            self.passes = 8 if '32x32' in op else 4
            self.wr = R[0]; self.rd = R[1] | R[2] | R[3]; self.srcc = R[3]; self.ab = R[1] | R[2]
        elif op.startswith('v_cmp'):
            self.kind = 'valu'; self.wr = R[0]; self.rd = set().union(*R[1:])
        elif op.startswith('v_permlane') and 'swap' in op:
            self.kind = 'valu'; self.wr = R[0] | R[1]; self.rd = R[0] | R[1]
        elif op.startswith('v_'):
            self.kind = 'valu'
            self.wr = set(R[0]); self.rd = set().union(*R[1:]) if len(R) > 1 else set()
            if op.startswith(('v_add_co', 'v_sub_co', 'v_addc_co', 'v_subb_co')):
                self.wr |= R[1]
            if op.startswith(('v_fmac', 'v_dot2c', 'v_pk_fmac')):
                self.rd |= R[0]
            if op.startswith('v_cndmask') and len(ops) == 3:
                self.rd |= {('vcc', 0)}
            if 'dpp' in op or 'row_' in mods or 'quad_perm' in mods:
                self.kind = 'dpp'
        elif op.startswith('ds_read') or op.startswith('ds_bpermute') or op.startswith('ds_swizzle'):
            self.kind = 'ds'; self.wr = R[0]; self.rd = set().union(*R[1:])
        elif op.startswith('ds_'):
            self.kind = 'ds'; self.rd = set().union(*R)
        elif op.startswith('buffer_load') or op.startswith('global_load'):
            self.kind = 'vmem'
            if ' lds' in (' ' + mods) or 'load_lds' in op:
                self.rd = set().union(*R) | {('m0', 0)}
                self.kind = 'dma'
            else:
                self.wr = R[0]; self.rd = set().union(*R[1:])
        elif op.startswith('buffer_store') or op.startswith('global_store'):
            self.kind = 'vstore'; self.rd = set().union(*R)
        elif op.startswith('buffer_atomic') or op.startswith('global_atomic'):
            self.kind = 'vmem'; self.rd = set().union(*R)
            if 'sc0' in mods: self.wr = R[0]
        elif op == 's_nop':
            self.kind = 'salu'; self.states = int(ops[0], 0) + 1
        elif op.startswith(('s_cmp', 's_waitcnt', 's_barrier', 's_branch', 's_cbranch', 's_endpgm', 's_setprio', 's_sleep', 'buffer_wbl2', 'buffer_inv')):
            self.kind = 'salu'; self.rd = set().union(*R) if R else set()
        elif op.startswith('s_load') or op.startswith('s_buffer_load') or op.startswith('s_mem'):
            self.kind = 'smem'; self.wr = R[0]; self.rd = set().union(*R[1:]) if len(R) > 1 else set()
        elif op.startswith('s_'):
            self.kind = 'salu'; self.wr = set(R[0]); self.rd = set().union(*R[1:]) if len(R) > 1 else set()
            if 'saveexec' in op: self.wr |= {('exec', 0)}
        else:
            raise ValueError('unknown instruction ' + text)

def check_hazards(lines, name=''):
    ins = [Ins(l) for l in lines]
    ins = [i for i in ins if i.op]
    out = []
    n = len(ins)
    for j in range(n):
        c = ins[j]
        dist = 0
        for i in range(j - 1, max(-1, j - 24), -1):
            p = ins[i]
            need = 0; why = ''
            isval = lambda k: k in ('valu', 'dpp')
            if isval(p.kind) and c.kind == 'mfma' and (p.wr & c.rd):
                need = 2; why = 'valu->mfma'
            if p.kind == 'mfma':
                big = p.passes == 8
                if c.kind == 'mfma':
                    if p.wr & c.ab:
                        need = max(need, 12 if big else 8); why = 'mfma D->mfma AB'
                    if p.wr & c.srcc and not (p.wr == c.srcc and p.passes == c.passes):
                        need = max(need, 10 if big else 6); why = 'mfma D->mfma C overlap'
                    if (p.wr & c.wr) and not (p.wr & c.srcc):
                        need = max(need, 10 if big else 6); why = 'mfma D->mfma D WAW'
                elif c.kind in ('valu', 'dpp', 'ds', 'vmem', 'vstore', 'dma'):
                    if p.wr & (c.rd | c.wr):
                        need = max(need, 12 if big else 8); why = 'mfma D->' + c.kind
                    if isval(c.kind) and (p.srcc & c.wr):
                        need = max(need, 7 if big else 3); why = 'mfma C WAR valu'
            if isval(p.kind) and p.op.replace('_e32', '').replace('_e64', '') in TRANS and isval(c.kind) and c.op.replace('_e32', '').replace('_e64', '') not in TRANS and (p.wr & c.rd):
                need = max(need, 1); why = 'trans->valu'
            if isval(p.kind) and c.op.startswith('v_permlane') and (p.wr & c.rd):
                need = max(need, 2); why = 'valu->permlane'
            if isval(p.kind) and c.kind == 'dpp' and (p.wr & c.rd):
                need = max(need, 2); why = 'valu->dpp'
            if isval(p.kind) and c.op.startswith(('v_readfirstlane', 'v_readlane')) and (p.wr & c.rd):
                need = max(need, 1); why = 'valu->readlane'
            if isval(p.kind):
                sw = {r for r in p.wr if r[0] in ('s', 'vcc')}
                if sw and c.kind in ('vmem', 'vstore', 'dma') and (sw & c.rd):
                    need = max(need, 5); why = 'valu sgpr->vmem'
                if sw and isval(c.kind) and (sw & c.rd):
                    need = max(need, 2); why = 'valu sgpr->valu'
            if p.kind == 'salu' and (('m0', 0) in p.wr) and c.kind == 'dma':
                need = max(need, 1); why = 'm0->dma'
            if p.kind == 'vstore' and ('x4' in p.op or 'x3' in p.op) and isval(c.kind):
                data = regs_of(p.ops[0]) if p.op.startswith('buffer') else regs_of(p.ops[1])
                if data & c.wr:
                    need = max(need, 2); why = 'store data WAR'
            if need > dist:
                out.append(f'{name}: hazard {why}: need {need} have {dist}: [{p.text.strip()}] -> [{c.text.strip()}]')
            dist += p.states
            if dist >= 20: break
    return out

class Q:
    def __init__(self, maxc):
        self.items = []; self.maxc = maxc
    def issue(self, tag):
        self.items.append(tag)
    def wait_for(self, pred):
        last = -1
        for i, t in enumerate(self.items):
            if pred(t): last = i
        if last < 0:
            return None
        n = len(self.items) - 1 - last
        n = min(n, self.maxc)
        self.items = self.items[len(self.items) - n:] if n > 0 else []
        return n
    def copy(self):
        q = Q(self.maxc); q.items = list(self.items); return q

def kernel_header(name):
    return [f'.globl {name}', '.p2align 8', f'.type {name},@function', f'{name}:']

def kernel_desc(name, vgpr, sgpr, accum):
    return [f'.amdhsa_kernel {name}',
            f'  .amdhsa_next_free_vgpr {vgpr}',
            f'  .amdhsa_next_free_sgpr {sgpr}',
            f'  .amdhsa_accum_offset {accum}',
            '  .amdhsa_group_segment_fixed_size 0',
            '  .amdhsa_kernarg_size 112',
            '  .amdhsa_user_sgpr_count 2',
            '  .amdhsa_user_sgpr_kernarg_segment_ptr 1',
            '  .amdhsa_system_sgpr_workgroup_id_x 1',
            '  .amdhsa_float_denorm_mode_32 3',
            '.end_amdhsa_kernel']

def srd(L, d, base, nbytes):
    L.append(f's_mov_b32 s{d}, s{base}')
    L.append(f's_and_b32 s{d+1}, s{base+1}, 0xffff')
    L.append(f's_mov_b32 s{d+2}, {nbytes}')
    L.append(f's_mov_b32 s{d+3}, 0x00020000')

def srd_off(L, d, base, off, nbytes):
    L.append(f's_add_u32 s{d}, s{base}, {off}')
    L.append(f's_addc_u32 s{d+1}, s{base+1}, 0')
    L.append(f's_and_b32 s{d+1}, s{d+1}, 0xffff')
    L.append(f's_mov_b32 s{d+2}, {nbytes}')
    L.append(f's_mov_b32 s{d+3}, 0x00020000')

PROF = False
PROF_OFF = 96 << 20
def prof_begin(L):
    import asmlib as _a
    global PROF
    PROF = _a.PROF
    if PROF:
        L.append('s_memrealtime s[90:91]')

def prof_end(L, kidx, vtmp=1):
    import asmlib as _a
    global PROF
    PROF = _a.PROF
    if not PROF: return
    e = L.append
    e('s_waitcnt vmcnt(0) lgkmcnt(0)')
    e('s_memrealtime s[92:93]')
    e('s_load_dwordx2 s[94:95], s[0:1], 104')
    e('s_waitcnt lgkmcnt(0)')
    e(f's_add_u32 s96, s94, {PROF_OFF + kidx * 65536}')
    e('s_addc_u32 s97, s95, 0')
    e('s_and_b32 s97, s97, 0xffff')
    e('s_mov_b32 s98, 65536')
    e('s_mov_b32 s99, 0x00020000')
    e('s_mov_b64 exec, -1')
    e(f'v_lshrrev_b32 v{vtmp}, 6, v0')
    e(f'v_lshlrev_b32 v{vtmp}, 3, v{vtmp}')
    e('s_lshl_b32 s100, s2, 6')
    e(f'v_mov_b32 v{vtmp+1}, s90')
    e(f'v_mov_b32 v{vtmp+2}, s92')
    e(f'buffer_store_dwordx2 v[{vtmp+1}:{vtmp+2}], v{vtmp}, s[96:99], s100 offen')

STAMPK = None
STAMP_OFF = 100 << 20
STAMPI = 's_memtime'
STAMPB = 64
def dstamp(L, kidx, i):
    import asmlib as _a
    if _a.STAMPK == kidx:
        L.append(f'{_a.STAMPI} s[{_a.STAMPB+2*i}:{_a.STAMPB+1+2*i}]')

def dstamp_store(L, kidx, n, vtmp=1):
    import asmlib as _a
    if _a.STAMPK != kidx: return
    e = L.append
    e('s_waitcnt vmcnt(0) lgkmcnt(0)')
    e(f'{_a.STAMPI} s[{_a.STAMPB+2*n}:{_a.STAMPB+1+2*n}]')
    e('s_load_dwordx2 s[94:95], s[0:1], 104')
    e('s_waitcnt lgkmcnt(0)')
    e(f's_add_u32 s96, s94, {STAMP_OFF}')
    e('s_addc_u32 s97, s95, 0')
    e('s_and_b32 s97, s97, 0xffff')
    e(f's_mov_b32 s98, {1<<20}')
    e('s_mov_b32 s99, 0x00020000')
    e('s_mov_b64 exec, -1')
    e(f'v_lshrrev_b32 v{vtmp}, 6, v0')
    e(f'v_lshlrev_b32 v{vtmp}, 6, v{vtmp}')
    e('s_lshl_b32 s100, s2, 9')
    for i in range(n + 1):
        e(f'v_mov_b32 v{vtmp+1}, s{_a.STAMPB+2*i}')
        e(f'buffer_store_dword v{vtmp+1}, v{vtmp}, s[96:99], s100 offen offset:{4*i}')

CLAIM = True
def claim(L, name, lds_off, base=92, mid=None, vb=1):
    import asmlib as _a
    e = L.append
    if not _a.CLAIM:
        e('s_cmp_ge_u32 s2, 256')
        e(f's_cbranch_scc1 {name}_done')
        if mid: L += mid
        return
    b = base
    e('; CLAIM_BEGIN')
    e(f's_load_dwordx2 s[{b+4}:{b+5}], s[0:1], 96')
    e(f's_getreg_b32 s{b+6}, hwreg(HW_REG_XCC_ID)')
    e(f'v_lshrrev_b32 v{vb}, 6, v0')
    e(f's_and_b32 s{b+6}, s{b+6}, 7')
    e(f'v_readfirstlane_b32 s{b+7}, v{vb}')
    e(f'v_mov_b32 v{vb+1}, 1')
    e(f'v_mov_b32 v{vb+2}, 0')
    e('s_mov_b32 s3, 8')
    e('s_waitcnt lgkmcnt(0)')
    e(f's_mov_b32 s{b}, s{b+4}')
    e(f's_and_b32 s{b+1}, s{b+5}, 0xffff')
    e(f's_mov_b32 s{b+2}, 256')
    e(f's_mov_b32 s{b+3}, 0x00020000')
    e(f's_cmp_lg_u32 s{b+7}, 0')
    e(f's_cbranch_scc1 {name}_cl_mid')
    e('s_mov_b64 exec, 1')
    e(f's_lshl_b32 s{b+4}, s{b+6}, 5')
    e(f'buffer_atomic_add v{vb+1}, v{vb+2}, s[{b}:{b+3}], s{b+4} offen sc0 sc1')
    e('s_mov_b64 exec, -1')
    e(f'{name}_cl_mid:')
    e('; CLAIM_MID')
    if mid: L += mid
    e(f's_cmp_lg_u32 s{b+7}, 0')
    e(f's_cbranch_scc1 {name}_cl_wait')
    e('s_mov_b64 exec, 1')
    e(f'{name}_cl_try:')
    e('s_waitcnt vmcnt(0)')
    e(f'v_readfirstlane_b32 s{b+5}, v{vb+1}')
    e(f's_cmp_lt_u32 s{b+5}, 32')
    e(f's_cbranch_scc1 {name}_cl_got')
    e(f's_mov_b32 s{b+5}, 32')
    e('s_sub_u32 s3, s3, 1')
    e('s_cmp_eq_u32 s3, 0')
    e(f's_cbranch_scc1 {name}_cl_got')
    e(f's_add_u32 s{b+6}, s{b+6}, 1')
    e(f's_and_b32 s{b+6}, s{b+6}, 7')
    e(f's_lshl_b32 s{b+4}, s{b+6}, 5')
    e(f'v_mov_b32 v{vb+1}, 1')
    e(f'buffer_atomic_add v{vb+1}, v{vb+2}, s[{b}:{b+3}], s{b+4} offen sc0 sc1')
    e(f's_branch {name}_cl_try')
    e(f'{name}_cl_got:')
    e(f's_lshl_b32 s{b+5}, s{b+5}, 3')
    e(f's_add_u32 s{b+5}, s{b+5}, s{b+6}')
    e(f'v_mov_b32 v{vb+1}, s{b+5}')
    e(f'v_mov_b32 v{vb+2}, {lds_off}')
    e(f'ds_write_b32 v{vb+2}, v{vb+1}')
    e('s_waitcnt lgkmcnt(0)')
    e('s_mov_b64 exec, -1')
    e(f'{name}_cl_wait:')
    e('s_barrier')
    e(f'v_mov_b32 v{vb+2}, {lds_off}')
    e(f'ds_read_b32 v{vb+1}, v{vb+2}')
    e('s_waitcnt lgkmcnt(0)')
    e(f'v_readfirstlane_b32 s2, v{vb+1}')
    e('s_nop 3')
    e('s_cmp_ge_u32 s2, 256')
    e(f's_cbranch_scc1 {name}_done')
    e('; CLAIM_END')


def hoist(L):
    if '; CLAIM_END' not in L: return L
    ib = L.index('; CLAIM_BEGIN'); im = L.index('; CLAIM_MID'); ie = L.index('; CLAIM_END')
    claim_regs = set()
    for l in L[ib:ie]:
        i = Ins(l)
        if i.op: claim_regs |= i.wr
    tainted = {('s', 2)}
    blocked = set()
    loads = []; mids = []; rest = []
    k = ie + 1
    while k < len(L):
        l = L[k]; i = Ins(l)
        if i.op is None and l.strip().endswith(':'): break
        if i.op is None:
            rest.append(l); k += 1; continue
        if i.kind in ('vmem', 'dma', 'vstore', 'ds', 'mfma') or i.op.startswith(('s_cbranch', 's_branch', 's_barrier', 's_cmp', 's_cselect', 's_memtime', 's_memrealtime')):
            break
        if i.op == 's_waitcnt':
            rest.append(l); k += 1; continue
        indep = not (i.rd & tainted) and not (i.wr & blocked) and not (i.rd & {r for r in blocked if False}) and not ((i.wr | i.rd) & claim_regs)
        if indep and i.kind == 'smem':
            loads.append(l)
        elif indep:
            mids.append(l)
        else:
            tainted |= i.wr
            blocked |= i.wr | i.rd
            rest.append(l)
        k += 1
    return L[:ib] + loads + L[ib:im + 1] + mids + L[im + 1:ie + 1] + rest + L[k:]
```

```python
from asmlib import *
import asmlib
from k_small import *
from k_attn import interleave

FSC = ''
FFN_LIM = [6, 6]
SPK = [2, 10]
def gen_splitk(name, shape, K, w_ka, b_off, b_bytes, res, gmod_off, dst):
    NS = K // 4 // 32
    D = 6
    L = kernel_header(name)
    e = L.append
    vq = Q(63)
    SWT, SB, SR, SM, SD = 8, 12, 16, 20, 24
    S_W, S_MT, S_NT, S_T0, S_T1, S_LB = 28, 29, 30, 31, 32, 33
    S_B = 34
    S_WO = 38
    VWD, VH, VAD = 10, 11, 12
    ACC = 32
    def BF(t, i): return 16 * (t % 8) + 4 * i
    def AF(st, i): return 128 + 16 * st + 4 * i
    prof_begin(L)
    KI = 3 if shape == 32 else 6
    dstamp(L, KI, 0)
    claim(L, name, 131072, vb=28)
    e(f's_load_dwordx2 s[48:49], s[0:1], {w_ka}')
    e(f's_load_dwordx2 s[50:51], s[0:1], {KA["ws"]}')
    if res[0] == 'in':
        e(f's_load_dwordx2 s[52:53], s[0:1], {res[1]}')
    if dst[0] == 'out':
        e(f's_load_dwordx2 s[54:55], s[0:1], {KA["out"]}')
    e('v_lshrrev_b32 v1, 6, v0')
    e('v_and_b32 v2, 63, v0')
    e(f'v_readfirstlane_b32 s{S_W}, v1')
    e(f's_and_b32 s{S_T0}, s2, 1')
    e(f's_lshl_b32 s{S_MT}, s{S_T0}, 4')
    e(f's_bfe_u32 s{S_T0}, s2, 0x10002')
    e(f's_lshl_b32 s{S_T0}, s{S_T0}, 3')
    e(f's_add_u32 s{S_MT}, s{S_MT}, s{S_T0}')
    e(f's_lshr_b32 s{S_T1}, s2, 3')
    e(f's_and_b32 s{S_T0}, s{S_T1}, 7')
    e(f's_add_u32 s{S_MT}, s{S_MT}, s{S_T0}')
    e(f's_lshr_b32 s{S_NT}, s{S_T1}, 3')
    e(f's_bfe_u32 s{S_T0}, s2, 0x10001')
    e(f's_lshl_b32 s{S_T0}, s{S_T0}, 2')
    e(f's_add_u32 s{S_NT}, s{S_NT}, s{S_T0}')
    e(f's_lshl_b32 s{S_LB}, s{S_W}, 15')
    e('v_lshrrev_b32 v3, 3, v2')
    e('v_and_b32 v4, 7, v2')
    e('v_lshrrev_b32 v5, 1, v3')
    if shape == 32:
        e('v_and_b32 v5, 1, v5'); e('v_lshlrev_b32 v5, 2, v5')
    else:
        e('v_and_b32 v5, 3, v5'); e('v_lshlrev_b32 v5, 1, v5')
    e('v_xor_b32 v4, v4, v5')
    e('v_lshlrev_b32 v3, 10, v3')
    e(f'v_lshl_add_u32 v{VWD}, v4, 4, v3')
    e(f's_lshl_b32 s{S_T0}, s{S_NT}, 7')
    e(f'v_add_u32 v{VWD}, s{S_T0}, v{VWD}')
    e(f'v_lshlrev_b32 v{VH}, 4, v2')
    e(f's_mul_i32 s{S_WO}, s{S_W}, {K//4*1024}')
    if shape == 32:
        nrb = 2; fr_per_blk = K // 16; per_slot = 2
    else:
        nrb = 4; fr_per_blk = K // 32; per_slot = 1
    e(f's_mul_i32 s{S_T0}, s{S_MT}, {nrb*fr_per_blk*1024}')
    e(f's_mul_i32 s{S_T1}, s{S_W}, {fr_per_blk//4*1024}')
    e(f's_add_u32 s{S_B}, s{S_T0}, s{S_T1}')
    for rb in range(1, nrb):
        e(f's_add_u32 s{S_B+rb}, s{S_B+rb-1}, {fr_per_blk*1024}')
    e('v_lshrrev_b32 v3, 4, v2')
    e('v_and_b32 v4, 15, v2')
    e('v_lshrrev_b32 v5, 2, v4')
    e('v_and_b32 v6, 3, v2')
    if shape == 32:
        e('v_lshrrev_b32 v7, 1, v3')
        e('v_and_b32 v8, 1, v3')
        e('v_lshl_add_u32 v7, v7, 2, v5')
        e('v_lshlrev_b32 v7, 7, v7')
        e('v_lshl_add_u32 v7, v8, 5, v7')
        e('v_lshl_add_u32 v7, v6, 3, v7')
        e(f'v_add_u32 v7, s{S_LB}, v7')
        e('v_lshrrev_b32 v8, 1, v5')
        for nb in range(2):
            e(f'v_xor_b32 v9, {nb}, v8')
            e(f'v_lshl_add_u32 v{VAD+nb}, v9, 6, v7')
    else:
        e('v_lshl_add_u32 v7, v3, 2, v5')
        e('v_lshrrev_b32 v8, 1, v7')
        e('v_and_b32 v8, 3, v8')
        e('v_lshlrev_b32 v7, 7, v7')
        e('v_lshl_add_u32 v7, v6, 3, v7')
        e(f'v_add_u32 v7, s{S_LB}, v7')
        for nt in range(4):
            e(f'v_xor_b32 v9, {nt}, v8')
            e(f'v_lshl_add_u32 v{VAD+nt}, v9, 5, v7')
    e('s_waitcnt lgkmcnt(0)')
    srd(L, SWT, 48, K * 1024)
    srd_off(L, SB, 50, b_off, b_bytes)
    if res[0] == 'in': srd(L, SR, 52, 2048 * 1024)
    else: srd_off(L, SR, 50, res[1], 2048 * 1024)
    srd_off(L, SM, 50, MOD_OFF + gmod_off, 1024)
    if dst[0] == 'out': srd(L, SD, 54, 2048 * 1024)
    else: srd_off(L, SD, 50, dst[1], 2048 * 1024)

    def issue(t):
        ops = []
        for i in range(4):
            ops.append((f's_add_u32 m0, s{S_LB}, {(t%8)*4096 + i*1024}', 2))
            ops.append((f's_add_u32 s{S_T0}, s{S_WO}, {(32*t + 8*i)*1024}', 2))
            ops.append((f'buffer_load_dwordx4 v{VWD}, s[{SWT}:{SWT+3}], s{S_T0} offen lds', 8, ('W', t)))
        for i in range(4):
            if shape == 32:
                ks, rb = i // 2, i % 2
                off = (2 * t + ks) * 1024
            else:
                rb = i; off = t * 1024
            ops.append((f's_add_u32 s{S_T1}, s{S_B+rb}, {off}', 2))
            ops.append((f'buffer_load_dwordx4 {a(BF(t,i),4)}, v{VH}, s[{SB}:{SB+3}], s{S_T1} offen', 8, ('B', t)))
        return ops
    def emit_ops(ops):
        for o in ops:
            e(o[0])
            if len(o) > 2: vq.issue(o[2])
    def a_reads(t):
        ops = []
        st = t % 2
        base = (t % 8) * 4096
        if shape == 32:
            for ks in range(2):
                for nb in range(2):
                    for aa in range(2):
                        ops.append((f'ds_read_b64_tr_b16 {a(AF(st, 2*ks+nb)+2*aa,2)}, v{VAD+nb} offset:{base + (16*ks+8*aa)*128}', 4))
        else:
            for nt in range(4):
                for aa in range(2):
                    ops.append((f'ds_read_b64_tr_b16 {a(AF(st, nt)+2*aa,2)}, v{VAD+nt} offset:{base + 16*aa*128}', 4))
        return ops
    def mfmas(t):
        st = t % 2
        m = []
        if shape == 32:
            for ks in range(2):
                for nb in range(2):
                    for rb in range(2):
                        acc = ACC + 16 * (2 * nb + rb)
                        c = '0' if (t == 0 and ks == 0) else v(acc, 16)
                        m.append((f'v_mfma_f32_32x32x16_bf16 {v(acc,16)}, {a(AF(st,2*ks+nb),4)}, {a(BF(t,2*ks+rb),4)}, {c}', 24))
        else:
            for nt in range(4):
                for rb in range(4):
                    acc = ACC + 4 * (4 * nt + rb)
                    c = '0' if t == 0 else v(acc, 4)
                    m.append((f'v_mfma_f32_16x16x32_bf16 {v(acc,4)}, {a(AF(st,nt),4)}, {a(BF(t,rb),4)}, {c}', 8))
        return m
    dstamp(L, KI, 1)
    for t in range(SPK[0]):
        emit_ops(issue(t))
    pend = []
    nxt = SPK[0]
    dstamp(L, KI, 2)
    e('v_lshrrev_b32 v16, 2, v0')
    e('v_and_b32 v17, 3, v0')
    e('v_lshlrev_b32 v18, 5, v17')
    e(f's_lshl_b32 s{S_T0}, s{S_NT}, 7')
    e(f'v_add_u32 v18, s{S_T0}, v18')
    e('v_lshl_add_u32 v19, v16, 10, v18')
    n = vq.wait_for(lambda x: x == ('W', 0))
    e(f's_waitcnt vmcnt({n})')
    dstamp(L, KI, 3)
    L += [x[0] for x in a_reads(0)]
    for t in range(NS):
        if t == NS // 2: dstamp(L, KI, 4)
        n = vq.wait_for(lambda x: x == ('B', t) or x == ('W', t + 1))
        if n is not None: e(f's_waitcnt vmcnt({n})')
        e('s_waitcnt lgkmcnt(0)')
        qs = []
        mf = mfmas(t)
        if t + 1 < NS:
            qs.append(dict(items=a_reads(t + 1), start=0, end=len(mf) * 5 // 8))
        while nxt < NS and nxt <= t + D:
            pend += issue(nxt); nxt += 1
        iss = []; cnt = 0
        while pend and cnt < SPK[1]:
            o = pend.pop(0); iss.append(o)
            if len(o) > 2: cnt += 1
        if iss:
            qs.append(dict(items=[(o[0], o[1]) for o in iss], start=0, end=len(mf) - 1))
        L += interleave(mf, qs)
        for o in iss:
            if len(o) > 2: vq.issue(o[2])
    dstamp(L, KI, 5)
    e(f's_lshl_b32 s{S_T1}, s{S_MT}, 16')
    if res[0] == 'wsf':
        e('v_lshrrev_b32 v20, 4, v16')
        e('v_lshlrev_b32 v20, 14, v20')
        e('v_lshrrev_b32 v21, 1, v17')
        e('v_lshl_add_u32 v20, v21, 10, v20')
        e('v_and_b32 v21, 1, v17')
        e('v_lshl_add_u32 v20, v21, 9, v20')
        e('v_and_b32 v21, 15, v16')
        e('v_lshl_add_u32 v20, v21, 4, v20')
        e(f's_lshl_b32 s{S_T0}, s{S_NT}, 11')
        e(f's_add_u32 s{S_T0}, s{S_T0}, s{S_T1}')
        e(f'buffer_load_dwordx4 v[124:127], v20, s[{SR}:{SR+3}], s{S_T0} offen')
        e(f'buffer_load_dwordx4 v[96:99], v20, s[{SR}:{SR+3}], s{S_T0} offen offset:256')
    else:
        e(f'buffer_load_dwordx4 v[100:103], v19, s[{SR}:{SR+3}], s{S_T1} offen')
        e(f'buffer_load_dwordx4 v[104:107], v19, s[{SR}:{SR+3}], s{S_T1} offen offset:16')
    e(f'buffer_load_dwordx4 v[108:111], v18, s[{SM}:{SM+3}], 0 offen')
    e(f'buffer_load_dwordx4 v[112:115], v18, s[{SM}:{SM+3}], 0 offen offset:16')
    e('s_barrier')
    RS = 272
    if shape == 32:
        e('v_and_b32 v3, 31, v2')
        e('v_lshrrev_b32 v4, 5, v2')
        e(f'v_mul_u32_u24 v3, {RS}, v3')
        e('v_lshl_add_u32 v3, v4, 4, v3')
    else:
        e('v_and_b32 v3, 15, v2')
        e('v_lshrrev_b32 v4, 4, v2')
        e(f'v_mul_u32_u24 v3, {RS}, v3')
        e('v_lshl_add_u32 v3, v4, 4, v3')
    e(f's_mul_i32 s{S_T0}, s{S_W}, {64*RS}')
    e(f'v_add_u32 v3, s{S_T0}, v3')
    e('s_nop 7')
    if shape == 32:
        for nb in range(2):
            for rb in range(2):
                for g in range(4):
                    acc = ACC + 16 * (2 * nb + rb) + 4 * g
                    e(f'ds_write_b128 v3, {v(acc,4)} offset:{32*rb*RS + (32*nb + 8*g)*4}')
    else:
        for nt in range(4):
            for rb in range(4):
                acc = ACC + 4 * (4 * nt + rb)
                e(f'ds_write_b128 v3, {v(acc,4)} offset:{16*rb*RS + 16*nt*4}')
    e('s_waitcnt lgkmcnt(0)')
    e('s_barrier')
    e(f'v_mul_u32_u24 v3, {RS}, v16')
    e('v_lshl_add_u32 v3, v17, 6, v3')
    for w in range(4):
        for q in range(4):
            e(f'ds_read_b128 v[{32+16*w+4*q}:{35+16*w+4*q}], v3 offset:{w*64*RS + 16*q}')
    e('s_waitcnt lgkmcnt(0)')
    for i in range(16):
        e(f'v_add_f32 v{32+i}, v{32+i}, v{48+i}')
        e(f'v_add_f32 v{64+i}, v{64+i}, v{80+i}')
    for i in range(16):
        e(f'v_add_f32 v{32+i}, v{32+i}, v{64+i}')
    e('s_waitcnt vmcnt(0)')
    if res[0] == 'wsf':
        for d, srcr in ((100, 124), (101, 125), (102, 96), (103, 97), (104, 126), (105, 127), (106, 98), (107, 99)):
            e(f'v_mov_b32 v{d}, v{srcr}')
    for i in range(8):
        x0, x1 = 32 + 2 * i, 33 + 2 * i
        rnd_pair(e, x0, x1, x0, x1, 20)
        e(f'v_lshlrev_b32 v21, 16, v{108+i}')
        e(f'v_and_b32 v22, 0xffff0000, v{108+i}')
        e(f'v_mul_f32 v{x0}, v{x0}, v21')
        e(f'v_mul_f32 v{x1}, v{x1}, v22')
        rnd_pair(e, x0, x1, x0, x1, 20)
        e(f'v_lshlrev_b32 v21, 16, v{100+i}')
        e(f'v_and_b32 v22, 0xffff0000, v{100+i}')
        e(f'v_add_f32 v{x0}, v{x0}, v21')
        e(f'v_add_f32 v{x1}, v{x1}, v22')
        e(f'v_cvt_pk_bf16_f32 v{116+i}, v{x0}, v{x1}')
    e(f'buffer_store_dwordx4 v[116:119], v19, s[{SD}:{SD+3}], s{S_T1} offen')
    e(f'buffer_store_dwordx4 v[120:123], v19, s[{SD}:{SD+3}], s{S_T1} offen offset:16')
    dstamp(L, KI, 6)
    dstamp_store(L, KI, 7)
    prof_end(L, 3 if shape == 32 else 6, 1)
    e(f'{name}_done:')
    e('s_endpgm')
    L = hoist(L)
    for h in check_hazards(L, name): print('HAZARD', h)
    return L, kernel_desc(name, 128 + 160, 102, 128), f'; @launch kernel={name} grid=(256,1,1) block=(256,1,1) lds=131328'


def gen_ffn1(name='ffn1_kernel'):
    L = kernel_header(name)
    e = L.append
    vq = Q(63)
    SG, SU, SB, SD = 8, 12, 16, 20
    S_W, S_MT, S_FT, S_T0, S_T1, S_WO, S_LW = 28, 29, 30, 31, 32, 33, 34
    S_SEL = 36
    S_B0, S_B1 = 40, 41
    VD = 10
    VH = 17
    VA = 18
    ACC = 32
    def acc(mat, ft, rb): return ACC + 4 * ((mat * 7 + ft) * 2 + rb)
    def BF(T, rb): return 8 * T + 4 * rb
    def AF(st, i): return 128 + 56 * st + 4 * i
    NCH = 8; RING = 4; CH = 28672
    prof_begin(L)
    dstamp(L, 5, 0)
    claim(L, name, RING*CH, vb=28)
    e(f's_load_dwordx4 s[48:51], s[0:1], {KA["wg"]}')
    e(f's_load_dwordx2 s[52:53], s[0:1], {KA["ws"]}')
    e('v_lshrrev_b32 v1, 6, v0')
    e('v_and_b32 v2, 63, v0')
    e(f'v_readfirstlane_b32 s{S_W}, v1')
    e(f's_and_b32 s{S_T0}, s2, 1')
    e(f's_lshr_b32 s{S_T1}, s2, 3')
    e(f's_lshl_b32 s{S_MT}, s{S_T0}, 3')
    e(f's_and_b32 s{S_T0}, s{S_T1}, 7')
    e(f's_add_u32 s{S_MT}, s{S_MT}, s{S_T0}')
    e(f's_lshr_b32 s{S_FT}, s{S_T1}, 3')
    e(f's_bfe_u32 s{S_T0}, s2, 0x20001')
    e(f's_lshl_b32 s{S_T0}, s{S_T0}, 2')
    e(f's_add_u32 s{S_FT}, s{S_FT}, s{S_T0}')
    e(f's_mul_i32 s{S_T0}, s{S_FT}, 224')
    e(f's_lshr_b32 s{S_T1}, s{S_W}, 1')
    e(f's_mul_i32 s{S_WO}, s{S_T1}, {32*3584}')
    e(f's_add_u32 s{S_T0}, s{S_T0}, s{S_WO}')
    e('s_mov_b32 s42, 0x12492493')
    e('s_movk_i32 s43, 3584')
    for i in range(7):
        e(f'v_add_u32 v3, {64*i}, v2')
        e('v_mul_hi_u32 v4, v3, s42')
        e('v_mul_u32_u24 v5, 14, v4')
        e('v_sub_u32 v5, v3, v5')
        e('v_mul_lo_u32 v4, v4, s43')
        e(f'v_lshl_add_u32 v{VD+i}, v5, 4, v4')
        e(f'v_add_u32 v{VD+i}, s{S_T0}, v{VD+i}')
    e(f's_and_b32 s{S_T0}, s{S_W}, 1')
    e(f's_mul_i32 s{S_LW}, s{S_T0}, 14336')
    e(f's_mul_i32 s{S_T1}, s{S_T1}, 7168')
    e(f's_add_u32 s{S_LW}, s{S_LW}, s{S_T1}')
    e(f'v_lshlrev_b32 v{VH}, 4, v2')
    e('v_lshrrev_b32 v3, 4, v2')
    e('v_and_b32 v4, 15, v2')
    e('v_lshrrev_b32 v4, 2, v4')
    e('v_and_b32 v5, 3, v2')
    e('v_lshrrev_b32 v6, 1, v3')
    e('v_lshl_add_u32 v6, v6, 4, v4')
    e('v_and_b32 v7, 1, v3')
    e('v_lshl_add_u32 v6, v7, 2, v6')
    e('v_mul_u32_u24 v6, 224, v6')
    e(f'v_lshl_add_u32 v{VA}, v5, 3, v6')
    e(f'v_add_u32 v{VA+1}, 0x{2*CH:x}, v{VA}')
    e(f's_lshl_b32 s{S_T0}, s{S_MT}, 3')
    e(f's_lshl_b32 s{S_T1}, s{S_W}, 1')
    e(f's_add_u32 s{S_T0}, s{S_T0}, s{S_T1}')
    e(f's_lshl_b32 s{S_B0}, s{S_T0}, 14')
    e(f's_add_u32 s{S_B1}, s{S_B0}, 16384')
    e('s_waitcnt lgkmcnt(0)')
    srd(L, SG, 48, 512 * 3584)
    srd(L, SU, 50, 512 * 3584)
    srd_off(L, SB, 52, H2_OFF, 2048 * 1024)
    srd_off(L, SD, 52, ACT_OFF, 2048 * 3584)
    e(f's_and_b32 s{S_T0}, s{S_W}, 1')
    e(f's_cmp_eq_u32 s{S_T0}, 0')
    e(f's_cselect_b32 s{S_SEL}, s{SG}, s{SU}')
    e(f's_cselect_b32 s{S_SEL+1}, s{SG+1}, s{SU+1}')
    e(f's_mov_b32 s{S_SEL+2}, {512*3584}')
    e(f's_mov_b32 s{S_SEL+3}, 0x00020000')
    def issue_W(c):
        ops = []
        for i in range(7):
            ops.append((f's_add_u32 m0, s{S_LW}, {(c%RING)*CH + i*1024}', 2))
            if i == 0:
                ops.append((f's_mov_b32 s56, {64*c*3584}', 2))
            else:
                ops.append(('s_nop 0', 2))
            ops.append((f'buffer_load_dwordx4 v{VD+i}, s[{S_SEL}:{S_SEL+3}], s56 offen lds', 8, ('W', c)))
        return ops
    def issue_B(c):
        ops = []
        for ks in range(2):
            T = 2 * c + ks
            for rb in range(2):
                so = S_B0 + rb
                ops.append((f's_add_u32 s{S_T1}, s{so}, {T*1024}', 2))
                ops.append((f'buffer_load_dwordx4 {a(BF(T,rb),4)}, v{VH}, s[{SB}:{SB+3}], s{S_T1} offen', 8, ('B', c)))
        return ops
    def emit_ops(ops):
        for o in ops:
            e(o[0])
            if len(o) > 2: vq.issue(o[2])
    def a_reads(T):
        c = T // 2; ks = T % 2; st = T % 2
        slot = c % RING
        base = slot * CH; va = VA
        if slot >= 2: base -= 2 * CH; va = VA + 1
        ops = []
        for mat in range(2):
            for ft in range(7):
                for aa in range(2):
                    off = base + mat * 14336 + ks * 7168 + aa * 8 * 224 + ft * 32
                    ops.append((f'ds_read_b64_tr_b16 {a(AF(st, mat*7+ft)+2*aa,2)}, v{va} offset:{off}', 4))
        return ops
    def mfmas(T):
        st = T % 2
        m = []
        for ft in range(7):
            for mat in range(2):
                for rb in range(2):
                    ac = acc(mat, ft, rb)
                    cc = '0' if T == 0 else v(ac, 4)
                    m.append((f'v_mfma_f32_16x16x32_bf16 {v(ac,4)}, {a(AF(st,mat*7+ft),4)}, {a(BF(T,rb),4)}, {cc}', 8))
        return m
    dstamp(L, 5, 1)
    emit_ops(issue_W(0)); emit_ops(issue_B(0)); emit_ops(issue_W(1))
    dstamp(L, 5, 2)
    n = vq.wait_for(lambda x: x == ('W', 0))
    e(f's_waitcnt vmcnt({n})')
    e('s_barrier')
    dstamp(L, 5, 3)
    L += [x[0] for x in a_reads(0)]
    pend = issue_B(1) + issue_W(2) + issue_B(2) + issue_W(3) + issue_B(3)
    for T in range(16):
        if T == 8: dstamp(L, 5, 4)
        c = T // 2
        if T % 2 == 0:
            n = vq.wait_for(lambda x: x == ('B', c))
            if n is not None: e(f's_waitcnt vmcnt({n})')
        e('s_waitcnt lgkmcnt(0)')
        if T % 2 == 1 and c + 1 < NCH:
            n = vq.wait_for(lambda x: x == ('W', c + 1))
            if n is not None: e(f's_waitcnt vmcnt({n})')
            e('s_barrier')
            if c + 4 < NCH:
                pend += issue_W(c + 4) + issue_B(c + 4)
        take = []; cnt = 0
        lim = FFN_LIM[0] if T < 4 else FFN_LIM[1]
        while pend and cnt < lim:
            o = pend.pop(0); take.append(o)
            if len(o) > 2: cnt += 1
        mf = mfmas(T)
        qs = []
        if T + 1 < 16:
            qs.append(dict(items=a_reads(T + 1), start=0, end=22))
        if take:
            qs.append(dict(items=[(o[0], o[1]) for o in take], start=0, end=27))
        L += interleave(mf, qs)
        for o in take:
            if len(o) > 2: vq.issue(o[2])
    assert not pend
    dstamp(L, 5, 5)
    e(f's_load_dwordx2 s[58:59], s[0:1], {KA["wd"]}')
    e('v_lshrrev_b32 v3, 5, v2')
    e('v_and_b32 v4, 31, v2')
    e('v_lshlrev_b32 v4, 4, v4')
    e('v_lshl_add_u32 v3, v3, 10, v4')
    e(f's_lshr_b32 s{S_T0}, s2, 3')
    e(f's_mul_i32 s{S_T0}, s{S_T0}, 56')
    e(f's_mul_i32 s{S_T1}, s{S_W}, 14')
    e(f's_add_u32 s{S_T0}, s{S_T0}, s{S_T1}')
    e(f's_lshl_b32 s{S_T0}, s{S_T0}, 10')
    e(f's_bfe_u32 s{S_T1}, s2, 0x10001')
    e(f's_lshl_b32 s{S_T1}, s{S_T1}, 9')
    e(f's_add_u32 s{S_T0}, s{S_T0}, s{S_T1}')
    e('s_waitcnt lgkmcnt(0)')
    srd(L, 60, 58, 1792 * 1024)
    for i in range(7):
        e(f'buffer_load_dwordx4 v[4:7], v3, s[60:63], s{S_T0} offen')
        e(f's_add_u32 s{S_T0}, s{S_T0}, 2048')
    e('s_nop 7')
    C1 = 0.7978845608028654; C2 = 0.044715
    import struct
    f2u = lambda x: struct.unpack('<I', struct.pack('<f', x))[0]
    e(f's_mov_b32 s44, 0x{f2u(-2*C1*1.4426950408889634):08x}')
    e(f's_mov_b32 s45, 0x{f2u(-2*C1*C2*1.4426950408889634):08x}')
    e(f's_lshl_b32 s{S_T0}, s{S_MT}, 3')
    e(f's_lshl_b32 s{S_T1}, s{S_W}, 1')
    e(f's_add_u32 s{S_T0}, s{S_T0}, s{S_T1}')
    e(f's_mul_i32 s{S_B0}, s{S_T0}, {56*1024}')
    e(f's_mul_i32 s{S_T1}, s{S_FT}, {7*512}')
    e(f's_and_b32 s46, s{S_FT}, 1')
    e(f's_lshl_b32 s47, s46, 9')
    e(f's_sub_u32 s{S_T1}, s{S_T1}, s47')
    e(f's_add_u32 s{S_B0}, s{S_B0}, s{S_T1}')
    e(f's_add_u32 s{S_B1}, s{S_B0}, {56*1024}')
    PK = 150
    e('v_mov_b32 v199, s44')
    for ft in range(7):
        for rb in range(2):
            g0 = acc(0, ft, rb); u0 = acc(1, ft, rb)
            t = 200 + 8 * ((ft * 2 + rb) % 2)
            for k in range(4):
                e(f'v_mul_f32 v{t+k}, v{g0+k}, v{g0+k}')
            for k in range(4):
                e(f'v_fma_f32 v{t+k}, s45, v{t+k}, v199')
            for k in range(4):
                e(f'v_mul_f32 v{t+k}, v{t+k}, v{g0+k}')
            for k in range(4):
                e(f'v_exp_f32 v{t+k}, v{t+k}')
            for k in range(4):
                e(f'v_mul_f32 v{g0+k}, v{g0+k}, v{u0+k}')
            for k in range(4):
                e(f'v_add_f32 v{t+k}, 1.0, v{t+k}')
            for k in range(4):
                e(f'v_rcp_f32 v{t+k}, v{t+k}')
            e('s_nop 0')
            for k in range(4):
                e(f'v_mul_f32 v{g0+k}, v{g0+k}, v{t+k}')
            r = PK + 2 * (rb * 7 + ft)
            e(f'v_cvt_pk_bf16_f32 v{r}, v{g0}, v{g0+1}')
            e(f'v_cvt_pk_bf16_f32 v{r+1}, v{g0+2}, v{g0+3}')
    dstamp(L, 5, 6)
    e('s_cmp_eq_u32 s46, 0')
    e(f's_cbranch_scc0 {name}_odd')
    for par in range(2):
        if par == 1:
            e(f'{name}_odd:')
        for rb in range(2):
            ft = 0
            while ft < 7:
                q = ft + par
                off = (q >> 1) * 1024 + (q & 1) * 8
                r = PK + 2 * (rb * 7 + ft)
                if q % 2 == 0 and ft + 1 < 7:
                    e(f'buffer_store_dwordx4 {v(r,4)}, v{VH}, s[{SD}:{SD+3}], s{S_B0+rb} offen offset:{off}{FSC}')
                    ft += 2
                else:
                    e(f'buffer_store_dwordx2 {v(r,2)}, v{VH}, s[{SD}:{SD+3}], s{S_B0+rb} offen offset:{off}{FSC}')
                    ft += 1
        if par == 0:
            e(f's_branch {name}_fin')
    e(f'{name}_fin:')
    dstamp_store(L, 5, 7)
    prof_end(L, 5, 1)
    e(f'{name}_done:')
    e('s_endpgm')
    L = hoist(L)
    for h in check_hazards(L, name): print('HAZARD', h)
    return L, kernel_desc(name, 256 + 240, 102, 256), f'; @launch kernel={name} grid=(256,1,1) block=(256,1,1) lds={RING*CH+256}'
```

```python
from asmlib import *
import asmlib
from k_small import *

def gen_pre3(name='pre_kernel'):
    L = kernel_header(name)
    e = L.append
    prof_begin(L)
    asmlib.STAMPB = 76
    dstamp(L, 1, 0)
    SX, SM, SH, SWQ, SKK, SVV, SCV, SWM = 8, 12, 16, 20, 24, 40, 52, 56
    claim(L, name, 16384, vb=172)
    e(f's_load_dwordx2 s[4:5], s[0:1], {KA["x"]}')
    e(f's_load_dwordx2 s[66:67], s[0:1], {KA["ws"]}')
    e(f's_load_dwordx4 s[68:71], s[0:1], {KA["c"]}')
    e(f's_load_dwordx4 s[44:47], s[0:1], {KA["k"]}')
    e(f's_load_dwordx2 s[48:49], s[0:1], {KA["wq"]}')
    e('v_lshrrev_b32 v2, 6, v0')
    e('v_and_b32 v1, 63, v0')
    e('s_lshr_b32 s31, s2, 3')
    e('v_readfirstlane_b32 s36, v2')
    e('s_and_b32 s28, s2, 1')
    e('s_lshl_b32 s28, s28, 3')
    e('s_and_b32 s30, s31, 7')
    e('s_add_u32 s28, s28, s30')
    e('s_bfe_u32 s29, s2, 0x20001')
    e('s_lshl_b32 s30, s29, 2')
    e('s_lshr_b32 s37, s31, 3')
    e('s_add_u32 s37, s37, s30')
    e('v_and_b32 v3, 3, v0')
    e('v_lshrrev_b32 v4, 2, v0')
    e('s_movk_i32 s3, 6144')
    e('v_mul_lo_u32 v5, v4, s3')
    e('v_lshl_add_u32 v5, v3, 4, v5')
    e('v_lshlrev_b32 v6, 1, v4')
    e('v_and_b32 v7, 7, v1')
    e('v_lshrrev_b32 v8, 3, v1')
    e('v_lshl_add_u32 v9, v2, 4, v8')
    e('v_lshlrev_b32 v10, 10, v9')
    e('v_lshl_add_u32 v10, v7, 4, v10')
    e('s_lshl_b32 s30, s28, 17')
    e('s_add_u32 s32, s30, 8192')
    e('s_lshl_b32 s72, s37, 6')
    for i in range(1, 4):
        e(f's_add_u32 s{72+i}, s{71+i}, {128*6144}')
    e('s_waitcnt lgkmcnt(0)')
    srd(L, SX, 4, 2048 * 1024)
    srd(L, SCV, 68, 1024)
    srd(L, SWM, 70, 512 * 6144)
    srd_off(L, SM, 66, MOD_OFF, 6144)
    srd_off(L, SH, 66, H1_OFF, 2048 * 1024)
    dstamp(L, 1, 1)
    for i in range(4):
        e(f'buffer_load_ushort v{12+i}, v6, s[{SCV}:{SCV+3}], 0 offen offset:{256*i}')
    for sl in range(2):
        for i in range(4):
            r = 16 + 16 * sl + 4 * i
            e(f'buffer_load_dwordx4 v[{r}:{r+3}], v5, s[{SWM}:{SWM+3}], s{72+i} offen offset:{1024*sl}')
    for g in range(2):
        for sg in range(8):
            r = 64 + 32 * g + 4 * sg
            e(f'buffer_load_dwordx4 v[{r}:{r+3}], v10, s[{SX}:{SX+3}], s{30 if g == 0 else 32} offen offset:{128*sg}')
    e('s_and_b32 s33, s2, 7')
    e('s_lshl_b32 s33, s33, 5')
    e('s_add_u32 s33, s33, s31')
    e('s_lshl_b32 s38, s33, 4')
    e('s_add_u32 s38, s38, 2048')
    e('v_mul_lo_u32 v11, v0, s3')
    e('v_lshlrev_b32 v52, 1, v0')
    e(f'buffer_load_ushort v53, v52, s[{SCV}:{SCV+3}], 0 offen')
    e(f'buffer_load_dwordx4 v[48:51], v11, s[{SWM}:{SWM+3}], s38 offen')
    srd(L, SWQ, 48, 512 * 8192)
    srd(L, SKK, 44, 16 << 20)
    srd(L, SVV, 46, 16 << 20)
    e('v_lshlrev_b32 v170, 4, v1')
    e('s_lshl_b32 s34, s31, 4')
    e('s_lshl_b32 s35, s36, 1')
    e('s_add_u32 s34, s34, s35')
    e('s_lshl_b32 s34, s34, 13')
    e('s_lshl_b32 s35, s29, 11')
    e('s_add_u32 s34, s34, s35')
    for r in range(2):
        for hf in range(2):
            e(f'buffer_load_dwordx4 v[172:175], v170, s[{SWQ}:{SWQ+3}], s34 offen offset:{hf*1024}')
        e('s_add_u32 s34, s34, 8192')
    e('s_lshl_b32 s34, s29, 3')
    e('s_lshr_b32 s35, s31, 2')
    e('s_add_u32 s34, s34, s35')
    e('s_lshl_b32 s34, s34, 19')
    e('s_and_b32 s35, s31, 3')
    e('s_lshl_b32 s35, s35, 3')
    e('s_add_u32 s35, s35, s36')
    e('s_lshl_b32 s35, s35, 10')
    e('s_add_u32 s34, s34, s35')
    for sr in (SKK, SVV):
        e(f'buffer_load_dwordx4 v[172:175], v170, s[{sr}:{sr+3}], s34 offen')
    dstamp(L, 1, 2)
    e('s_waitcnt vmcnt(32)')
    for i in range(4):
        e(f'v_lshlrev_b32 v{12+i}, 16, v{12+i}')
    for i in range(4):
        e(f'v_mul_f32 v{128+i}, 0x{NLOG2E:08x}, v{12+i}')
    for i in range(4):
        e(f'v_exp_f32 v{128+i}, v{128+i}')
    for i in range(4):
        e(f'v_add_f32 v{128+i}, 1.0, v{128+i}')
    for i in range(4):
        e(f'v_rcp_f32 v{128+i}, v{128+i}')
    for i in range(4):
        e(f'v_mul_f32 v{128+i}, v{12+i}, v{128+i}')
    for i in range(4):
        e(f'v_cvt_pk_bf16_f32 v{128+i}, v{128+i}, v{128+i}')
    for i in range(4):
        e(f'v_lshlrev_b32 v{128+i}, 16, v{128+i}')
    def slab(base, accb):
        for i in range(4):
            for j in range(4):
                w = base + 4 * i + j
                e(f'v_lshlrev_b32 v132, 16, v{w}')
                e(f'v_and_b32 v133, 0xffff0000, v{w}')
                if i == 0:
                    e(f'v_mul_f32 v{accb+2*j}, v132, v{128+i}')
                    e(f'v_mul_f32 v{accb+2*j+1}, v133, v{128+i}')
                else:
                    e(f'v_fmac_f32 v{accb+2*j}, v132, v{128+i}')
                    e(f'v_fmac_f32 v{accb+2*j+1}, v133, v{128+i}')
        e('s_nop 1')
        for j in range(8):
            e(f'v_add_f32_dpp v{134+j}, v{accb+j}, v{accb+j} row_ror:4 row_mask:0xf bank_mask:0xf')
        e('s_nop 1')
        for j in range(8):
            e(f'v_add_f32_dpp v{accb+j}, v{134+j}, v{134+j} row_ror:8 row_mask:0xf bank_mask:0xf')
    e('v_lshrrev_b32 v142, 4, v0')
    e('v_mul_u32_u24 v142, 384, v142')
    e('v_lshl_add_u32 v142, v3, 5, v142')
    e('s_waitcnt vmcnt(24)')
    dstamp(L, 1, 3)
    slab(16, 144); slab(32, 152)
    e('ds_write_b128 v142, v[144:147] offset:2048')
    e('ds_write_b128 v142, v[148:151] offset:2064')
    e('ds_write_b128 v142, v[152:155] offset:2176')
    e('ds_write_b128 v142, v[156:159] offset:2192')
    e('v_mov_b32 v143, 0x3f803f80')
    e('s_waitcnt vmcnt(8)')
    dstamp(L, 1, 4)
    for g in range(2):
        a0, a1 = 160 + 2 * g, 161 + 2 * g
        e(f'v_mov_b32 v{a0}, 0')
        e(f'v_mov_b32 v{a1}, 0')
        for q in range(32):
            r = 64 + 32 * g + q
            e(f'v_dot2c_f32_bf16 v{a0}, v{r}, v143')
            e(f'v_dot2c_f32_bf16 v{a1}, v{r}, v{r}')
    e('s_nop 3')
    for k in range(4):
        e(f'v_add_f32_dpp v{164+k}, v{160+k}, v{160+k} quad_perm:[1,0,3,2] row_mask:0xf bank_mask:0xf')
    e('s_nop 1')
    for k in range(4):
        e(f'v_add_f32_dpp v{160+k}, v{164+k}, v{164+k} quad_perm:[2,3,0,1] row_mask:0xf bank_mask:0xf')
    e('s_nop 1')
    for k in range(4):
        e(f'v_add_f32_dpp v{164+k}, v{160+k}, v{160+k} row_half_mirror row_mask:0xf bank_mask:0xf')
    for g in range(2):
        sm, sq = 164 + 2 * g, 165 + 2 * g
        e(f'v_mul_f32 v{sm}, 0x3b000000, v{sm}')
        e(f'v_mul_f32 v{sq}, 0x3b000000, v{sq}')
        e(f'v_fma_f32 v{sq}, -v{sm}, v{sm}, v{sq}')
        e(f'v_max_f32 v{sq}, 0, v{sq}')
        rnd_pair(e, sm, sq, sm, sq, 168)
        e(f'v_add_f32 v{sq}, 0x3727c5ac, v{sq}')
        e(f'v_cvt_pk_bf16_f32 v{sq}, v{sq}, v{sq}')
        e(f'v_lshlrev_b32 v{sq}, 16, v{sq}')
        e(f'v_sqrt_f32 v{sq}, v{sq}')
        e('s_nop 0')
        e(f'v_cvt_pk_bf16_f32 v{sq}, v{sq}, v{sq}')
        e(f'v_lshlrev_b32 v{sq}, 16, v{sq}')
        e(f'v_rcp_f32 v{sq}, v{sq}')
    e('v_lshlrev_b32 v169, 3, v9')
    e('s_nop 0')
    e('ds_write_b64 v169, v[164:165]')
    e('ds_write_b64 v169, v[166:167] offset:64')
    e('s_waitcnt vmcnt(6)')
    e('v_lshlrev_b32 v53, 16, v53')
    e(f'v_mul_f32 v54, 0x{NLOG2E:08x}, v53')
    e('v_exp_f32 v54, v54')
    e('s_nop 0')
    e('v_add_f32 v54, 1.0, v54')
    e('v_rcp_f32 v54, v54')
    e('s_nop 0')
    e('v_mul_f32 v54, v53, v54')
    e('v_cvt_pk_bf16_f32 v54, v54, v54')
    e('v_lshlrev_b32 v54, 16, v54')
    for j in range(4):
        e(f'v_lshlrev_b32 v132, 16, v{48+j}')
        e(f'v_and_b32 v133, 0xffff0000, v{48+j}')
        e(f'v_mul_f32 v{144+2*j}, v132, v54')
        e(f'v_mul_f32 v{145+2*j}, v133, v54')
    for (src, dst, rr) in ((144, 134, 1), (134, 144, 2), (144, 134, 4), (134, 144, 8)):
        e('s_nop 1')
        for j in range(8):
            e(f'v_add_f32_dpp v{dst+j}, v{src+j}, v{src+j} row_ror:{rr} row_mask:0xf bank_mask:0xf')
    e('v_lshrrev_b32 v55, 4, v0')
    e('v_mul_u32_u24 v55, 384, v55')
    e('ds_write_b128 v55, v[144:147] offset:2304')
    e('ds_write_b128 v55, v[148:151] offset:2320')
    e('v_and_b32 v12, 31, v1')
    e('v_lshrrev_b32 v13, 5, v1')
    e('v_lshrrev_b32 v14, 1, v2')
    e('v_lshl_add_u32 v14, v14, 5, v12')
    e('v_and_b32 v15, 1, v2')
    e('v_lshlrev_b32 v16, 5, v15')
    e('v_lshl_add_u32 v16, v13, 4, v16')
    e('v_lshl_add_u32 v17, v14, 10, v16')
    e('s_add_u32 s33, s30, s72')
    e(f'buffer_load_dwordx4 v[20:23], v17, s[{SX}:{SX+3}], s33 offen')
    e('s_waitcnt lgkmcnt(0)')
    e('s_barrier')
    dstamp(L, 1, 5)
    e('v_and_b32 v24, 127, v0')
    e('v_min_u32 v24, 71, v24')
    e('v_lshrrev_b32 v25, 7, v0')
    e('v_mul_u32_u24 v26, 3072, v25')
    e('v_lshl_add_u32 v26, v24, 2, v26')
    for p in range(8):
        e(f'ds_read_b32 v{28+p}, v26 offset:{2048 + 384*p}')
    e('v_lshlrev_b32 v27, 3, v14')
    e('ds_read_b64 v[40:41], v27')
    e('s_waitcnt lgkmcnt(1)')
    for p in range(1, 8):
        e(f'v_add_f32 v28, v28, v{28+p}')
    e('v_lshlrev_b32 v26, 9, v25')
    e('v_lshl_add_u32 v26, v24, 2, v26')
    e('ds_write_b32 v26, v28 offset:14336')
    e('s_waitcnt lgkmcnt(0)')
    e('s_barrier')
    e('v_lshlrev_b32 v26, 1, v16')
    for sl in range(2):
        for pt in range(4):
            for hf in range(2):
                r = 64 + 32 * sl + 8 * pt + 4 * hf
                e(f'ds_read_b128 v[{r}:{r+3}], v26 offset:{14336 + 512*pt + 128*sl + 16*hf}')
    e('s_cmp_lg_u32 s36, 0')
    e(f's_cbranch_scc1 {name}_no3c')
    e('v_and_b32 v42, 3, v0')
    e('v_lshlrev_b32 v43, 3, v42')
    for pt in range(4):
        e(f'ds_read_b64 v[{44+2*pt}:{45+2*pt}], v43 offset:{14336 + 512*pt + 256}')
    e('s_waitcnt lgkmcnt(0)')
    for pt in range(1, 4):
        e(f'v_add_f32 v44, v44, v{44+2*pt}')
        e(f'v_add_f32 v45, v45, v{45+2*pt}')
    e('v_cvt_pk_bf16_f32 v44, v44, v45')
    e('v_lshlrev_b32 v43, 2, v42')
    e(f'buffer_store_dword v44, v43, s[{SM}:{SM+3}], s38 offen')
    e(f'{name}_no3c:')
    e('s_waitcnt lgkmcnt(0)')
    for sl in range(2):
        b = 64 + 32 * sl
        for k in range(8):
            e(f'v_add_f32 v{b+k}, v{b+k}, v{b+8+k}')
            e(f'v_add_f32 v{b+16+k}, v{b+16+k}, v{b+24+k}')
        for k in range(8):
            e(f'v_add_f32 v{b+k}, v{b+k}, v{b+16+k}')
    for k in range(0, 8, 2):
        rnd_pair(e, 64 + k, 65 + k, 64 + k, 65 + k, 50)
        rnd_pair(e, 96 + k, 97 + k, 96 + k, 97 + k, 50)
        e(f'v_add_f32 v{96+k}, 1.0, v{96+k}')
        e(f'v_add_f32 v{97+k}, 1.0, v{97+k}')
        rnd_pair(e, 96 + k, 97 + k, 96 + k, 97 + k, 50)
    e('s_waitcnt vmcnt(0)' if False else 's_waitcnt vmcnt(1)')
    e('s_waitcnt vmcnt(0)')
    for pr in range(4):
        x0, x1 = 52 + 2 * pr, 53 + 2 * pr
        e(f'v_lshlrev_b32 v{x0}, 16, v{20+pr}')
        e(f'v_and_b32 v{x1}, 0xffff0000, v{20+pr}')
        e(f'v_sub_f32 v{x0}, v{x0}, v40')
        e(f'v_sub_f32 v{x1}, v{x1}, v40')
        rnd_pair(e, x0, x1, x0, x1, 50)
        e(f'v_mul_f32 v{x0}, v{x0}, v41')
        e(f'v_mul_f32 v{x1}, v{x1}, v41')
        rnd_pair(e, x0, x1, x0, x1, 50)
        e(f'v_mul_f32 v{x0}, v{x0}, v{96+2*pr}')
        e(f'v_mul_f32 v{x1}, v{x1}, v{97+2*pr}')
        rnd_pair(e, x0, x1, x0, x1, 50)
        e(f'v_add_f32 v{x0}, v{x0}, v{64+2*pr}')
        e(f'v_add_f32 v{x1}, v{x1}, v{65+2*pr}')
        e(f'v_cvt_pk_bf16_f32 v{60+pr}, v{x0}, v{x1}')
    e('v_lshrrev_b32 v24, 1, v2')
    e('v_lshlrev_b32 v24, 15, v24')
    e('v_lshl_add_u32 v24, v15, 10, v24')
    e('v_lshl_add_u32 v24, v1, 4, v24')
    e('s_lshl_b32 s34, s28, 17')
    e('s_lshl_b32 s35, s37, 11')
    e('s_add_u32 s34, s34, s35')
    e(f'buffer_store_dwordx4 v[60:63], v24, s[{SH}:{SH+3}], s34 offen')
    dstamp(L, 1, 6)
    dstamp_store(L, 1, 7)
    asmlib.STAMPB = 64
    return L, e, locals()

def gen_pre3_full(name='pre_kernel', pf_early=True):
    L, e, lc = gen_pre3(name)
    prof_end(L, 1, 1)
    e(f'{name}_done:')
    e('s_endpgm')
    L = hoist(L)
    for h in check_hazards(L, name): print('HAZARD', h)
    return L, kernel_desc(name, 176, 102, 176), f'; @launch kernel={name} grid=(256,1,1) block=(512,1,1) lds=16640'
```

```python
from asmlib import *
import asmlib
from k_small import *
from k_attn import interleave

PART_OFF = 40 << 20
X1F_OFF = X1_OFF
PF_W = False
BF16P = True

def gen_wo2(name='wo_kernel'):
    KI = 3
    NST = 16
    L = kernel_header(name)
    e = L.append
    vq = Q(63)
    SWT, SB, SD = 8, 12, 16
    S_W, S_MT, S_NT, S_KS, S_T0, S_T1, S_WO, S_BO, S_LW, S_LB = 28, 29, 30, 31, 32, 33, 34, 35, 36, 37
    S_D = 38
    VWD, VH, VAD, VBD = 10, 11, 12, 14
    ACC = 32
    def AF(st, ks, nb): return 16 * st + 8 * 0 + 4 * nb + 8 * 0
    def AFR(st, nb): return 16 * st + 4 * nb
    def BFR(st, rb): return 16 * st + 8 + 4 * rb
    prof_begin(L)
    dstamp(L, KI, 0)
    claim(L, name, 131072, vb=28)
    e(f's_load_dwordx2 s[48:49], s[0:1], {KA["wo"]}')
    e(f's_load_dwordx2 s[50:51], s[0:1], {KA["ws"]}')
    e(f's_load_dwordx4 s[52:55], s[0:1], {KA["wg"]}')
    e('v_lshrrev_b32 v1, 6, v0')
    e('v_and_b32 v2, 63, v0')
    e(f'v_readfirstlane_b32 s{S_W}, v1')
    e(f's_and_b32 s{S_T0}, s2, 7')
    e(f's_lshr_b32 s{S_T1}, s2, 3')
    e(f's_lshr_b32 s{S_KS}, s{S_T0}, 1')
    e(f's_and_b32 s{S_T0}, s{S_T0}, 1')
    e(f's_lshl_b32 s{S_MT}, s{S_T0}, 3')
    e(f's_and_b32 s{S_T0}, s{S_T1}, 7')
    e(f's_add_u32 s{S_MT}, s{S_MT}, s{S_T0}')
    e(f's_lshr_b32 s{S_NT}, s{S_T1}, 3')
    e('v_lshrrev_b32 v3, 4, v2')
    e('v_and_b32 v4, 15, v2')
    e('v_lshlrev_b32 v5, 2, v3')
    e('v_xor_b32 v5, v5, v4')
    e(f's_lshl_b32 s{S_T0}, s{S_W}, 4')
    e(f'v_add_u32 v6, s{S_T0}, v3')
    e('v_lshlrev_b32 v6, 10, v6')
    e(f'v_lshl_add_u32 v{VWD}, v5, 4, v6')
    e(f's_lshl_b32 s{S_T0}, s{S_NT}, 8')
    e(f'v_add_u32 v{VWD}, s{S_T0}, v{VWD}')
    e(f'v_lshlrev_b32 v{VH}, 4, v2')
    e(f's_lshl_b32 s{S_WO}, s{S_KS}, 20')
    e(f's_lshl_b32 s{S_T0}, s{S_MT}, 2')
    e(f's_add_u32 s{S_T0}, s{S_T0}, s{S_W}')
    e(f's_lshl_b32 s{S_BO}, s{S_T0}, 18')
    e(f's_lshl_b32 s{S_T1}, s{S_KS}, 16')
    e(f's_add_u32 s{S_BO}, s{S_BO}, s{S_T1}')
    e(f's_lshl_b32 s{S_LW}, s{S_W}, 12')
    e(f's_add_u32 s{S_LB}, s{S_LW}, 16384')
    e('s_waitcnt lgkmcnt(0)')
    srd(L, SWT, 48, 4096 * 1024)
    srd_off(L, SB, 50, O_OFF, 2048 * 8192)
    def issue(s_):
        ops = []
        base = (s_ % 4) * 32768
        ops.append((f's_add_u32 m0, s{S_LB}, {base}', 2))
        ops.append((f's_add_u32 s{S_T1}, s{S_BO}, {s_*4096}', 2))
        for i in range(4):
            ops.append((f'buffer_load_dwordx4 v{VH}, s[{SB}:{SB+3}], s{S_T1} offen offset:{i*1024} lds', 8, ('S', s_)))
        for i in range(4):
            ops.append((f's_add_u32 m0, s{S_LW}, {base + i*1024}', 2))
            ops.append((f's_add_u32 s{S_T0}, s{S_WO}, {(64*s_ + 4*i)*1024}', 2))
            ops.append((f'buffer_load_dwordx4 v{VWD}, s[{SWT}:{SWT+3}], s{S_T0} offen lds', 8, ('S', s_)))
        return ops
    def emit_ops(ops):
        for o in ops:
            e(o[0])
            if len(o) > 2: vq.issue(o[2])
    dstamp(L, KI, 1)
    emit_ops(issue(0)); emit_ops(issue(1))
    dstamp(L, KI, 2)
    e('v_lshrrev_b32 v5, 2, v4')
    e('v_and_b32 v6, 3, v2')
    e('v_lshrrev_b32 v7, 1, v3')
    e('v_and_b32 v8, 1, v3')
    e('v_lshl_add_u32 v7, v7, 2, v5')
    e('v_lshlrev_b32 v7, 8, v7')
    e('v_lshl_add_u32 v7, v8, 5, v7')
    e('v_lshl_add_u32 v7, v6, 3, v7')
    e(f's_and_b32 s{S_T0}, s{S_W}, 1')
    e(f's_lshl_b32 s{S_T0}, s{S_T0}, 1')
    for nb in range(2):
        e(f's_add_u32 s{S_T1}, s{S_T0}, {nb}')
        e(f'v_xor_b32 v9, s{S_T1}, v5')
        e(f'v_lshl_add_u32 v{VAD+nb}, v9, 6, v7')
        e(f'v_add_u32 v{VAD+4+nb}, 0x10000, v{VAD+nb}')
    e(f's_lshr_b32 s{S_T0}, s{S_W}, 1')
    e(f's_lshl_b32 s{S_T0}, s{S_T0}, 13')
    e(f's_add_u32 s{S_T0}, s{S_T0}, 16384')
    e(f'v_add_u32 v{VBD}, s{S_T0}, v{VH}')
    e(f'v_add_u32 v{VBD+4}, 0x10000, v{VBD}')
    srd_off(L, SD, 50, PART_OFF, 16 << 20)
    e(f's_lshl_b32 s{S_T0}, s{S_MT}, 2')
    e(f's_lshr_b32 s{S_T1}, s{S_W}, 1')
    e(f's_lshl_b32 s{S_T1}, s{S_T1}, 1')
    e(f's_add_u32 s{S_T0}, s{S_T0}, s{S_T1}')
    e(f's_lshl_b32 s{S_T0}, s{S_T0}, 4')
    e(f's_lshl_b32 s{S_T1}, s{S_NT}, 2')
    e(f's_add_u32 s{S_T0}, s{S_T0}, s{S_T1}')
    e(f's_and_b32 s{S_T1}, s{S_W}, 1')
    e(f's_lshl_b32 s{S_T1}, s{S_T1}, 1')
    e(f's_add_u32 s{S_T0}, s{S_T0}, s{S_T1}')
    SH_ = 1 if BF16P else 0
    e(f's_lshl_b32 s{S_T0}, s{S_T0}, {12-SH_}')
    e(f's_lshl_b32 s{S_T1}, s{S_KS}, {22-SH_}')
    e(f's_add_u32 s{S_D}, s{S_T0}, s{S_T1}')
    e(f's_add_u32 s{S_D+1}, s{S_D}, {4096>>SH_}')
    e(f's_add_u32 s{S_D+2}, s{S_D}, {65536>>SH_}')
    e(f's_add_u32 s{S_D+3}, s{S_D+2}, {4096>>SH_}')
    def reads(kk):
        s_, ks = kk // 4, kk % 4
        st = kk % 2
        base = (s_ % 4) * 32768
        hi = 4 if base >= 65536 else 0
        base &= 0xffff
        ops = []
        for rb in range(2):
            ops.append((f'ds_read_b128 {a(BFR(st,rb),4)}, v{VBD+hi} offset:{base + rb*4096 + ks*1024}', 4))
        for nb in range(2):
            for aa in range(2):
                ops.append((f'ds_read_b64_tr_b16 {a(AFR(st,nb)+2*aa,2)}, v{VAD+hi+nb} offset:{base + (16*ks+8*aa)*256}', 4))
        return ops
    def mfmas(kk):
        st = kk % 2
        m = []
        for nb in range(2):
            for rb in range(2):
                acc = ACC + 16 * (2 * rb + nb)
                c = '0' if kk == 0 else v(acc, 16)
                m.append((f'v_mfma_f32_32x32x16_bf16 {v(acc,16)}, {a(AFR(st,nb),4)}, {a(BFR(st,rb),4)}, {c}', 24))
        return m
    e('v_min_u32 v19, 880, v11')
    e('s_lshr_b32 s57, s2, 3')
    e('s_lshl_b32 s57, s57, 4')
    e(f's_lshl_b32 s56, s{S_W}, 2')
    e('s_add_u32 s57, s57, s56')
    e('s_mul_i32 s57, s57, 3584')
    e('s_bfe_u32 s56, s2, 0x20001')
    e('s_mul_i32 s56, s56, 896')
    e('s_add_u32 s57, s57, s56')
    srd(L, 60, 52, 512 * 3584)
    srd(L, 44, 54, 512 * 3584)
    pfops = []
    for r in range(4):
        for sr in (60, 44):
            pfops.append((f'buffer_load_dwordx4 v[28:31], v19, s[{sr}:{sr+3}], s57 offen', 8, ('pf', r)))
        pfops.append(('s_add_u32 s57, s57, 3584', 2))
    n = vq.wait_for(lambda x: x == ('S', 0))
    e(f's_waitcnt vmcnt({n})')
    e('s_barrier')
    dstamp(L, KI, 3)
    L += [x[0] for x in reads(0)]
    pend = issue(2) + issue(3)
    for kk in range(4 * NST):
        s_, ks = kk // 4, kk % 4
        if kk == 2 * NST: dstamp(L, KI, 4)
        e('s_waitcnt lgkmcnt(0)')
        if ks == 3 and s_ + 1 < NST:
            n = vq.wait_for(lambda x: x == ('S', s_ + 1))
            if n is not None: e(f's_waitcnt vmcnt({n})')
            e('s_barrier')
            if s_ + 4 < NST:
                pend += issue(s_ + 4)
            elif s_ + 4 == NST:
                pend += pfops
        take = []
        if pend:
            cnt = 0
            lim = 4 if s_ == 0 else 2
            while pend and (cnt < lim or len(pend[0]) == 2 and False):
                o = pend.pop(0); take.append(o)
                if len(o) > 2: cnt += 1
        qs = []
        if kk + 1 < 4 * NST:
            qs.append(dict(items=reads(kk + 1), start=0, end=2))
        if take:
            qs.append(dict(items=[(o[0], o[1]) for o in take], start=0, end=3))
        L += interleave(mfmas(kk), qs)
        for o in take:
            if len(o) > 2: vq.issue(o[2])
    assert not pend
    dstamp(L, KI, 5)
    e('s_nop 11')
    for rb in range(2):
        for nb in range(2):
            acc = ACC + 16 * (2 * rb + nb)
            if BF16P:
                for b in range(2):
                    pk = 20 + 4 * b
                    for i in range(4):
                        e(f'v_cvt_pk_bf16_f32 v{pk+i}, v{acc+8*b+2*i}, v{acc+8*b+2*i+1}')
                    e(f'buffer_store_dwordx4 {v(pk,4)}, v{VH}, s[{SD}:{SD+3}], s{S_D+2*rb+nb} offen offset:{b*1024}')
                e('s_nop 0')
            else:
                for g in range(4):
                    e(f'buffer_store_dwordx4 {v(acc+4*g,4)}, v{VH}, s[{SD}:{SD+3}], s{S_D+2*rb+nb} offen offset:{g*1024}')
    dstamp(L, KI, 6)
    dstamp_store(L, KI, 7)
    prof_end(L, KI, 1)
    e(f'{name}_done:')
    e('s_endpgm')
    L = hoist(L)
    for h in check_hazards(L, name): print('HAZARD', h)
    return L, kernel_desc(name, 96 + 32, 102, 96), f'; @launch kernel={name} grid=(256,1,1) block=(256,1,1) lds=131328'


def gen_ln2r(name='ln2_kernel'):
    L = kernel_header(name)
    e = L.append
    prof_begin(L)
    SP, SX, SM, SH2, SX1 = 8, 12, 16, 20, 24
    e('s_cmp_ge_u32 s2, 256')
    e(f's_cbranch_scc1 {name}_done')
    e(f's_load_dwordx2 s[4:5], s[0:1], {KA["x"]}')
    e(f's_load_dwordx2 s[6:7], s[0:1], {KA["ws"]}')
    e('v_and_b32 v1, 63, v0')
    e('v_lshrrev_b32 v2, 6, v0')
    e('v_and_b32 v3, 7, v1')
    e('v_bfe_u32 v4, v1, 3, 1')
    e('v_bfe_u32 v5, v1, 4, 1')
    e('v_lshrrev_b32 v6, 5, v1')
    e('v_lshl_add_u32 v7, v2, 2, v6')
    e('s_and_b32 s38, s2, 1')
    e('s_lshl_b32 s38, s38, 7')
    e('s_bfe_u32 s39, s2, 0x20001')
    e('s_lshl_b32 s39, s39, 5')
    e('s_add_u32 s38, s38, s39')
    e('s_lshr_b32 s39, s2, 3')
    e('s_add_u32 s38, s38, s39')
    e('s_and_b32 s3, s38, 3')
    e('s_lshl_b32 s3, s3, 3')
    e('v_add_u32 v8, s3, v3')
    e('s_lshr_b32 s28, s38, 2')
    SH_ = 1 if BF16P else 0
    e('v_lshl_add_u32 v9, v4, 5, v8')
    e('v_lshlrev_b32 v9, 4, v9')
    e(f'v_lshl_add_u32 v9, v5, {11-SH_}, v9')
    e(f'v_lshl_add_u32 v9, v7, {12-SH_}, v9')
    e(f'v_add_u32 v10, {0x2000>>SH_}, v9')
    e(f's_lshl_b32 s29, s28, {16-SH_}')
    for ks in range(1, 4):
        e(f's_add_u32 s{29+ks}, s{28+ks}, {(4<<20)>>SH_}')
    e('v_lshlrev_b32 v11, 6, v7')
    e('v_lshl_add_u32 v11, v5, 5, v11')
    e('v_lshl_add_u32 v11, v4, 3, v11')
    e('v_lshl_add_u32 v12, v3, 10, v11')
    e('s_lshl_b32 s33, s38, 13')
    e('s_waitcnt lgkmcnt(0)')
    srd_off(L, SP, 6, PART_OFF, 16 << 20)
    srd(L, SX, 4, 2048 * 1024)
    srd_off(L, SM, 6, MOD_OFF, 6144)
    srd_off(L, SH2, 6, H2_OFF, 2048 * 1024)
    srd_off(L, SX1, 6, X1F_OFF, 2048 * 1024)
    for ks in range(4):
        for i in range(2):
            if BF16P:
                r = 64 + 8 * ks + 4 * i
                e(f'buffer_load_dwordx4 v[{r}:{r+3}], v{9+i}, s[{SP}:{SP+3}], s{29+ks} offen')
                continue
            for aa in range(2):
                r = 32 + 16 * ks + 4 * (2 * i + aa)
                e(f'buffer_load_dwordx4 v[{r}:{r+3}], v{9+i}, s[{SP}:{SP+3}], s{29+ks} offen offset:{aa*1024}')
    for i in range(2):
        for aa in range(2):
            q = 2 * i + aa
            e(f'buffer_load_dwordx2 v[{96+2*q}:{97+2*q}], v12, s[{SX}:{SX+3}], s33 offen offset:{128*i + 16*aa}')
    e('s_movk_i32 s34, 4096')
    for (base, off) in ((104, 2048), (112, 3072), (120, None)):
        for i in range(2):
            for aa in range(2):
                q = 2 * i + aa
                if off is None:
                    e(f'buffer_load_dwordx2 v[{base+2*q}:{base+1+2*q}], v11, s[{SM}:{SM+3}], s34 offen offset:{128*i + 16*aa}')
                else:
                    e(f'buffer_load_dwordx2 v[{base+2*q}:{base+1+2*q}], v11, s[{SM}:{SM+3}], 0 offen offset:{off + 128*i + 16*aa}')
    e('v_lshrrev_b32 v13, 3, v1')
    e('v_lshl_add_u32 v13, v2, 3, v13')
    e('v_lshlrev_b32 v13, 2, v13')
    e('v_lshl_add_u32 v13, v3, 7, v13')
    e('v_lshlrev_b32 v14, 7, v3')
    npf = 0
    if PF_W:
        e(f's_load_dwordx4 s[40:43], s[0:1], {KA["wg"]}')
        e('v_lshlrev_b32 v22, 4, v1')
        e('v_min_u32 v22, 880, v22')
        e('v_readfirstlane_b32 s36, v2')
        e('s_lshr_b32 s37, s2, 3')
        e('s_lshl_b32 s37, s37, 4')
        e('s_lshl_b32 s36, s36, 2')
        e('s_add_u32 s37, s37, s36')
        e('s_mul_i32 s37, s37, 3584')
        e('s_bfe_u32 s36, s2, 0x20001')
        e('s_mul_i32 s36, s36, 896')
        e('s_add_u32 s37, s37, s36')
        e('s_waitcnt lgkmcnt(0)')
        srd(L, 44, 40, 512 * 3584)
        srd(L, 48, 42, 512 * 3584)
        for r in range(4):
            for sr in (44, 48):
                e(f'buffer_load_dwordx4 v[24:27], v22, s[{sr}:{sr+3}], s37 offen')
                npf += 1
            e('s_add_u32 s37, s37, 3584')
    e(f's_waitcnt vmcnt({16+npf})')
    if BF16P:
        for q in range(8):
            e(f'v_lshlrev_b32 v{32+2*q}, 16, v{64+q}')
            e(f'v_and_b32 v{33+2*q}, 0xffff0000, v{64+q}')
        for ks in range(1, 4):
            for q in range(8):
                e(f'v_lshlrev_b32 v16, 16, v{64+8*ks+q}')
                e(f'v_and_b32 v17, 0xffff0000, v{64+8*ks+q}')
                e(f'v_add_f32 v{32+2*q}, v{32+2*q}, v16')
                e(f'v_add_f32 v{33+2*q}, v{33+2*q}, v17')
    else:
        for i in range(16):
            e(f'v_add_f32 v{32+i}, v{32+i}, v{48+i}')
            e(f'v_add_f32 v{64+i}, v{64+i}, v{80+i}')
        for i in range(16):
            e(f'v_add_f32 v{32+i}, v{32+i}, v{64+i}')
    e(f's_waitcnt vmcnt({8+npf})')
    for pr in range(8):
        x0, x1 = 32 + 2 * pr, 33 + 2 * pr
        rnd_pair(e, x0, x1, x0, x1, 15)
        e(f'v_lshlrev_b32 v16, 16, v{104+pr}')
        e(f'v_and_b32 v17, 0xffff0000, v{104+pr}')
        e(f'v_mul_f32 v{x0}, v{x0}, v16')
        e(f'v_mul_f32 v{x1}, v{x1}, v17')
        rnd_pair(e, x0, x1, x0, x1, 15)
        e(f'v_lshlrev_b32 v16, 16, v{96+pr}')
        e(f'v_and_b32 v17, 0xffff0000, v{96+pr}')
        e(f'v_add_f32 v{x0}, v{x0}, v16')
        e(f'v_add_f32 v{x1}, v{x1}, v17')
        e(f'v_cvt_pk_bf16_f32 v{48+pr}, v{x0}, v{x1}')
        e(f'v_lshlrev_b32 v{x0}, 16, v{48+pr}')
        e(f'v_and_b32 v{x1}, 0xffff0000, v{48+pr}')
    e('v_and_b32 v18, 15, v8')
    e('v_lshl_add_u32 v19, v5, 1, v4')
    e('v_lshl_add_u32 v18, v19, 4, v18')
    e('v_lshlrev_b32 v18, 4, v18')
    e('v_lshl_add_u32 v18, v7, 10, v18')
    e('s_lshr_b32 s35, s38, 1')
    e('s_lshl_b32 s35, s35, 14')
    e(f'buffer_store_dwordx4 v[48:51], v18, s[{SX1}:{SX1+3}], s35 offen')
    e(f'buffer_store_dwordx4 v[52:55], v18, s[{SX1}:{SX1+3}], s35 offen offset:2048')
    e('v_add_f32 v20, v32, v33')
    e('v_add_f32 v21, v34, v35')
    for r in range(4, 16, 2):
        e(f'v_add_f32 v20, v20, v{32+r}')
        e(f'v_add_f32 v21, v21, v{33+r}')
    e('v_add_f32 v20, v20, v21')
    e('ds_write_b32 v13, v20')
    e('s_waitcnt lgkmcnt(0)')
    e('s_barrier')
    for q in range(8):
        e(f'ds_read_b128 v[{64+4*q}:{67+4*q}], v14 offset:{16*q}')
    e('s_waitcnt lgkmcnt(0)')
    for q in range(16):
        e(f'v_add_f32 v{64+q}, v{64+q}, v{80+q}')
    for q in range(8):
        e(f'v_add_f32 v{64+q}, v{64+q}, v{72+q}')
    for q in range(4):
        e(f'v_add_f32 v{64+q}, v{64+q}, v{68+q}')
    e('v_add_f32 v64, v64, v66')
    e('v_add_f32 v65, v65, v67')
    e('v_add_f32 v64, v64, v65')
    e('v_mul_f32 v20, 0x3b000000, v64')
    e('v_sub_f32 v21, v32, v20')
    e('v_mul_f32 v22, v21, v21')
    e('v_sub_f32 v21, v33, v20')
    e('v_mul_f32 v23, v21, v21')
    for r in range(2, 16):
        e(f'v_sub_f32 v21, v{32+r}, v20')
        e(f'v_fmac_f32 v{22 + (r & 1)}, v21, v21')
    e('v_add_f32 v22, v22, v23')
    e('ds_write_b32 v13, v22 offset:1024')
    e('s_waitcnt lgkmcnt(0)')
    e('s_barrier')
    for q in range(8):
        e(f'ds_read_b128 v[{64+4*q}:{67+4*q}], v14 offset:{1024 + 16*q}')
    e('s_waitcnt lgkmcnt(0)')
    for q in range(16):
        e(f'v_add_f32 v{64+q}, v{64+q}, v{80+q}')
    for q in range(8):
        e(f'v_add_f32 v{64+q}, v{64+q}, v{72+q}')
    for q in range(4):
        e(f'v_add_f32 v{64+q}, v{64+q}, v{68+q}')
    e('v_add_f32 v64, v64, v66')
    e('v_add_f32 v65, v65, v67')
    e('v_add_f32 v64, v64, v65')
    e('v_mul_f32 v21, 0x3b000000, v64')
    rnd_pair(e, 20, 21, 20, 21, 15)
    e('v_add_f32 v21, 0x3727c5ac, v21')
    e('v_cvt_pk_bf16_f32 v21, v21, v21')
    e('v_lshlrev_b32 v21, 16, v21')
    e('v_sqrt_f32 v21, v21')
    e('s_nop 0')
    e('v_cvt_pk_bf16_f32 v21, v21, v21')
    e('v_lshlrev_b32 v21, 16, v21')
    e('v_rcp_f32 v21, v21')
    e(f's_waitcnt vmcnt({2+npf})')
    for pr in range(8):
        x0, x1 = 32 + 2 * pr, 33 + 2 * pr
        e(f'v_sub_f32 v{x0}, v{x0}, v20')
        e(f'v_sub_f32 v{x1}, v{x1}, v20')
        rnd_pair(e, x0, x1, x0, x1, 15)
        e(f'v_mul_f32 v{x0}, v{x0}, v21')
        e(f'v_mul_f32 v{x1}, v{x1}, v21')
        rnd_pair(e, x0, x1, x0, x1, 15)
        e(f'v_lshlrev_b32 v16, 16, v{120+pr}')
        e(f'v_and_b32 v17, 0xffff0000, v{120+pr}')
        e('v_add_f32 v16, 1.0, v16')
        e('v_add_f32 v17, 1.0, v17')
        rnd_pair(e, 16, 17, 16, 17, 15)
        e(f'v_mul_f32 v{x0}, v{x0}, v16')
        e(f'v_mul_f32 v{x1}, v{x1}, v17')
        rnd_pair(e, x0, x1, x0, x1, 15)
        e(f'v_lshlrev_b32 v16, 16, v{112+pr}')
        e(f'v_and_b32 v17, 0xffff0000, v{112+pr}')
        e(f'v_add_f32 v{x0}, v{x0}, v16')
        e(f'v_add_f32 v{x1}, v{x1}, v17')
        e(f'v_cvt_pk_bf16_f32 v{56+pr}, v{x0}, v{x1}')
    e(f'buffer_store_dwordx4 v[56:59], v18, s[{SH2}:{SH2+3}], s35 offen')
    e(f'buffer_store_dwordx4 v[60:63], v18, s[{SH2}:{SH2+3}], s35 offen offset:2048')
    prof_end(L, 4, 1)
    e(f'{name}_done:')
    e('s_endpgm')
    L = hoist(L)
    for h in check_hazards(L, name): print('HAZARD', h)
    return L, kernel_desc(name, 128, 102, 128), f'; @launch kernel={name} grid=(256,1,1) block=(256,1,1) lds=2304'
```

```python
from asmlib import *
import asmlib
from k_small import *
from k_attn import interleave, f2u
import math

def O_(db, qb): return 16 * (2 * db + qb)
def Q_(qb, s_): return 128 + 4 * (8 * qb + s_)
def KF(s_): return 192 + 4 * s_
def VF(ks, db): return 224 + 4 * (4 * ks + db)
KAD = 16
VAD = 24
KADH = 210
VADH = 218
WAD = 28
WAD2 = 200
def S_(p, qb): return 32 + 32 * p + 16 * qb
def P_(p, qb): return 96 + 16 * p + 8 * qb
def NEGM(qb): return 128 + 16 * qb
LSUM = 160
LB = 162
TMP = 172
MX = 180
VKD0, VKD1, VVD, VWD, VH = 182, 183, 184, 185, 186
RT = 188
PFD = 204
VPF = 208
def QA(db, qb): return 32 + 16 * (2 * db + qb)
def HF(c, ks, qb): return 32 * (c % 4) + 8 * ks + 4 * qb
def WF(st, db): return 192 + 16 * st + 4 * db

SK, SV, SW, SH, SO = 8, 12, 16, 20, 24
S_W, S_HEAD, S_QB, S_CNT, S_KOFF, S_VOFF, S_KSLOT, S_WB, S_WBV, S_THR, S_T0, S_T1 = 28, 29, 30, 31, 32, 33, 34, 35, 36, 37, 38, 39
S_RET = 40
S_H0, S_H1 = 42, 43
S_O0, S_O1, S_O2, S_O3 = 44, 45, 46, 47
S_VSLOT, S_PF = 56, 57
S_PW = 58
SPFS = [4, 48, 52, 60]

THRESH = 2.0 ** 80
BIAS = 96.0
QSCALE = (128 ** -0.5) * 1.4426950408889634
DK, DV = 5, 4
PREFETCH = True
USE_PK = False
TWOACC = False
ABL = set()

HC_LOC = [(hc // 2) * 16384 + (hc % 2) * 2048 for hc in range(16)]
KV_AT = {4: [0, 1], 5: [2], 6: [3], 7: [4]}
OSC = ' sc0 sc1'
LMODE = 'valu'
ONES = 168
LM = 222

CV, CE, CD, CM, CS = 4, 8, 4, 16, 4

LACC = 164
def softmax_ops(p, first=False):
    ops = []
    if not first:
        for qb in range(2):
            ops.append((f'v_add_f32 v{LSUM+qb}, v{LSUM+qb}, v{LB+qb}', CV))
    prev = []
    qi = 0
    for qb in range(2):
        for i in range(8):
            sa, sb = S_(p, qb) + 2 * i, S_(p, qb) + 2 * i + 1
            ta, tb = TMP + 2 * (qi % 4), TMP + 2 * (qi % 4) + 1
            pa = TMP + 2 * ((qi - 1) % 4)
            ops.append((f'v_exp_f32 v{ta}, v{sa}', CE))
            ops += prev[:1]
            ops.append((f'v_exp_f32 v{tb}, v{sb}', CE))
            ops += prev[1:]
            prev = [(f'v_cvt_pk_bf16_f32 v{P_(p,qb)+i}, v{ta}, v{tb}', CV)]
            if USE_PK:
                ac = LACC + 2 * qb
                if i == 1:
                    prev.append((f'v_pk_add_f32 v[{ac}:{ac+1}], v[{pa}:{pa+1}], v[{ta}:{tb}]', CV))
                elif i > 1:
                    prev.append((f'v_pk_add_f32 v[{ac}:{ac+1}], v[{ac}:{ac+1}], v[{ta}:{tb}]', CV))
                if i == 7:
                    prev.append((f'v_add_f32 v{LB+qb}, v{ac}, v{ac+1}', CV))
            elif TWOACC:
                ac = LACC + 2 * qb
                if i == 0:
                    pass
                elif i == 1:
                    prev.append((f'v_add_f32 v{ac}, v{pa}, v{ta}', CV))
                    prev.append((f'v_add_f32 v{ac+1}, v{pa+1}, v{tb}', CV))
                else:
                    prev.append((f'v_add_f32 v{ac}, v{ac}, v{ta}', CV))
                    prev.append((f'v_add_f32 v{ac+1}, v{ac+1}, v{tb}', CV))
                if i == 7:
                    prev.append((f'v_add_f32 v{LB+qb}, v{ac}, v{ac+1}', CV))
            else:
                if i == 0:
                    prev.append((f'v_add_f32 v{LB+qb}, v{ta}, v{tb}', CV))
                else:
                    prev.append((f'v_add_f32 v{LB+qb}, v{LB+qb}, v{ta}', CV))
                    prev.append((f'v_add_f32 v{LB+qb}, v{LB+qb}, v{tb}', CV))
            qi += 1
    ops += prev
    ops.append((f'v_max_f32 v{RT}, v{LB}, v{LB+1}', CV))
    ops.append((f'v_cmp_nle_f32 vcc, v{RT}, v{MX}', CV))
    return ops


def pv_mfmas(p, czero=False):
    m = []
    for ks in range(2):
        for db in range(4):
            for qb in range(2):
                c = '0' if (czero and ks == 0) else a(O_(db, qb), 16)
                m.append((f'v_mfma_f32_32x32x16_bf16 {a(O_(db,qb),16)}, {a(VF(ks,db),4)}, {v(P_(p,qb)+4*ks,4)}, {c}', 24))
    return m

def qk_mfmas(p, czero=False):
    m = []
    for s_ in range(8):
        for qb in range(2):
            c = v(S_(p, qb), 16) if s_ else ('0' if czero else v(NEGM(qb), 16))
            m.append((f'v_mfma_f32_32x32x16_bf16 {v(S_(p,qb),16)}, {a(KF(s_),4)}, {a(Q_(qb,s_),4)}, {c}', 24))
    return m

def k_reads(slot):
    ops = []
    base = KAD if slot < 4 else KADH
    for s_ in range(8):
        ops.append((f'ds_read_b128 {a(KF(s_),4)}, v{base+s_} offset:{(slot%4)*16384}', CD))
    return ops

def v_reads(slot):
    ops = []
    base = VAD if slot < 4 else VADH
    for ks in range(2):
        for db in range(4):
            for aa in range(2):
                ops.append((f'ds_read_b64_tr_b16 {a(VF(ks,db)+2*aa,2)}, v{base+db} offset:{(slot%4)*16384 + (2*ks+aa)*4096}', CD))
    return ops

def dma_ops(slot, pf=()):
    ops = [
        (f's_add_u32 m0, s{S_WB}, {slot*16384}', 20),
        (f'buffer_load_dwordx4 v{VKD0}, s[{SK}:{SK+3}], s{S_KOFF} offen lds', CM),
        (f'buffer_load_dwordx4 v{VKD1}, s[{SK}:{SK+3}], s{S_KOFF} offen offset:1024 lds', CM),
        (f'buffer_load_dwordx4 v{VVD}, s[{SV}:{SV+3}], s{S_KOFF} offen offset:2048 lds', CM),
        (f'buffer_load_dwordx4 v{VVD}, s[{SV}:{SV+3}], s{S_KOFF} offen offset:3072 lds', CM),
        (f's_add_u32 s{S_KOFF}, s{S_KOFF}, 8192', CS),
    ]
    for (k, off) in pf:
        if k == 'wo':
            ops.append((f'buffer_load_dwordx4 v[{PFD}:{PFD+3}], v{VH}, s[{SPFS[0]}:{SPFS[0]+3}], s{S_PW + off // 4} offen offset:{(off%4)*1024}', CM))
            continue
        ops.append((f's_add_u32 s{S_T0}, s{S_PF}, {off}', CS))
        ops.append((f'buffer_load_dwordx4 v[{PFD}:{PFD+3}], v{VPF}, s[{SPFS[k]}:{SPFS[k]+3}], s{S_T0} offen', CM))
    return ops


def body(j, name, tag, do_pv=True, do_qk=True, dma=True, vm=12, pvzero=False, pf=(), first=False):
    p = j % 2
    mf = []
    if do_pv: mf += pv_mfmas(1 - p, pvzero)
    npv = len(mf)
    if do_qk: mf += qk_mfmas(1 - p)
    n = len(mf)
    pre = {}
    L = []
    queues = []
    bar = [f's_waitcnt vmcnt({vm})', 's_barrier']
    if do_pv:
        pre[0] = ['s_waitcnt lgkmcnt(0)']
        pre[1] = list(bar)
        kstart = 1
    else:
        L += bar
        kstart = 0
    if do_qk:
        if do_pv:
            queues.append(dict(items=k_reads((j + 1) % 8), start=kstart, end=min(kstart + 9, npv - 3)))
            pre.setdefault(npv, []).append('s_waitcnt lgkmcnt(0)')
        else:
            L += [t for t, _ in k_reads((j + 1) % 8)]
            pre.setdefault(0, []).append('s_waitcnt lgkmcnt(0)')
    if dma:
        queues.append(dict(items=dma_ops((j + DK) % 8, pf), start=(4 if do_pv else 2), end=(npv + 4 if do_pv else 13)))
    elif pf:
        queues.append(dict(items=dma_ops(0, pf)[6:], start=2, end=n - 4))
    vstart = npv if do_qk else npv - 1
    queues.append(dict(items=v_reads((j + 1) % 8), start=vstart, end=min(vstart + 11, n - 1)))
    queues.append(dict(items=softmax_ops(p, first), start=(3 if do_qk else 6) if do_pv else 2, end=n - 2))
    if tag.startswith('l'):
        for q in queues:
            if 'nok' in ABL: q['items'] = [x for x in q['items'] if not x[0].startswith('ds_read_b128')]
            if 'nov' in ABL: q['items'] = [x for x in q['items'] if not x[0].startswith('ds_read_b64')]
            if 'nodma' in ABL: q['items'] = [x for x in q['items'] if not x[0].startswith('buffer_load')]
            if 'nosalu' in ABL: q['items'] = [x for x in q['items'] if not x[0].startswith('s_')]
            if 'noadd' in ABL: q['items'] = [x for x in q['items'] if not x[0].startswith('v_add')]
            if 'nocvt' in ABL: q['items'] = [x for x in q['items'] if not x[0].startswith('v_cvt')]
        if 'nobar' in ABL: pre[1] = []
    L += interleave(mf, queues, pre)
    L.append(f's_cbranch_vccnz {name}_tr_{tag}')
    L.append(f'{name}_back_{tag}:')
    tramp = [f'{name}_tr_{tag}:', f's_call_b64 s[{S_RET}:{S_RET+1}], {name}_rare{p}', f's_branch {name}_back_{tag}']
    return L, tramp


def rowmax_delta(e, p, qb, clamp):
    t1, t2 = RT + 1, RT + 2
    e(f'v_max_f32 v{t1}, v{S_(p,qb)}, v{S_(p,qb)+1}')
    for i in range(1, 8):
        e(f'v_max3_f32 v{t1}, v{t1}, v{S_(p,qb)+2*i}, v{S_(p,qb)+2*i+1}')
    e(f'v_mov_b32 v{t2}, v{t1}')
    e('s_nop 1')
    e(f'v_permlane32_swap_b32 v{t1}, v{t2}')
    e(f'v_max_f32 v{t1}, v{t1}, v{t2}')
    e(f'v_ceil_f32 v{t1}, v{t1}')
    e(f'v_add_f32 v{t1}, 0x{f2u(BIAS):08x}, v{t1}')
    if clamp:
        e(f'v_max_f32 v{t1}, 0, v{t1}')
    return t1

def rare(name, p):
    L = [f'{name}_rare{p}:']
    e = L.append
    e('s_nop 15'); e('s_nop 15')
    for qb in range(2):
        d = rowmax_delta(e, p, qb, True)
        f = RT + 3
        e(f'v_cvt_i32_f32 v{f}, v{d}')
        e(f'v_sub_u32 v{f}, 0, v{f}')
        e(f'v_sub_f32 v{NEGM(qb)}, v{NEGM(qb)}, v{d}')
        for i in range(1, 16):
            e(f'v_mov_b32 v{NEGM(qb)+i}, v{NEGM(qb)}')
        for pp in range(2):
            for i in range(16):
                e(f'v_sub_f32 v{S_(pp,qb)+i}, v{S_(pp,qb)+i}, v{d}')
        e(f'v_mov_b32 v{LB+qb}, 0')
        for i in range(8):
            e(f'v_exp_f32 v{RT+4}, v{S_(p,qb)+2*i}')
            e(f'v_exp_f32 v{RT+5}, v{S_(p,qb)+2*i+1}')
            e('s_nop 0')
            e(f'v_cvt_pk_bf16_f32 v{P_(p,qb)+i}, v{RT+4}, v{RT+5}')
            e(f'v_add_f32 v{LB+qb}, v{LB+qb}, v{RT+4}')
            e(f'v_add_f32 v{LB+qb}, v{LB+qb}, v{RT+5}')
        e(f'v_ldexp_f32 v{LSUM+qb}, v{LSUM+qb}, v{f}')
        for db in range(4):
            for i in range(0, 16, 4):
                for k in range(4):
                    e(f'v_accvgpr_read_b32 v{RT+4+k}, a{O_(db,qb)+i+k}')
                for k in range(4):
                    e(f'v_ldexp_f32 v{RT+4+k}, v{RT+4+k}, v{f}')
                for k in range(4):
                    e(f'v_accvgpr_write_b32 a{O_(db,qb)+i+k}, v{RT+4+k}')
    e('s_nop 1')
    e(f's_setpc_b64 s[{S_RET}:{S_RET+1}]')
    return L


def gen_attn(name='attn_kernel', prof=False):
    L = kernel_header(name)
    e = L.append
    vq = Q(63)
    prof_begin(L)
    dstamp(L, 2, 0)
    claim(L, name, 131072, vb=232)
    e(f's_load_dwordx2 s[52:53], s[0:1], {KA["wq"]}')
    e(f's_load_dwordx2 s[54:55], s[0:1], {KA["ws"]}')
    e(f's_load_dwordx4 s[48:51], s[0:1], {KA["k"]}')
    if PREFETCH:
        e(f's_load_dwordx2 s[80:81], s[0:1], {KA["wo"]}')
        e(f's_load_dwordx4 s[84:87], s[0:1], {KA["wg"]}')
        e(f's_load_dwordx2 s[82:83], s[0:1], {KA["wd"]}')
    e('v_lshrrev_b32 v1, 6, v0')
    e('v_and_b32 v2, 63, v0')
    e(f'v_readfirstlane_b32 s{S_W}, v1')
    e(f's_bfe_u32 s{S_T0}, s2, 0x20001')
    e(f's_lshr_b32 s{S_T1}, s2, 3')
    e(f's_lshl_b32 s{S_HEAD}, s{S_T0}, 3')
    e(f's_and_b32 s{S_T0}, s{S_T1}, 7')
    e(f's_add_u32 s{S_HEAD}, s{S_HEAD}, s{S_T0}')
    e(f's_lshr_b32 s{S_QB}, s{S_T1}, 3')
    e(f's_and_b32 s{S_T0}, s2, 1')
    e(f's_lshl_b32 s{S_T0}, s{S_T0}, 2')
    e(f's_add_u32 s{S_QB}, s{S_QB}, s{S_T0}')
    e(f's_lshl_b32 s{S_WB}, s{S_W}, 12')
    e('v_lshrrev_b32 v3, 4, v2')
    e('v_and_b32 v4, 15, v2')
    e(f'v_lshlrev_b32 v{VH}, 4, v2')
    e(f's_lshl_b32 s{S_T0}, s{S_W}, 3')
    e(f'v_add_u32 v10, s{S_T0}, v3')
    e('v_lshlrev_b32 v11, 2, v3')
    e('v_xor_b32 v11, v11, v4')
    e('v_lshlrev_b32 v12, 13, v10')
    e(f'v_lshl_add_u32 v{VWD}, v11, 4, v12')
    e(f's_lshl_b32 s{S_T0}, s{S_HEAD}, 8')
    e(f'v_add_u32 v{VWD}, s{S_T0}, v{VWD}')
    e(f's_lshl_b32 s{S_T0}, s{S_QB}, 3')
    e(f's_lshl_b32 s{S_T1}, s{S_W}, 1')
    e(f's_add_u32 s{S_O0}, s{S_T0}, s{S_T1}')
    e(f's_lshl_b32 s{S_H0}, s{S_O0}, 15')
    e(f's_add_u32 s{S_H1}, s{S_H0}, 32768')
    e('s_waitcnt lgkmcnt(0)')
    srd(L, SW, 52, 512 * 8192)
    srd_off(L, SH, 54, H1_OFF, 2048 * 1024)

    def ops_D(c):
        ops = []
        for hcl in range(2):
            hc = 2 * c + hcl
            for i in range(2):
                ops.append((f's_add_u32 m0, s{S_WB}, {HC_LOC[hc] + i*1024}', CS))
                ops.append((f's_mov_b32 s{S_T0}, {(32*hc + 4*i)*8192}', CS))
                ops.append((f'buffer_load_dwordx4 v{VWD}, s[{SW}:{SW+3}], s{S_T0} offen lds', CM, ('D', c)))
        return ops
    def ops_H(c):
        ops = []
        for ks in range(4):
            for qb in range(2):
                ops.append((f'buffer_load_dwordx4 {a(HF(c,ks,qb),4)}, v{VH}, s[{SH}:{SH+3}], s{S_H0+qb} offen offset:{ks*1024}', CM, ('H', c, ks)))
        ops.append((f's_add_u32 s{S_H0}, s{S_H0}, 4096', CS))
        ops.append((f's_add_u32 s{S_H1}, s{S_H1}, 4096', CS))
        return ops
    def ops_KV(t):
        ops = [(f's_add_u32 m0, s{S_WB}, {t*16384}', CS), (f's_mov_b32 s{S_T0}, {t*8192}', CS)]
        ops.append((f'buffer_load_dwordx4 v{VKD0}, s[{SK}:{SK+3}], s{S_T0} offen lds', CM, ('SL', t)))
        ops.append((f'buffer_load_dwordx4 v{VKD1}, s[{SK}:{SK+3}], s{S_T0} offen offset:1024 lds', CM, ('SL', t)))
        if t > 0:
            ops.append((f'buffer_load_dwordx4 v{VVD}, s[{SV}:{SV+3}], s{S_T0} offen offset:2048 lds', CM, ('SL', t)))
            ops.append((f'buffer_load_dwordx4 v{VVD}, s[{SV}:{SV+3}], s{S_T0} offen offset:3072 lds', CM, ('SL', t)))
        return ops
    def emit_ops(ops):
        for o in ops:
            e(o[0])
            if len(o) > 2: vq.issue(o[2])
    def w_reads(kstep):
        hc = kstep // 2
        loc = HC_LOC[hc] + (kstep % 2) * 8192
        base = WAD if loc < 65536 else WAD2
        loc &= 0xffff
        st = kstep % 2
        ops = []
        for db in range(4):
            for aa in range(2):
                ops.append((f'ds_read_b64_tr_b16 {a(WF(st,db)+2*aa,2)}, v{base+db} offset:{loc + aa*1024}', CD))
        return ops

    emit_ops(ops_D(0)); emit_ops(ops_H(0)); emit_ops(ops_D(1))
    dstamp(L, 2, 1)
    e('v_lshrrev_b32 v5, 5, v2')
    e('v_and_b32 v6, 31, v2')
    e('v_and_b32 v7, 1, v3')
    e('v_lshrrev_b32 v8, 2, v4')
    e('v_and_b32 v9, 3, v2')
    e('v_lshlrev_b32 v12, 8, v10')
    e(f'v_lshl_add_u32 v{VVD}, v11, 4, v12')
    e('v_and_b32 v11, 15, v10')
    e('v_xor_b32 v11, v11, v4')
    e(f'v_lshl_add_u32 v{VKD0}, v11, 4, v12')
    e('v_add_u32 v11, 4, v10')
    e('v_and_b32 v11, 15, v11')
    e('v_xor_b32 v11, v11, v4')
    e(f'v_lshl_add_u32 v{VKD1}, v11, 4, v12')
    e('v_and_b32 v10, 15, v6')
    e('v_lshrrev_b32 v12, 3, v6')
    e('v_lshlrev_b32 v12, 12, v12')
    e('v_and_b32 v13, 7, v6')
    e('v_lshl_add_u32 v12, v13, 8, v12')
    for s_ in range(8):
        e(f'v_add_u32 v11, {2*s_}, v5')
        e('v_xor_b32 v11, v11, v10')
        e(f'v_lshl_add_u32 v{KAD+s_}, v11, 4, v12')
        e(f'v_add_u32 v{KADH+s_}, 0x10000, v{KAD+s_}')
    e('v_lshl_add_u32 v10, v5, 2, v8')
    e('v_lshlrev_b32 v10, 8, v10')
    e('v_lshl_add_u32 v10, v7, 5, v10')
    e('v_lshl_add_u32 v13, v9, 3, v10')
    e('v_add_u32 v13, 2048, v13')
    for db in range(4):
        e(f'v_xor_b32 v11, {db}, v8')
        e(f'v_lshl_add_u32 v{VAD+db}, v11, 6, v13')
        e(f'v_add_u32 v{VADH+db}, 0x10000, v{VAD+db}')
    e('v_lshlrev_b32 v10, 12, v5')
    e('v_lshl_add_u32 v10, v8, 8, v10')
    e('v_lshl_add_u32 v10, v7, 5, v10')
    e('v_and_b32 v11, 1, v9')
    e('v_lshlrev_b32 v11, 1, v11')
    e('v_lshrrev_b32 v12, 1, v9')
    e('v_or_b32 v11, v11, v12')
    e('v_lshl_add_u32 v13, v11, 3, v10')
    for db in range(4):
        e(f'v_xor_b32 v11, {db}, v8')
        e(f'v_lshl_add_u32 v{WAD+db}, v11, 6, v13')
        e(f'v_add_u32 v{WAD2+db}, 0x10000, v{WAD+db}')
    e(f'v_mov_b32 v{MX}, 0x{f2u(THRESH):08x}')
    e(f'v_mov_b32 v{LSUM}, 0')
    e(f'v_mov_b32 v{LSUM+1}, 0')
    e(f's_lshl_b32 s{S_T0}, s{S_HEAD}, 19')
    srd_off(L, SK, 48, f's{S_T0}', 524288)
    e(f's_sub_u32 s50, s50, 10240')
    e(f's_subb_u32 s51, s51, 0')
    srd_off(L, SV, 50, f's{S_T0}', 524288 + 10240)
    srd_off(L, SO, 54, O_OFF, 2048 * 8192)
    e(f's_lshl_b32 s{S_O0}, s{S_O0}, 18')
    e(f's_lshl_b32 s{S_T1}, s{S_HEAD}, 13')
    e(f's_add_u32 s{S_O0}, s{S_O0}, s{S_T1}')
    e(f's_add_u32 s{S_O1}, s{S_O0}, 4096')
    e(f's_add_u32 s{S_O2}, s{S_O0}, {1<<18}')
    e(f's_add_u32 s{S_O3}, s{S_O2}, 4096')
    if PREFETCH:
        srd(L, SPFS[0], 80, 4096 * 1024)
        srd(L, SPFS[1], 84, 512 * 3584)
        srd(L, SPFS[2], 86, 512 * 3584)
        srd(L, SPFS[3], 82, 1792 * 1024)
        e(f's_lshl_b32 s{S_PF}, s2, 12')
        e(f's_bfe_u32 s{S_T0}, s2, 0x20001')
        e(f's_lshl_b32 s{S_T0}, s{S_T0}, 20')
        e(f's_lshr_b32 s{S_T1}, s2, 3')
        e(f's_lshl_b32 s{S_T1}, s{S_T1}, 15')
        e(f's_add_u32 s{S_T0}, s{S_T0}, s{S_T1}')
        e(f's_lshl_b32 s{S_T1}, s{S_W}, 13')
        e(f's_add_u32 s{S_PW}, s{S_T0}, s{S_T1}')
        e(f's_add_u32 s{S_PW+1}, s{S_PW}, 4096')
        e(f'v_lshlrev_b32 v{VPF}, 4, v0')
    n = vq.wait_for(lambda t: t == ('D', 0))
    e(f's_waitcnt vmcnt({n})')
    e('s_barrier')
    dstamp(L, 2, 2)
    L += [t for t, _ in w_reads(0)]
    plan = {0: ops_H(1) + ops_D(2) + ops_H(2)}
    for c in range(1, 6):
        plan[c] = ops_D(c + 2) + ops_H(c + 2)
    plan[6] = []; plan[7] = []
    def conv_ops(db):
        ops = []
        for qb in range(2):
            for sp in range(2):
                for i in range(4):
                    r = QA(db, qb) + 8 * sp + 2 * i
                    ops.append((f'v_mul_f32 v{r}, s{S_T1}, v{r}', CV))
                    ops.append((f'v_mul_f32 v{r+1}, s{S_T1}, v{r+1}', CV))
                for i in range(4):
                    r = QA(db, qb) + 8 * sp + 2 * i
                    ops.append((f'v_cvt_pk_bf16_f32 v{TMP+4*(sp%2)+i}, v{r}, v{r+1}', CV))
                for i in range(4):
                    ops.append((f'v_accvgpr_write_b32 a{Q_(qb, 2*db+sp)+i}, v{TMP+4*(sp%2)+i}', CV))
        return ops
    for c in range(8):
        vops = list(plan[c])
        nv = len(vops)
        for ks in range(4):
            kstep = 4 * c + ks
            st = kstep % 2
            n = vq.wait_for(lambda t: t == ('H', c, ks))
            if n is not None: e(f's_waitcnt vmcnt({n})')
            e('s_waitcnt lgkmcnt(0)')
            part = []
            if ks < 3:
                k0 = nv * ks // 3; k1 = nv * (ks + 1) // 3
                part = vops[k0:k1]
            else:
                if c < 7:
                    n = vq.wait_for(lambda t: t == ('D', c + 1))
                else:
                    n = vq.wait_for(lambda t: t in (('SL', 0),))
                if n is not None:
                    e(f's_waitcnt vmcnt({n})')
                e('s_barrier')
                for t in KV_AT.get(c, []):
                    part += ops_KV(t)
            mf = []
            for db in range(4):
                for qb in range(2):
                    cc = '0' if kstep == 0 else v(QA(db, qb), 16)
                    mf.append((f'v_mfma_f32_32x32x16_bf16 {v(QA(db,qb),16)}, {a(WF(st,db),4)}, {a(HF(c,ks,qb),4)}, {cc}', 24))
            qs = []
            if kstep < 31:
                qs.append(dict(items=w_reads(kstep + 1), start=0, end=5))
            else:
                pass
            if part:
                qs.append(dict(items=[(o[0], o[1]) for o in part], start=0, end=7))
            L += interleave(mf, qs)
            for o in part:
                if len(o) > 2: vq.issue(o[2])
    dstamp(L, 2, 3)
    L += [t for t, _ in k_reads(0)]
    e(f's_mov_b32 s{S_T1}, 0x{f2u(QSCALE):08x}')
    e('s_nop 4')
    L += [t for t, _ in conv_ops(0)]
    e('s_waitcnt lgkmcnt(0)')
    qk0 = qk_mfmas(0, czero=True)
    for db in range(1, 4):
        L += interleave(qk0[4*(db-1):4*db], [dict(items=conv_ops(db), start=0, end=3)])
    e('s_nop 1')
    L += [t for t, _ in qk0[12:]]
    e('s_nop 15')
    for qb in range(2):
        d = rowmax_delta(e, 0, qb, False)
        e(f'v_sub_f32 v{NEGM(qb)}, 0, v{d}')
        for i in range(1, 16):
            e(f'v_mov_b32 v{NEGM(qb)+i}, v{NEGM(qb)}')
        for i in range(16):
            e(f'v_sub_f32 v{S_(0,qb)+i}, v{S_(0,qb)+i}, v{d}')
    e(f's_mov_b32 s{S_KOFF}, {DK*8192}')
    dstamp(L, 2, 4)
    tramps = []
    pfl = [(0, i << 20) for i in range(4)] + [(k, i << 20) for k in (1, 2, 3) for i in range(2)] if PREFETCH else []
    def mk(j, tag, **kw):
        need = (lambda t: t == ('SL', j + 1))
        nn = vq.wait_for(need)
        if nn is None: nn = 63
        if 'vmmax' in kw: nn = min(nn, kw.pop('vmmax'))
        b, t = body(j, name, tag, vm=nn, **kw)
        if kw.get('dma', True):
            for _ in range(4): vq.issue(('SL', j + DK))
        for _ in kw.get('pf', ()): vq.issue(('pf', j))
        return b, t
    b0, t0 = mk(0, 'p0', do_pv=False, first=True)
    L += b0; tramps += t0
    b1, t1 = mk(1, 'p1', pvzero=True)
    L += b1; tramps += t1
    e(f's_mov_b32 s{S_CNT}, 7')
    e(f'{name}_loop:')
    loop = []
    for u in range(8):
        b, t = mk(2 + u, f'l{u}', vmmax=12)
        loop += b; tramps += t
    L += loop
    e(f's_sub_u32 s{S_CNT}, s{S_CNT}, 1')
    e(f's_cmp_lg_u32 s{S_CNT}, 0')
    e(f's_cbranch_scc1 {name}_loop')
    tail = []
    vq.items = [('SL', t) for t in range(59, 63) for _ in range(4)]
    for j in range(58, 64):
        pf = ()
        if PREFETCH and j == 60: pf = [('wo', i) for i in range(8)]
        if PREFETCH and j == 61: pf = pfl[4:]
        b, t = mk(j, f't{j}', dma=(j + DK <= 64), do_qk=(j < 63), pf=pf)
        tail += b; tramps += t
    L += tail
    dstamp(L, 2, 5)
    ep = []
    for qb in range(2):
        ep.append(f'v_add_f32 v{LSUM+qb}, v{LSUM+qb}, v{LB+qb}')
        ep.append(f'v_mov_b32 v{RT+2+qb}, v{LSUM+qb}')
    ep.append('s_nop 1')
    for qb in range(2):
        ep.append(f'v_permlane32_swap_b32 v{LSUM+qb}, v{RT+2+qb}')
    for qb in range(2):
        ep.append(f'v_add_f32 v{LSUM+qb}, v{LSUM+qb}, v{RT+2+qb}')
    for qb in range(2):
        ep.append(f'v_rcp_f32 v{RT+qb}, v{LSUM+qb}')
    ep.append('s_waitcnt lgkmcnt(0)')
    def norm_ops(db, qb, k):
        ops = []
        for sp in range(2):
            base = 32 + 8 * ((2 * k + sp) % 8)
            pk = 128 + 4 * ((2 * k + sp) % 8)
            for i in range(8):
                ops.append((f'v_accvgpr_read_b32 v{base+i}, a{O_(db,qb)+8*sp+i}', CV))
            for i in range(8):
                ops.append((f'v_mul_f32 v{base+i}, v{base+i}, v{RT+qb}', CV))
            for i in range(4):
                ops.append((f'v_cvt_pk_bf16_f32 v{pk+i}, v{base+2*i}, v{base+2*i+1}', CV))
            t = 2 * db + sp
            so = S_O0 + 2 * qb + (1 if t >= 4 else 0)
            ops.append((f'buffer_store_dwordx4 {v(pk,4)}, v{VH}, s[{SO}:{SO+3}], s{so} offen offset:{(t%4)*1024}{OSC}', CM))
        return ops
    pv = pv_mfmas(1)
    ep += [t for t, _ in pv[:12]]
    ep += interleave(pv[12:], [dict(items=[('s_nop 7', 4)] + norm_ops(0, 0, 0), start=0, end=3)])
    k = 1
    for db in range(4):
        for qb in range(2):
            if (db, qb) == (0, 0): continue
            if db == 3 and qb == 0: ep.append('s_nop 0')
            ep += [t for t, _ in norm_ops(db, qb, k)]
            k += 1
    L += ep
    dstamp(L, 2, 6)
    dstamp_store(L, 2, 7)
    prof_end(L, 2, 1)
    e(f'{name}_done:')
    e('s_endpgm')
    L += tramps
    L += rare(name, 0) + rare(name, 1)
    L = hoist(L)
    pro_end = L.index(f'{name}_loop:')
    trace = L[:pro_end] + loop + loop + tail + ep
    hz = check_hazards(trace, name)
    hz += check_hazards(loop[-30:] + rare(name, 0) + loop[:30], name + '_rare0')
    hz += check_hazards(loop[-30:] + rare(name, 1) + loop[:30], name + '_rare1')
    for h in hz: print('HAZARD', h)
    return L, kernel_desc(name, 512, 102, 256), f'; @launch kernel={name} grid=(256,1,1) block=(256,1,1) lds=131328'
```

```python
from asmlib import *
import asmlib
from k_small import *
from k_attn import interleave

PART_OFF = 40 << 20
X1F_OFF = X1_OFF
PF_W = False
WSC = ''
LSC = ''
BF16P = True

def gen_wo2(name='wo_kernel'):
    KI = 3
    NST = 16
    L = kernel_header(name)
    e = L.append
    vq = Q(63)
    SWT, SB, SD = 8, 12, 16
    S_W, S_MT, S_NT, S_KS, S_T0, S_T1, S_WO, S_BO, S_LW, S_LB = 28, 29, 30, 31, 32, 33, 34, 35, 36, 37
    S_D = 38
    VWD, VH, VAD, VBD = 10, 11, 12, 14
    ACC = 32
    def AF(st, ks, nb): return 16 * st + 8 * 0 + 4 * nb + 8 * 0
    def AFR(st, nb): return 16 * st + 4 * nb
    def BFR(st, rb): return 16 * st + 8 + 4 * rb
    prof_begin(L)
    dstamp(L, KI, 0)
    claim(L, name, 131072, vb=28)
    e(f's_load_dwordx2 s[48:49], s[0:1], {KA["wo"]}')
    e(f's_load_dwordx2 s[50:51], s[0:1], {KA["ws"]}')
    e(f's_load_dwordx4 s[52:55], s[0:1], {KA["wg"]}')
    e('v_lshrrev_b32 v1, 6, v0')
    e('v_and_b32 v2, 63, v0')
    e(f'v_readfirstlane_b32 s{S_W}, v1')
    e(f's_and_b32 s{S_T0}, s2, 7')
    e(f's_lshr_b32 s{S_T1}, s2, 3')
    e(f's_lshr_b32 s{S_KS}, s{S_T0}, 1')
    e(f's_and_b32 s{S_T0}, s{S_T0}, 1')
    e(f's_lshl_b32 s{S_MT}, s{S_T0}, 3')
    e(f's_and_b32 s{S_T0}, s{S_T1}, 7')
    e(f's_add_u32 s{S_MT}, s{S_MT}, s{S_T0}')
    e(f's_lshr_b32 s{S_NT}, s{S_T1}, 3')
    e('v_lshrrev_b32 v3, 4, v2')
    e('v_and_b32 v4, 15, v2')
    e('v_lshlrev_b32 v5, 2, v3')
    e('v_xor_b32 v5, v5, v4')
    e(f's_lshl_b32 s{S_T0}, s{S_W}, 4')
    e(f'v_add_u32 v6, s{S_T0}, v3')
    e('v_lshlrev_b32 v6, 10, v6')
    e(f'v_lshl_add_u32 v{VWD}, v5, 4, v6')
    e(f's_lshl_b32 s{S_T0}, s{S_NT}, 8')
    e(f'v_add_u32 v{VWD}, s{S_T0}, v{VWD}')
    e(f'v_lshlrev_b32 v{VH}, 4, v2')
    e(f's_lshl_b32 s{S_WO}, s{S_KS}, 20')
    e(f's_lshl_b32 s{S_T0}, s{S_MT}, 2')
    e(f's_add_u32 s{S_T0}, s{S_T0}, s{S_W}')
    e(f's_lshl_b32 s{S_BO}, s{S_T0}, 18')
    e(f's_lshl_b32 s{S_T1}, s{S_KS}, 16')
    e(f's_add_u32 s{S_BO}, s{S_BO}, s{S_T1}')
    e(f's_lshl_b32 s{S_LW}, s{S_W}, 12')
    e(f's_add_u32 s{S_LB}, s{S_LW}, 16384')
    e('s_waitcnt lgkmcnt(0)')
    srd(L, SWT, 48, 4096 * 1024)
    srd_off(L, SB, 50, O_OFF, 2048 * 8192)
    def issue(s_):
        ops = []
        base = (s_ % 4) * 32768
        ops.append((f's_add_u32 m0, s{S_LB}, {base}', 2))
        ops.append((f's_add_u32 s{S_T1}, s{S_BO}, {s_*4096}', 2))
        for i in range(4):
            ops.append((f'buffer_load_dwordx4 v{VH}, s[{SB}:{SB+3}], s{S_T1} offen offset:{i*1024} lds', 8, ('S', s_)))
        for i in range(4):
            ops.append((f's_add_u32 m0, s{S_LW}, {base + i*1024}', 2))
            ops.append((f's_add_u32 s{S_T0}, s{S_WO}, {(64*s_ + 4*i)*1024}', 2))
            ops.append((f'buffer_load_dwordx4 v{VWD}, s[{SWT}:{SWT+3}], s{S_T0} offen lds', 8, ('S', s_)))
        return ops
    def emit_ops(ops):
        for o in ops:
            e(o[0])
            if len(o) > 2: vq.issue(o[2])
    dstamp(L, KI, 1)
    emit_ops(issue(0)); emit_ops(issue(1))
    dstamp(L, KI, 2)
    e('v_lshrrev_b32 v5, 2, v4')
    e('v_and_b32 v6, 3, v2')
    e('v_lshrrev_b32 v7, 1, v3')
    e('v_and_b32 v8, 1, v3')
    e('v_lshl_add_u32 v7, v7, 2, v5')
    e('v_lshlrev_b32 v7, 8, v7')
    e('v_lshl_add_u32 v7, v8, 5, v7')
    e('v_lshl_add_u32 v7, v6, 3, v7')
    e(f's_and_b32 s{S_T0}, s{S_W}, 1')
    e(f's_lshl_b32 s{S_T0}, s{S_T0}, 1')
    for nb in range(2):
        e(f's_add_u32 s{S_T1}, s{S_T0}, {nb}')
        e(f'v_xor_b32 v9, s{S_T1}, v5')
        e(f'v_lshl_add_u32 v{VAD+nb}, v9, 6, v7')
        e(f'v_add_u32 v{VAD+4+nb}, 0x10000, v{VAD+nb}')
    e(f's_lshr_b32 s{S_T0}, s{S_W}, 1')
    e(f's_lshl_b32 s{S_T0}, s{S_T0}, 13')
    e(f's_add_u32 s{S_T0}, s{S_T0}, 16384')
    e(f'v_add_u32 v{VBD}, s{S_T0}, v{VH}')
    e(f'v_add_u32 v{VBD+4}, 0x10000, v{VBD}')
    srd_off(L, SD, 50, PART_OFF, 16 << 20)
    e(f's_lshl_b32 s{S_T0}, s{S_MT}, 2')
    e(f's_lshr_b32 s{S_T1}, s{S_W}, 1')
    e(f's_lshl_b32 s{S_T1}, s{S_T1}, 1')
    e(f's_add_u32 s{S_T0}, s{S_T0}, s{S_T1}')
    e(f's_lshl_b32 s{S_T0}, s{S_T0}, 4')
    e(f's_lshl_b32 s{S_T1}, s{S_NT}, 2')
    e(f's_add_u32 s{S_T0}, s{S_T0}, s{S_T1}')
    e(f's_and_b32 s{S_T1}, s{S_W}, 1')
    e(f's_lshl_b32 s{S_T1}, s{S_T1}, 1')
    e(f's_add_u32 s{S_T0}, s{S_T0}, s{S_T1}')
    SH_ = 1 if BF16P else 0
    e(f's_lshl_b32 s{S_T0}, s{S_T0}, {12-SH_}')
    e(f's_lshl_b32 s{S_T1}, s{S_KS}, {22-SH_}')
    e(f's_add_u32 s{S_D}, s{S_T0}, s{S_T1}')
    e(f's_add_u32 s{S_D+1}, s{S_D}, {4096>>SH_}')
    e(f's_add_u32 s{S_D+2}, s{S_D}, {65536>>SH_}')
    e(f's_add_u32 s{S_D+3}, s{S_D+2}, {4096>>SH_}')
    def reads(kk):
        s_, ks = kk // 4, kk % 4
        st = kk % 2
        base = (s_ % 4) * 32768
        hi = 4 if base >= 65536 else 0
        base &= 0xffff
        ops = []
        for rb in range(2):
            ops.append((f'ds_read_b128 {a(BFR(st,rb),4)}, v{VBD+hi} offset:{base + rb*4096 + ks*1024}', 4))
        for nb in range(2):
            for aa in range(2):
                ops.append((f'ds_read_b64_tr_b16 {a(AFR(st,nb)+2*aa,2)}, v{VAD+hi+nb} offset:{base + (16*ks+8*aa)*256}', 4))
        return ops
    def mfmas(kk):
        st = kk % 2
        m = []
        for nb in range(2):
            for rb in range(2):
                acc = ACC + 16 * (2 * rb + nb)
                c = '0' if kk == 0 else v(acc, 16)
                m.append((f'v_mfma_f32_32x32x16_bf16 {v(acc,16)}, {a(AFR(st,nb),4)}, {a(BFR(st,rb),4)}, {c}', 24))
        return m
    e('v_min_u32 v19, 880, v11')
    e('s_lshr_b32 s57, s2, 3')
    e('s_lshl_b32 s57, s57, 4')
    e(f's_lshl_b32 s56, s{S_W}, 2')
    e('s_add_u32 s57, s57, s56')
    e('s_mul_i32 s57, s57, 3584')
    e('s_bfe_u32 s56, s2, 0x20001')
    e('s_mul_i32 s56, s56, 896')
    e('s_add_u32 s57, s57, s56')
    srd(L, 60, 52, 512 * 3584)
    srd(L, 44, 54, 512 * 3584)
    pfops = []
    for r in range(4):
        for sr in (60, 44):
            pfops.append((f'buffer_load_dwordx4 v[28:31], v19, s[{sr}:{sr+3}], s57 offen', 8, ('pf', r)))
        pfops.append(('s_add_u32 s57, s57, 3584', 2))
    n = vq.wait_for(lambda x: x == ('S', 0))
    e(f's_waitcnt vmcnt({n})')
    e('s_barrier')
    dstamp(L, KI, 3)
    L += [x[0] for x in reads(0)]
    pend = issue(2) + issue(3)
    for kk in range(4 * NST):
        s_, ks = kk // 4, kk % 4
        if kk == 2 * NST: dstamp(L, KI, 4)
        e('s_waitcnt lgkmcnt(0)')
        if ks == 3 and s_ + 1 < NST:
            n = vq.wait_for(lambda x: x == ('S', s_ + 1))
            if n is not None: e(f's_waitcnt vmcnt({n})')
            e('s_barrier')
            if s_ + 4 < NST:
                pend += issue(s_ + 4)
            elif s_ + 4 == NST:
                pend += pfops
        take = []
        if pend:
            cnt = 0
            lim = 4 if s_ == 0 else 2
            while pend and (cnt < lim or len(pend[0]) == 2 and False):
                o = pend.pop(0); take.append(o)
                if len(o) > 2: cnt += 1
        qs = []
        if kk + 1 < 4 * NST:
            qs.append(dict(items=reads(kk + 1), start=0, end=2))
        if take:
            qs.append(dict(items=[(o[0], o[1]) for o in take], start=0, end=3))
        L += interleave(mfmas(kk), qs)
        for o in take:
            if len(o) > 2: vq.issue(o[2])
    assert not pend
    dstamp(L, KI, 5)
    e('s_nop 11')
    for rb in range(2):
        for nb in range(2):
            acc = ACC + 16 * (2 * rb + nb)
            if BF16P:
                for b in range(2):
                    pk = 20 + 4 * b
                    for i in range(4):
                        e(f'v_cvt_pk_bf16_f32 v{pk+i}, v{acc+8*b+2*i}, v{acc+8*b+2*i+1}')
                    e(f'buffer_store_dwordx4 {v(pk,4)}, v{VH}, s[{SD}:{SD+3}], s{S_D+2*rb+nb} offen offset:{b*1024}{WSC}')
                e('s_nop 0')
            else:
                for g in range(4):
                    e(f'buffer_store_dwordx4 {v(acc+4*g,4)}, v{VH}, s[{SD}:{SD+3}], s{S_D+2*rb+nb} offen offset:{g*1024}')
    dstamp(L, KI, 6)
    dstamp_store(L, KI, 7)
    prof_end(L, KI, 1)
    e(f'{name}_done:')
    e('s_endpgm')
    L = hoist(L)
    for h in check_hazards(L, name): print('HAZARD', h)
    return L, kernel_desc(name, 96 + 32, 102, 96), f'; @launch kernel={name} grid=(256,1,1) block=(256,1,1) lds=131328'


def gen_ln2r(name='ln2_kernel'):
    L = kernel_header(name)
    e = L.append
    prof_begin(L)
    SP, SX, SM, SH2, SX1 = 8, 12, 16, 20, 24
    e('s_cmp_ge_u32 s2, 256')
    e(f's_cbranch_scc1 {name}_done')
    e(f's_load_dwordx2 s[4:5], s[0:1], {KA["x"]}')
    e(f's_load_dwordx2 s[6:7], s[0:1], {KA["ws"]}')
    e('v_and_b32 v1, 63, v0')
    e('v_lshrrev_b32 v2, 6, v0')
    e('v_and_b32 v3, 7, v1')
    e('v_bfe_u32 v4, v1, 3, 1')
    e('v_bfe_u32 v5, v1, 4, 1')
    e('v_lshrrev_b32 v6, 5, v1')
    e('v_lshl_add_u32 v7, v2, 2, v6')
    e('s_and_b32 s38, s2, 1')
    e('s_lshl_b32 s38, s38, 7')
    e('s_bfe_u32 s39, s2, 0x20001')
    e('s_lshl_b32 s39, s39, 5')
    e('s_add_u32 s38, s38, s39')
    e('s_lshr_b32 s39, s2, 3')
    e('s_add_u32 s38, s38, s39')
    e('s_and_b32 s3, s38, 3')
    e('s_lshl_b32 s3, s3, 3')
    e('v_add_u32 v8, s3, v3')
    e('s_lshr_b32 s28, s38, 2')
    SH_ = 1 if BF16P else 0
    e('v_lshl_add_u32 v9, v4, 5, v8')
    e('v_lshlrev_b32 v9, 4, v9')
    e(f'v_lshl_add_u32 v9, v5, {11-SH_}, v9')
    e(f'v_lshl_add_u32 v9, v7, {12-SH_}, v9')
    e(f'v_add_u32 v10, {0x2000>>SH_}, v9')
    e(f's_lshl_b32 s29, s28, {16-SH_}')
    for ks in range(1, 4):
        e(f's_add_u32 s{29+ks}, s{28+ks}, {(4<<20)>>SH_}')
    e('v_lshlrev_b32 v11, 6, v7')
    e('v_lshl_add_u32 v11, v5, 5, v11')
    e('v_lshl_add_u32 v11, v4, 3, v11')
    e('v_lshl_add_u32 v12, v3, 10, v11')
    e('s_lshl_b32 s33, s38, 13')
    e('s_waitcnt lgkmcnt(0)')
    srd_off(L, SP, 6, PART_OFF, 16 << 20)
    srd(L, SX, 4, 2048 * 1024)
    srd_off(L, SM, 6, MOD_OFF, 6144)
    srd_off(L, SH2, 6, H2_OFF, 2048 * 1024)
    srd_off(L, SX1, 6, X1F_OFF, 2048 * 1024)
    for ks in range(4):
        for i in range(2):
            if BF16P:
                r = 64 + 8 * ks + 4 * i
                e(f'buffer_load_dwordx4 v[{r}:{r+3}], v{9+i}, s[{SP}:{SP+3}], s{29+ks} offen')
                continue
            for aa in range(2):
                r = 32 + 16 * ks + 4 * (2 * i + aa)
                e(f'buffer_load_dwordx4 v[{r}:{r+3}], v{9+i}, s[{SP}:{SP+3}], s{29+ks} offen offset:{aa*1024}')
    for i in range(2):
        for aa in range(2):
            q = 2 * i + aa
            e(f'buffer_load_dwordx2 v[{96+2*q}:{97+2*q}], v12, s[{SX}:{SX+3}], s33 offen offset:{128*i + 16*aa}')
    e('s_movk_i32 s34, 4096')
    for (base, off) in ((104, 2048), (112, 3072), (120, None)):
        for i in range(2):
            for aa in range(2):
                q = 2 * i + aa
                if off is None:
                    e(f'buffer_load_dwordx2 v[{base+2*q}:{base+1+2*q}], v11, s[{SM}:{SM+3}], s34 offen offset:{128*i + 16*aa}')
                else:
                    e(f'buffer_load_dwordx2 v[{base+2*q}:{base+1+2*q}], v11, s[{SM}:{SM+3}], 0 offen offset:{off + 128*i + 16*aa}')
    e('v_lshrrev_b32 v13, 3, v1')
    e('v_lshl_add_u32 v13, v2, 3, v13')
    e('v_lshlrev_b32 v13, 2, v13')
    e('v_lshl_add_u32 v13, v3, 7, v13')
    e('v_lshlrev_b32 v14, 7, v3')
    npf = 0
    if PF_W:
        e(f's_load_dwordx4 s[40:43], s[0:1], {KA["wg"]}')
        e('v_lshlrev_b32 v22, 4, v1')
        e('v_min_u32 v22, 880, v22')
        e('v_readfirstlane_b32 s36, v2')
        e('s_lshr_b32 s37, s2, 3')
        e('s_lshl_b32 s37, s37, 4')
        e('s_lshl_b32 s36, s36, 2')
        e('s_add_u32 s37, s37, s36')
        e('s_mul_i32 s37, s37, 3584')
        e('s_bfe_u32 s36, s2, 0x20001')
        e('s_mul_i32 s36, s36, 896')
        e('s_add_u32 s37, s37, s36')
        e('s_waitcnt lgkmcnt(0)')
        srd(L, 44, 40, 512 * 3584)
        srd(L, 48, 42, 512 * 3584)
        for r in range(4):
            for sr in (44, 48):
                e(f'buffer_load_dwordx4 v[24:27], v22, s[{sr}:{sr+3}], s37 offen')
                npf += 1
            e('s_add_u32 s37, s37, 3584')
    e(f's_waitcnt vmcnt({16+npf})')
    if BF16P:
        for q in range(8):
            e(f'v_lshlrev_b32 v{32+2*q}, 16, v{64+q}')
            e(f'v_and_b32 v{33+2*q}, 0xffff0000, v{64+q}')
        for ks in range(1, 4):
            for q in range(8):
                e(f'v_lshlrev_b32 v16, 16, v{64+8*ks+q}')
                e(f'v_and_b32 v17, 0xffff0000, v{64+8*ks+q}')
                e(f'v_add_f32 v{32+2*q}, v{32+2*q}, v16')
                e(f'v_add_f32 v{33+2*q}, v{33+2*q}, v17')
    else:
        for i in range(16):
            e(f'v_add_f32 v{32+i}, v{32+i}, v{48+i}')
            e(f'v_add_f32 v{64+i}, v{64+i}, v{80+i}')
        for i in range(16):
            e(f'v_add_f32 v{32+i}, v{32+i}, v{64+i}')
    e(f's_waitcnt vmcnt({8+npf})')
    for pr in range(8):
        x0, x1 = 32 + 2 * pr, 33 + 2 * pr
        rnd_pair(e, x0, x1, x0, x1, 15)
        e(f'v_lshlrev_b32 v16, 16, v{104+pr}')
        e(f'v_and_b32 v17, 0xffff0000, v{104+pr}')
        e(f'v_mul_f32 v{x0}, v{x0}, v16')
        e(f'v_mul_f32 v{x1}, v{x1}, v17')
        rnd_pair(e, x0, x1, x0, x1, 15)
        e(f'v_lshlrev_b32 v16, 16, v{96+pr}')
        e(f'v_and_b32 v17, 0xffff0000, v{96+pr}')
        e(f'v_add_f32 v{x0}, v{x0}, v16')
        e(f'v_add_f32 v{x1}, v{x1}, v17')
        e(f'v_cvt_pk_bf16_f32 v{48+pr}, v{x0}, v{x1}')
        e(f'v_lshlrev_b32 v{x0}, 16, v{48+pr}')
        e(f'v_and_b32 v{x1}, 0xffff0000, v{48+pr}')
    e('v_and_b32 v18, 15, v8')
    e('v_lshl_add_u32 v19, v5, 1, v4')
    e('v_lshl_add_u32 v18, v19, 4, v18')
    e('v_lshlrev_b32 v18, 4, v18')
    e('v_lshl_add_u32 v18, v7, 10, v18')
    e('s_lshr_b32 s35, s38, 1')
    e('s_lshl_b32 s35, s35, 14')
    e(f'buffer_store_dwordx4 v[48:51], v18, s[{SX1}:{SX1+3}], s35 offen{LSC}')
    e(f'buffer_store_dwordx4 v[52:55], v18, s[{SX1}:{SX1+3}], s35 offen offset:2048{LSC}')
    e('v_add_f32 v20, v32, v33')
    e('v_add_f32 v21, v34, v35')
    for r in range(4, 16, 2):
        e(f'v_add_f32 v20, v20, v{32+r}')
        e(f'v_add_f32 v21, v21, v{33+r}')
    e('v_add_f32 v20, v20, v21')
    e('ds_write_b32 v13, v20')
    e('s_waitcnt lgkmcnt(0)')
    e('s_barrier')
    for q in range(8):
        e(f'ds_read_b128 v[{64+4*q}:{67+4*q}], v14 offset:{16*q}')
    e('s_waitcnt lgkmcnt(0)')
    for q in range(16):
        e(f'v_add_f32 v{64+q}, v{64+q}, v{80+q}')
    for q in range(8):
        e(f'v_add_f32 v{64+q}, v{64+q}, v{72+q}')
    for q in range(4):
        e(f'v_add_f32 v{64+q}, v{64+q}, v{68+q}')
    e('v_add_f32 v64, v64, v66')
    e('v_add_f32 v65, v65, v67')
    e('v_add_f32 v64, v64, v65')
    e('v_mul_f32 v20, 0x3b000000, v64')
    e('v_sub_f32 v21, v32, v20')
    e('v_mul_f32 v22, v21, v21')
    e('v_sub_f32 v21, v33, v20')
    e('v_mul_f32 v23, v21, v21')
    for r in range(2, 16):
        e(f'v_sub_f32 v21, v{32+r}, v20')
        e(f'v_fmac_f32 v{22 + (r & 1)}, v21, v21')
    e('v_add_f32 v22, v22, v23')
    e('ds_write_b32 v13, v22 offset:1024')
    e('s_waitcnt lgkmcnt(0)')
    e('s_barrier')
    for q in range(8):
        e(f'ds_read_b128 v[{64+4*q}:{67+4*q}], v14 offset:{1024 + 16*q}')
    e('s_waitcnt lgkmcnt(0)')
    for q in range(16):
        e(f'v_add_f32 v{64+q}, v{64+q}, v{80+q}')
    for q in range(8):
        e(f'v_add_f32 v{64+q}, v{64+q}, v{72+q}')
    for q in range(4):
        e(f'v_add_f32 v{64+q}, v{64+q}, v{68+q}')
    e('v_add_f32 v64, v64, v66')
    e('v_add_f32 v65, v65, v67')
    e('v_add_f32 v64, v64, v65')
    e('v_mul_f32 v21, 0x3b000000, v64')
    rnd_pair(e, 20, 21, 20, 21, 15)
    e('v_add_f32 v21, 0x3727c5ac, v21')
    e('v_cvt_pk_bf16_f32 v21, v21, v21')
    e('v_lshlrev_b32 v21, 16, v21')
    e('v_sqrt_f32 v21, v21')
    e('s_nop 0')
    e('v_cvt_pk_bf16_f32 v21, v21, v21')
    e('v_lshlrev_b32 v21, 16, v21')
    e('v_rcp_f32 v21, v21')
    e(f's_waitcnt vmcnt({2+npf})')
    for pr in range(8):
        x0, x1 = 32 + 2 * pr, 33 + 2 * pr
        e(f'v_sub_f32 v{x0}, v{x0}, v20')
        e(f'v_sub_f32 v{x1}, v{x1}, v20')
        rnd_pair(e, x0, x1, x0, x1, 15)
        e(f'v_mul_f32 v{x0}, v{x0}, v21')
        e(f'v_mul_f32 v{x1}, v{x1}, v21')
        rnd_pair(e, x0, x1, x0, x1, 15)
        e(f'v_lshlrev_b32 v16, 16, v{120+pr}')
        e(f'v_and_b32 v17, 0xffff0000, v{120+pr}')
        e('v_add_f32 v16, 1.0, v16')
        e('v_add_f32 v17, 1.0, v17')
        rnd_pair(e, 16, 17, 16, 17, 15)
        e(f'v_mul_f32 v{x0}, v{x0}, v16')
        e(f'v_mul_f32 v{x1}, v{x1}, v17')
        rnd_pair(e, x0, x1, x0, x1, 15)
        e(f'v_lshlrev_b32 v16, 16, v{112+pr}')
        e(f'v_and_b32 v17, 0xffff0000, v{112+pr}')
        e(f'v_add_f32 v{x0}, v{x0}, v16')
        e(f'v_add_f32 v{x1}, v{x1}, v17')
        e(f'v_cvt_pk_bf16_f32 v{56+pr}, v{x0}, v{x1}')
    e(f'buffer_store_dwordx4 v[56:59], v18, s[{SH2}:{SH2+3}], s35 offen{LSC}')
    e(f'buffer_store_dwordx4 v[60:63], v18, s[{SH2}:{SH2+3}], s35 offen offset:2048{LSC}')
    prof_end(L, 4, 1)
    e(f'{name}_done:')
    e('s_endpgm')
    L = hoist(L)
    for h in check_hazards(L, name): print('HAZARD', h)
    return L, kernel_desc(name, 128, 102, 128), f'; @launch kernel={name} grid=(256,1,1) block=(256,1,1) lds=2304'
```

```python
import sys
from asmlib import *
from k_small import *
from k_attn import *
from k_gemm import *
import k_attn2, k_attn3
from k_wo2 import *
from k_pre import *
from k_pre3 import *

def build(kernels, path):
    hdr = [l.rstrip('\n') for l in open('adaLN_cond__mha_block_cached__geglu_ffn__prompt.s.ref') if l.startswith(';') and '@launch' not in l]
    out = hdr + [k[2] for k in kernels]
    out += ['.amdgcn_target "amdgcn-amd-amdhsa--gfx950"', '.text']
    seen = set()
    for k in kernels:
        nm = k[0][0]
        if nm in seen: continue
        seen.add(nm)
        out += k[0]
    out += ['.section .rodata,"a"']
    seen = set()
    for k in kernels:
        nm = k[0][0]
        if nm in seen: continue
        seen.add(nm)
        out += ['.p2align 6'] + k[1]
    open(path, 'w').write('\n'.join(out) + '\n')

if __name__ == '__main__':
    import k_attn, asmlib
    asmlib.PROF = 'tl' in sys.argv
    asmlib.CLAIM = 'claim' in sys.argv
    for x in sys.argv:
        if x.startswith('osc='): k_attn3.OSC = ' ' + x[4:].replace('+', ' ')
    for x in sys.argv:
        if x.startswith('st='): asmlib.STAMPK = int(x[3:])
    k_attn.FAKE16 = 'fake16' in sys.argv
    k_attn.NOVALU = 'novalu' in sys.argv
    k_attn.NOLDS = 'nolds' in sys.argv
    k_attn.NODMA = 'nodma' in sys.argv
    k_attn.PROFQ = 'profq' in sys.argv
    k_attn.WQLIN = 'wqlin' in sys.argv
    k_attn.NOH = 'noh' in sys.argv
    k_attn2.USE_PK = 'pk' in sys.argv
    k_attn2.ABL = set(x[4:] for x in sys.argv if x.startswith('abl-'))
    k_attn2.TWOACC = 'two' in sys.argv
    for x in sys.argv:
        if x.startswith('cost='):
            k_attn2.CV, k_attn2.CE, k_attn2.CD, k_attn2.CM, k_attn2.CS = [int(y) for y in x[5:].split(',')]
    import k_gemm, k_pre, k_wo2
    for x in sys.argv:
        if x.startswith('wsc='): k_wo2.WSC = ' ' + x[4:].replace('+', ' ')
        if x.startswith('lsc='): k_wo2.LSC = ' ' + x[4:].replace('+', ' ')
        if x.startswith('fsc='): k_gemm.FSC = ' ' + x[4:].replace('+', ' ')
    for x in sys.argv:
        if x.startswith('sleep='): k_pre.SLEEP = int(x[6:])
        if x == 'sc1': k_pre.SC = 'sc1'
    for x in sys.argv:
        if x.startswith('ffnlim='): k_gemm.FFN_LIM = [int(y) for y in x[7:].split(',')]
        if x.startswith('spk='): k_gemm.SPK = [int(y) for y in x[4:].split(',')]
    ks = ([gen_mod2(), gen_ln1v2()] if 'nofuse' in sys.argv else [gen_pre()] if 'pre2' in sys.argv else [gen_pre3_full()]) + [ (gen_attn(prof='prof' in sys.argv) if 'old' in sys.argv else k_attn2.gen_attn() if 'a2' in sys.argv else k_attn3.gen_attn())]
    ks.append(gen_wo2())
    ks.append(gen_ln2r())
    ks.append(gen_ffn1())
    ks.append(gen_splitk('down_kernel', 16, 1792, KA['wd'], ACT_OFF, 2048*3584, ('wsf', X1_OFF), 5120, ('out',)))
    if 'dup' in sys.argv:
        k2 = gen_splitk('wo2_kernel', 32, 4096, KA['wo'], O_OFF, 2048*8192, ('in', KA['x']), 2048, ('ws', X1_OFF))
        k2 = ([l.replace(str(asmlib.PROF_OFF + 3*65536), str(asmlib.PROF_OFF + 7*65536)) for l in k2[0]], k2[1], k2[2])
        ks = ks[:4] + [k2]
    build(ks, sys.argv[1] if len(sys.argv) > 1 else 'cur.s')
```

```python
import sys
from asmlib import *
from k_small import *
from k_attn import *
from k_gemm import *
import k_attn2, k_attn3
from k_wo2 import *
from k_pre import *
from k_pre3 import *

def build(kernels, path):
    hdr = [l.rstrip('\n') for l in open('adaLN_cond__mha_block_cached__geglu_ffn__prompt.s.ref') if l.startswith(';') and '@launch' not in l]
    out = hdr + [k[2] for k in kernels]
    out += ['.amdgcn_target "amdgcn-amd-amdhsa--gfx950"', '.text']
    seen = set()
    for k in kernels:
        nm = k[0][0]
        if nm in seen: continue
        seen.add(nm)
        out += k[0]
    out += ['.section .rodata,"a"']
    seen = set()
    for k in kernels:
        nm = k[0][0]
        if nm in seen: continue
        seen.add(nm)
        out += ['.p2align 6'] + k[1]
    open(path, 'w').write('\n'.join(out) + '\n')

if __name__ == '__main__':
    import k_attn, asmlib
    asmlib.PROF = 'tl' in sys.argv
    asmlib.CLAIM = 'claim' in sys.argv
    for x in sys.argv:
        if x.startswith('osc='): k_attn3.OSC = ' ' + x[4:].replace('+', ' ')
    for x in sys.argv:
        if x.startswith('st='): asmlib.STAMPK = int(x[3:])
    k_attn.FAKE16 = 'fake16' in sys.argv
    k_attn.NOVALU = 'novalu' in sys.argv
    k_attn.NOLDS = 'nolds' in sys.argv
    k_attn.NODMA = 'nodma' in sys.argv
    k_attn.PROFQ = 'profq' in sys.argv
    k_attn.WQLIN = 'wqlin' in sys.argv
    k_attn.NOH = 'noh' in sys.argv
    k_attn2.USE_PK = 'pk' in sys.argv
    k_attn2.ABL = set(x[4:] for x in sys.argv if x.startswith('abl-'))
    k_attn2.TWOACC = 'two' in sys.argv
    for x in sys.argv:
        if x.startswith('cost='):
            k_attn2.CV, k_attn2.CE, k_attn2.CD, k_attn2.CM, k_attn2.CS = [int(y) for y in x[5:].split(',')]
    import k_gemm, k_pre, k_wo2
    for x in sys.argv:
        if x.startswith('wsc='): k_wo2.WSC = ' ' + x[4:].replace('+', ' ')
        if x.startswith('lsc='): k_wo2.LSC = ' ' + x[4:].replace('+', ' ')
        if x.startswith('fsc='): k_gemm.FSC = ' ' + x[4:].replace('+', ' ')
    for x in sys.argv:
        if x.startswith('sleep='): k_pre.SLEEP = int(x[6:])
        if x == 'sc1': k_pre.SC = 'sc1'
    for x in sys.argv:
        if x.startswith('ffnlim='): k_gemm.FFN_LIM = [int(y) for y in x[7:].split(',')]
        if x.startswith('spk='): k_gemm.SPK = [int(y) for y in x[4:].split(',')]
    ks = ([gen_mod2(), gen_ln1v2()] if 'nofuse' in sys.argv else [gen_pre()] if 'pre2' in sys.argv else [gen_pre3_full()]) + [ (gen_attn(prof='prof' in sys.argv) if 'old' in sys.argv else k_attn2.gen_attn() if 'a2' in sys.argv else k_attn3.gen_attn())]
    ks.append(gen_wo2())
    ks.append(gen_ln2r())
    ks.append(gen_ffn1())
    ks.append(gen_splitk('down_kernel', 16, 1792, KA['wd'], ACT_OFF, 2048*3584, ('wsf', X1_OFF), 5120, ('out',)))
    if 'dup' in sys.argv:
        k2 = gen_splitk('wo2_kernel', 32, 4096, KA['wo'], O_OFF, 2048*8192, ('in', KA['x']), 2048, ('ws', X1_OFF))
        k2 = ([l.replace(str(asmlib.PROF_OFF + 3*65536), str(asmlib.PROF_OFF + 7*65536)) for l in k2[0]], k2[1], k2[2])
        ks = ks[:4] + [k2]
    for x in sys.argv:
        if x.startswith('empty='):
            n = int(x[6:].lstrip('f'))
            ek = (kernel_header('empty_kernel') + ['s_endpgm'], kernel_desc('empty_kernel', 8, 16, 8), '; @launch kernel=empty_kernel grid=(256,1,1) block=(256,1,1) lds=0')
            ks = ([ek] * n + ks) if x[6] == 'f' else (ks + [ek] * n)
    build(ks, sys.argv[1] if len(sys.argv) > 1 else 'cur.s')
```

```python
from asmlib import *
import asmlib
from k_small import *
from k_attn import interleave, f2u
import math

def O_(db, qb): return 16 * (2 * db + qb)
def Q_(qb, s_): return 128 + 4 * (8 * qb + s_)
def KF(s_): return 192 + 4 * s_
def VF(ks, db): return 224 + 4 * (4 * ks + db)
KAD = 16
VAD = 24
KADH = 210
VADH = 218
WAD = 28
WAD2 = 200
def S_(p, qb): return 32 + 32 * p + 16 * qb
def P_(p, qb): return 96 + 16 * p + 8 * qb
def NEGM(qb): return 128 + 16 * qb
LSUM = 160
LB = 162
TMP = 172
MX = 180
VKD0, VKD1, VVD, VWD, VH = 182, 183, 184, 185, 186
RT = 188
PFD = 204
VPF = 208
def QA(db, qb): return 32 + 16 * (2 * db + qb)
def HF(c, ks, qb): return 32 * (c % 4) + 8 * ks + 4 * qb
def WF(st, db): return 192 + 16 * st + 4 * db

SK, SV, SW, SH, SO = 8, 12, 16, 20, 24
S_W, S_HEAD, S_QB, S_CNT, S_KOFF, S_VOFF, S_KSLOT, S_WB, S_WBV, S_THR, S_T0, S_T1 = 28, 29, 30, 31, 32, 33, 34, 35, 36, 37, 38, 39
S_RET = 40
S_H0, S_H1 = 42, 43
S_O0, S_O1, S_O2, S_O3 = 44, 45, 46, 47
S_VSLOT, S_PF = 56, 57
S_PW = 58
SPFS = [4, 48, 52, 60]

THRESH = 2.0 ** 80
BIAS = 96.0
QSCALE = (128 ** -0.5) * 1.4426950408889634
DK, DV = 5, 4
PREFETCH = True
USE_PK = False
TWOACC = False
ABL = set()

HC_LOC = [(hc // 2) * 16384 + (hc % 2) * 2048 for hc in range(16)]
KV_AT = {4: [0, 1], 5: [2], 6: [3], 7: [4]}
OSC = ' sc0 sc1'
TUNE = dict(kspan=9, dstart=4, dend=20, vspan=11, lmpos=6)
LMODE = 'valu'
ONES = 168
LM = 222

CV, CE, CD, CM, CS = 4, 8, 4, 16, 4

LACC = 164
def softmax_ops(p, first=False):
    hyb = LMODE == 'hybrid'
    ops = []
    if not first:
        ops.append((f'v_add_f32 v{LSUM}, v{LSUM}, v{LB}', CV))
        ops.append((f'v_add_f32 v{LSUM+1}, v{LSUM+1}, v{LM if hyb else LB+1}', CV))
    prev = []
    qi = 0
    for qb in ((1, 0) if hyb else (0, 1)):
        for i in range(8):
            sa, sb = S_(p, qb) + 2 * i, S_(p, qb) + 2 * i + 1
            ta, tb = TMP + 2 * (qi % 4), TMP + 2 * (qi % 4) + 1
            ops.append((f'v_exp_f32 v{ta}, v{sa}', CE))
            ops += prev[:1]
            ops.append((f'v_exp_f32 v{tb}, v{sb}', CE))
            ops += prev[1:]
            prev = [(f'v_cvt_pk_bf16_f32 v{P_(p,qb)+i}, v{ta}, v{tb}', CV)]
            if not (hyb and qb == 1):
                if i == 0:
                    prev.append((f'v_add_f32 v{LB+qb}, v{ta}, v{tb}', CV))
                else:
                    prev.append((f'v_add_f32 v{LB+qb}, v{LB+qb}, v{ta}', CV))
                    prev.append((f'v_add_f32 v{LB+qb}, v{LB+qb}, v{tb}', CV))
            qi += 1
    ops += prev
    ops.append((f'v_max_f32 v{RT}, v{LB}, v{LM if hyb else LB+1}', CV))
    ops.append((f'v_cmp_nle_f32 vcc, v{RT}, v{MX}', CV))
    return ops

def lm_mfmas(p):
    return [(f'v_mfma_f32_16x16x32_bf16 {v(LM,4)}, {v(ONES,4)}, {v(P_(p,1),4)}, 0', 8),
            (f'v_mfma_f32_16x16x32_bf16 {v(LM,4)}, {v(ONES,4)}, {v(P_(p,1)+4,4)}, {v(LM,4)}', 8)]


def pv_mfmas(p, czero=False):
    m = []
    for ks in range(2):
        for db in range(4):
            for qb in range(2):
                c = '0' if (czero and ks == 0) else a(O_(db, qb), 16)
                m.append((f'v_mfma_f32_32x32x16_bf16 {a(O_(db,qb),16)}, {a(VF(ks,db),4)}, {v(P_(p,qb)+4*ks,4)}, {c}', 24))
    return m

def qk_mfmas(p, czero=False):
    m = []
    for s_ in range(8):
        for qb in range(2):
            c = v(S_(p, qb), 16) if s_ else ('0' if czero else v(NEGM(qb), 16))
            m.append((f'v_mfma_f32_32x32x16_bf16 {v(S_(p,qb),16)}, {a(KF(s_),4)}, {a(Q_(qb,s_),4)}, {c}', 24))
    return m

def k_reads(slot):
    ops = []
    base = KAD if slot < 4 else KADH
    for s_ in range(8):
        ops.append((f'ds_read_b128 {a(KF(s_),4)}, v{base+s_} offset:{(slot%4)*16384}', CD))
    return ops

def v_reads(slot):
    ops = []
    base = VAD if slot < 4 else VADH
    for ks in range(2):
        for db in range(4):
            for aa in range(2):
                ops.append((f'ds_read_b64_tr_b16 {a(VF(ks,db)+2*aa,2)}, v{base+db} offset:{(slot%4)*16384 + (2*ks+aa)*4096}', CD))
    return ops

def dma_ops(slot, pf=()):
    ops = [
        (f's_add_u32 m0, s{S_WB}, {slot*16384}', 20),
        (f'buffer_load_dwordx4 v{VKD0}, s[{SK}:{SK+3}], s{S_KOFF} offen lds', CM),
        (f'buffer_load_dwordx4 v{VKD1}, s[{SK}:{SK+3}], s{S_KOFF} offen offset:1024 lds', CM),
        (f'buffer_load_dwordx4 v{VVD}, s[{SV}:{SV+3}], s{S_KOFF} offen offset:2048 lds', CM),
        (f'buffer_load_dwordx4 v{VVD}, s[{SV}:{SV+3}], s{S_KOFF} offen offset:3072 lds', CM),
        (f's_add_u32 s{S_KOFF}, s{S_KOFF}, 8192', CS),
    ]
    for (k, off) in pf:
        if k == 'wo':
            ops.append((f'buffer_load_dwordx4 v[{PFD}:{PFD+3}], v{VH}, s[{SPFS[0]}:{SPFS[0]+3}], s{S_PW + off // 4} offen offset:{(off%4)*1024}', CM))
            continue
        ops.append((f's_add_u32 s{S_T0}, s{S_PF}, {off}', CS))
        ops.append((f'buffer_load_dwordx4 v[{PFD}:{PFD+3}], v{VPF}, s[{SPFS[k]}:{SPFS[k]+3}], s{S_T0} offen', CM))
    return ops


def body(j, name, tag, do_pv=True, do_qk=True, dma=True, vm=12, pvzero=False, pf=(), first=False):
    p = j % 2
    mf = []
    if do_pv: mf += pv_mfmas(1 - p, pvzero)
    npv = len(mf)
    if do_qk: mf += qk_mfmas(1 - p)
    short = not (do_pv and do_qk)
    if LMODE == 'hybrid' and not short:
        pos = len(mf) - TUNE['lmpos']
        mf = mf[:pos] + lm_mfmas(p) + mf[pos:]
    n = len(mf)
    pre = {}
    L = []
    queues = []
    bar = [f's_waitcnt vmcnt({vm})', 's_barrier']
    if do_pv:
        pre[0] = ['s_waitcnt lgkmcnt(0)']
        pre[1] = list(bar)
        kstart = 1
    else:
        L += bar
        kstart = 0
    if do_qk:
        if do_pv:
            queues.append(dict(items=k_reads((j + 1) % 8), start=kstart, end=min(kstart + TUNE['kspan'], npv - 3)))
            pre.setdefault(npv, []).append('s_waitcnt lgkmcnt(0)')
        else:
            L += [t for t, _ in k_reads((j + 1) % 8)]
            pre.setdefault(0, []).append('s_waitcnt lgkmcnt(0)')
    if dma:
        queues.append(dict(items=dma_ops((j + DK) % 8, pf), start=(TUNE['dstart'] if do_pv else 2), end=(TUNE['dend'] if do_pv else 13)))
    elif pf:
        queues.append(dict(items=dma_ops(0, pf)[6:], start=2, end=n - 4))
    vstart = npv if do_qk else npv - 1
    queues.append(dict(items=v_reads((j + 1) % 8), start=vstart, end=min(vstart + TUNE['vspan'], n - 1)))
    queues.append(dict(items=softmax_ops(p, first), start=(3 if do_qk else 6) if do_pv else 2, end=n - 2))
    if tag.startswith('l'):
        for q in queues:
            if 'nok' in ABL: q['items'] = [x for x in q['items'] if not x[0].startswith('ds_read_b128')]
            if 'nov' in ABL: q['items'] = [x for x in q['items'] if not x[0].startswith('ds_read_b64')]
            if 'nodma' in ABL: q['items'] = [x for x in q['items'] if not x[0].startswith('buffer_load')]
            if 'nosalu' in ABL: q['items'] = [x for x in q['items'] if not x[0].startswith('s_')]
            if 'noadd' in ABL: q['items'] = [x for x in q['items'] if not x[0].startswith('v_add')]
            if 'nocvt' in ABL: q['items'] = [x for x in q['items'] if not x[0].startswith('v_cvt')]
        if 'nobar' in ABL: pre[1] = []
    post = []
    if LMODE == 'hybrid' and short:
        post = ['s_nop 1'] + [t for t, _ in lm_mfmas(p)] + ['s_nop 7'] + [t for t, _ in queues[-1]['items'][-2:]]
        queues[-1]['items'] = queues[-1]['items'][:-2]
    out = interleave(mf, queues, pre) + post
    if LMODE == 'hybrid':
        ilm = [i for i, t in enumerate(out) if t.startswith('v_mfma_f32_16x16x32')][0]
        last = max(i for i, t in enumerate(out) if any(t.startswith(f'v_cvt_pk_bf16_f32 v{P_(p,1)+k},') for k in range(8)))
        assert last < ilm, (tag, last, ilm)
    L += out
    L.append(f's_cbranch_vccnz {name}_tr_{tag}')
    L.append(f'{name}_back_{tag}:')
    tramp = [f'{name}_tr_{tag}:', f's_call_b64 s[{S_RET}:{S_RET+1}], {name}_rare{p}', f's_branch {name}_back_{tag}']
    return L, tramp


def rowmax_delta(e, p, qb, clamp):
    t1, t2 = RT + 1, RT + 2
    e(f'v_max_f32 v{t1}, v{S_(p,qb)}, v{S_(p,qb)+1}')
    for i in range(1, 8):
        e(f'v_max3_f32 v{t1}, v{t1}, v{S_(p,qb)+2*i}, v{S_(p,qb)+2*i+1}')
    e(f'v_mov_b32 v{t2}, v{t1}')
    e('s_nop 1')
    e(f'v_permlane32_swap_b32 v{t1}, v{t2}')
    e(f'v_max_f32 v{t1}, v{t1}, v{t2}')
    e(f'v_ceil_f32 v{t1}, v{t1}')
    e(f'v_add_f32 v{t1}, 0x{f2u(BIAS):08x}, v{t1}')
    if clamp:
        e(f'v_max_f32 v{t1}, 0, v{t1}')
    return t1

def rare(name, p):
    L = [f'{name}_rare{p}:']
    e = L.append
    e('s_nop 15'); e('s_nop 15')
    for qb in range(2):
        d = rowmax_delta(e, p, qb, True)
        f = RT + 3
        e(f'v_cvt_i32_f32 v{f}, v{d}')
        e(f'v_sub_u32 v{f}, 0, v{f}')
        e(f'v_sub_f32 v{NEGM(qb)}, v{NEGM(qb)}, v{d}')
        for i in range(1, 16):
            e(f'v_mov_b32 v{NEGM(qb)+i}, v{NEGM(qb)}')
        for pp in range(2):
            for i in range(16):
                e(f'v_sub_f32 v{S_(pp,qb)+i}, v{S_(pp,qb)+i}, v{d}')
        e(f'v_mov_b32 v{LB+qb}, 0')
        for i in range(8):
            e(f'v_exp_f32 v{RT+4}, v{S_(p,qb)+2*i}')
            e(f'v_exp_f32 v{RT+5}, v{S_(p,qb)+2*i+1}')
            e('s_nop 0')
            e(f'v_cvt_pk_bf16_f32 v{P_(p,qb)+i}, v{RT+4}, v{RT+5}')
            e(f'v_add_f32 v{LB+qb}, v{LB+qb}, v{RT+4}')
            e(f'v_add_f32 v{LB+qb}, v{LB+qb}, v{RT+5}')
        if LMODE == 'hybrid' and qb == 1:
            e(f'v_mov_b32 v{RT+4}, v{LB+1}')
            e('s_nop 1')
            e(f'v_permlane32_swap_b32 v{LB+1}, v{RT+4}')
            e(f'v_add_f32 v{LM}, v{LB+1}, v{RT+4}')
        e(f'v_ldexp_f32 v{LSUM+qb}, v{LSUM+qb}, v{f}')
        for db in range(4):
            for i in range(0, 16, 4):
                for k in range(4):
                    e(f'v_accvgpr_read_b32 v{RT+4+k}, a{O_(db,qb)+i+k}')
                for k in range(4):
                    e(f'v_ldexp_f32 v{RT+4+k}, v{RT+4+k}, v{f}')
                for k in range(4):
                    e(f'v_accvgpr_write_b32 a{O_(db,qb)+i+k}, v{RT+4+k}')
    e('s_nop 1')
    e(f's_setpc_b64 s[{S_RET}:{S_RET+1}]')
    return L


def gen_attn(name='attn_kernel', prof=False):
    L = kernel_header(name)
    e = L.append
    vq = Q(63)
    prof_begin(L)
    dstamp(L, 2, 0)
    claim(L, name, 131072, vb=232)
    e(f's_load_dwordx2 s[52:53], s[0:1], {KA["wq"]}')
    e(f's_load_dwordx2 s[54:55], s[0:1], {KA["ws"]}')
    e(f's_load_dwordx4 s[48:51], s[0:1], {KA["k"]}')
    if PREFETCH:
        e(f's_load_dwordx2 s[80:81], s[0:1], {KA["wo"]}')
        e(f's_load_dwordx4 s[84:87], s[0:1], {KA["wg"]}')
        e(f's_load_dwordx2 s[82:83], s[0:1], {KA["wd"]}')
    e('v_lshrrev_b32 v1, 6, v0')
    e('v_and_b32 v2, 63, v0')
    e(f'v_readfirstlane_b32 s{S_W}, v1')
    e(f's_bfe_u32 s{S_T0}, s2, 0x20001')
    e(f's_lshr_b32 s{S_T1}, s2, 3')
    e(f's_lshl_b32 s{S_HEAD}, s{S_T0}, 3')
    e(f's_and_b32 s{S_T0}, s{S_T1}, 7')
    e(f's_add_u32 s{S_HEAD}, s{S_HEAD}, s{S_T0}')
    e(f's_lshr_b32 s{S_QB}, s{S_T1}, 3')
    e(f's_and_b32 s{S_T0}, s2, 1')
    e(f's_lshl_b32 s{S_T0}, s{S_T0}, 2')
    e(f's_add_u32 s{S_QB}, s{S_QB}, s{S_T0}')
    e(f's_lshl_b32 s{S_WB}, s{S_W}, 12')
    e('v_lshrrev_b32 v3, 4, v2')
    e('v_and_b32 v4, 15, v2')
    e(f'v_lshlrev_b32 v{VH}, 4, v2')
    e(f's_lshl_b32 s{S_T0}, s{S_W}, 3')
    e(f'v_add_u32 v10, s{S_T0}, v3')
    e('v_lshlrev_b32 v11, 2, v3')
    e('v_xor_b32 v11, v11, v4')
    e('v_lshlrev_b32 v12, 13, v10')
    e(f'v_lshl_add_u32 v{VWD}, v11, 4, v12')
    e(f's_lshl_b32 s{S_T0}, s{S_HEAD}, 8')
    e(f'v_add_u32 v{VWD}, s{S_T0}, v{VWD}')
    e(f's_lshl_b32 s{S_T0}, s{S_QB}, 3')
    e(f's_lshl_b32 s{S_T1}, s{S_W}, 1')
    e(f's_add_u32 s{S_O0}, s{S_T0}, s{S_T1}')
    e(f's_lshl_b32 s{S_H0}, s{S_O0}, 15')
    e(f's_add_u32 s{S_H1}, s{S_H0}, 32768')
    e('s_waitcnt lgkmcnt(0)')
    srd(L, SW, 52, 512 * 8192)
    srd_off(L, SH, 54, H1_OFF, 2048 * 1024)

    def ops_D(c):
        ops = []
        for hcl in range(2):
            hc = 2 * c + hcl
            for i in range(2):
                ops.append((f's_add_u32 m0, s{S_WB}, {HC_LOC[hc] + i*1024}', CS))
                ops.append((f's_mov_b32 s{S_T0}, {(32*hc + 4*i)*8192}', CS))
                ops.append((f'buffer_load_dwordx4 v{VWD}, s[{SW}:{SW+3}], s{S_T0} offen lds', CM, ('D', c)))
        return ops
    def ops_H(c):
        ops = []
        for ks in range(4):
            for qb in range(2):
                ops.append((f'buffer_load_dwordx4 {a(HF(c,ks,qb),4)}, v{VH}, s[{SH}:{SH+3}], s{S_H0+qb} offen offset:{ks*1024}', CM, ('H', c, ks)))
        ops.append((f's_add_u32 s{S_H0}, s{S_H0}, 4096', CS))
        ops.append((f's_add_u32 s{S_H1}, s{S_H1}, 4096', CS))
        return ops
    def ops_KV(t):
        ops = [(f's_add_u32 m0, s{S_WB}, {t*16384}', CS), (f's_mov_b32 s{S_T0}, {t*8192}', CS)]
        ops.append((f'buffer_load_dwordx4 v{VKD0}, s[{SK}:{SK+3}], s{S_T0} offen lds', CM, ('SL', t)))
        ops.append((f'buffer_load_dwordx4 v{VKD1}, s[{SK}:{SK+3}], s{S_T0} offen offset:1024 lds', CM, ('SL', t)))
        if t > 0:
            ops.append((f'buffer_load_dwordx4 v{VVD}, s[{SV}:{SV+3}], s{S_T0} offen offset:2048 lds', CM, ('SL', t)))
            ops.append((f'buffer_load_dwordx4 v{VVD}, s[{SV}:{SV+3}], s{S_T0} offen offset:3072 lds', CM, ('SL', t)))
        return ops
    def emit_ops(ops):
        for o in ops:
            e(o[0])
            if len(o) > 2: vq.issue(o[2])
    def w_reads(kstep):
        hc = kstep // 2
        loc = HC_LOC[hc] + (kstep % 2) * 8192
        base = WAD if loc < 65536 else WAD2
        loc &= 0xffff
        st = kstep % 2
        ops = []
        for db in range(4):
            for aa in range(2):
                ops.append((f'ds_read_b64_tr_b16 {a(WF(st,db)+2*aa,2)}, v{base+db} offset:{loc + aa*1024}', CD))
        return ops

    emit_ops(ops_D(0)); emit_ops(ops_H(0)); emit_ops(ops_D(1))
    dstamp(L, 2, 1)
    e('v_lshrrev_b32 v5, 5, v2')
    e('v_and_b32 v6, 31, v2')
    e('v_and_b32 v7, 1, v3')
    e('v_lshrrev_b32 v8, 2, v4')
    e('v_and_b32 v9, 3, v2')
    e('v_lshlrev_b32 v12, 8, v10')
    e(f'v_lshl_add_u32 v{VVD}, v11, 4, v12')
    e('v_and_b32 v11, 15, v10')
    e('v_xor_b32 v11, v11, v4')
    e(f'v_lshl_add_u32 v{VKD0}, v11, 4, v12')
    e('v_add_u32 v11, 4, v10')
    e('v_and_b32 v11, 15, v11')
    e('v_xor_b32 v11, v11, v4')
    e(f'v_lshl_add_u32 v{VKD1}, v11, 4, v12')
    e('v_and_b32 v10, 15, v6')
    e('v_lshrrev_b32 v12, 3, v6')
    e('v_lshlrev_b32 v12, 12, v12')
    e('v_and_b32 v13, 7, v6')
    e('v_lshl_add_u32 v12, v13, 8, v12')
    for s_ in range(8):
        e(f'v_add_u32 v11, {2*s_}, v5')
        e('v_xor_b32 v11, v11, v10')
        e(f'v_lshl_add_u32 v{KAD+s_}, v11, 4, v12')
        e(f'v_add_u32 v{KADH+s_}, 0x10000, v{KAD+s_}')
    e('v_lshl_add_u32 v10, v5, 2, v8')
    e('v_lshlrev_b32 v10, 8, v10')
    e('v_lshl_add_u32 v10, v7, 5, v10')
    e('v_lshl_add_u32 v13, v9, 3, v10')
    e('v_add_u32 v13, 2048, v13')
    for db in range(4):
        e(f'v_xor_b32 v11, {db}, v8')
        e(f'v_lshl_add_u32 v{VAD+db}, v11, 6, v13')
        e(f'v_add_u32 v{VADH+db}, 0x10000, v{VAD+db}')
    e('v_lshlrev_b32 v10, 12, v5')
    e('v_lshl_add_u32 v10, v8, 8, v10')
    e('v_lshl_add_u32 v10, v7, 5, v10')
    e('v_and_b32 v11, 1, v9')
    e('v_lshlrev_b32 v11, 1, v11')
    e('v_lshrrev_b32 v12, 1, v9')
    e('v_or_b32 v11, v11, v12')
    e('v_lshl_add_u32 v13, v11, 3, v10')
    for db in range(4):
        e(f'v_xor_b32 v11, {db}, v8')
        e(f'v_lshl_add_u32 v{WAD+db}, v11, 6, v13')
        e(f'v_add_u32 v{WAD2+db}, 0x10000, v{WAD+db}')
    if LMODE == 'hybrid':
        e('v_lshrrev_b32 v10, 2, v2')
        e('v_xor_b32 v10, v10, v3')
        e('v_and_b32 v10, 1, v10')
        e('v_cmp_eq_u32 vcc, 0, v10')
        e('v_mov_b32 v11, 0x3f803f80')
        e('s_nop 0')
        for i in range(4):
            e(f'v_cndmask_b32 v{ONES+i}, 0, v11, vcc')
    e(f'v_mov_b32 v{MX}, 0x{f2u(THRESH):08x}')
    e(f'v_mov_b32 v{LSUM}, 0')
    e(f'v_mov_b32 v{LSUM+1}, 0')
    e(f's_lshl_b32 s{S_T0}, s{S_HEAD}, 19')
    srd_off(L, SK, 48, f's{S_T0}', 524288)
    e(f's_sub_u32 s50, s50, 10240')
    e(f's_subb_u32 s51, s51, 0')
    srd_off(L, SV, 50, f's{S_T0}', 524288 + 10240)
    srd_off(L, SO, 54, O_OFF, 2048 * 8192)
    e(f's_lshl_b32 s{S_O0}, s{S_O0}, 18')
    e(f's_lshl_b32 s{S_T1}, s{S_HEAD}, 13')
    e(f's_add_u32 s{S_O0}, s{S_O0}, s{S_T1}')
    e(f's_add_u32 s{S_O1}, s{S_O0}, 4096')
    e(f's_add_u32 s{S_O2}, s{S_O0}, {1<<18}')
    e(f's_add_u32 s{S_O3}, s{S_O2}, 4096')
    if PREFETCH:
        srd(L, SPFS[0], 80, 4096 * 1024)
        srd(L, SPFS[1], 84, 512 * 3584)
        srd(L, SPFS[2], 86, 512 * 3584)
        srd(L, SPFS[3], 82, 1792 * 1024)
        e(f's_lshl_b32 s{S_PF}, s2, 12')
        e(f's_bfe_u32 s{S_T0}, s2, 0x20001')
        e(f's_lshl_b32 s{S_T0}, s{S_T0}, 20')
        e(f's_lshr_b32 s{S_T1}, s2, 3')
        e(f's_lshl_b32 s{S_T1}, s{S_T1}, 15')
        e(f's_add_u32 s{S_T0}, s{S_T0}, s{S_T1}')
        e(f's_lshl_b32 s{S_T1}, s{S_W}, 13')
        e(f's_add_u32 s{S_PW}, s{S_T0}, s{S_T1}')
        e(f's_add_u32 s{S_PW+1}, s{S_PW}, 4096')
        e(f'v_lshlrev_b32 v{VPF}, 4, v0')
    n = vq.wait_for(lambda t: t == ('D', 0))
    e(f's_waitcnt vmcnt({n})')
    e('s_barrier')
    dstamp(L, 2, 2)
    L += [t for t, _ in w_reads(0)]
    plan = {0: ops_H(1) + ops_D(2) + ops_H(2)}
    for c in range(1, 6):
        plan[c] = ops_D(c + 2) + ops_H(c + 2)
    plan[6] = []; plan[7] = []
    def conv_ops(db):
        ops = []
        for qb in range(2):
            for sp in range(2):
                for i in range(4):
                    r = QA(db, qb) + 8 * sp + 2 * i
                    ops.append((f'v_mul_f32 v{r}, s{S_T1}, v{r}', CV))
                    ops.append((f'v_mul_f32 v{r+1}, s{S_T1}, v{r+1}', CV))
                for i in range(4):
                    r = QA(db, qb) + 8 * sp + 2 * i
                    ops.append((f'v_cvt_pk_bf16_f32 v{TMP+4*(sp%2)+i}, v{r}, v{r+1}', CV))
                for i in range(4):
                    ops.append((f'v_accvgpr_write_b32 a{Q_(qb, 2*db+sp)+i}, v{TMP+4*(sp%2)+i}', CV))
        return ops
    for c in range(8):
        vops = list(plan[c])
        nv = len(vops)
        for ks in range(4):
            kstep = 4 * c + ks
            st = kstep % 2
            n = vq.wait_for(lambda t: t == ('H', c, ks))
            if n is not None: e(f's_waitcnt vmcnt({n})')
            e('s_waitcnt lgkmcnt(0)')
            part = []
            if ks < 3:
                k0 = nv * ks // 3; k1 = nv * (ks + 1) // 3
                part = vops[k0:k1]
            else:
                if c < 7:
                    n = vq.wait_for(lambda t: t == ('D', c + 1))
                else:
                    n = vq.wait_for(lambda t: t in (('SL', 0),))
                if n is not None:
                    e(f's_waitcnt vmcnt({n})')
                e('s_barrier')
                for t in KV_AT.get(c, []):
                    part += ops_KV(t)
            mf = []
            for db in range(4):
                for qb in range(2):
                    cc = '0' if kstep == 0 else v(QA(db, qb), 16)
                    mf.append((f'v_mfma_f32_32x32x16_bf16 {v(QA(db,qb),16)}, {a(WF(st,db),4)}, {a(HF(c,ks,qb),4)}, {cc}', 24))
            qs = []
            if kstep < 31:
                qs.append(dict(items=w_reads(kstep + 1), start=0, end=5))
            else:
                pass
            if part:
                qs.append(dict(items=[(o[0], o[1]) for o in part], start=0, end=7))
            L += interleave(mf, qs)
            for o in part:
                if len(o) > 2: vq.issue(o[2])
    dstamp(L, 2, 3)
    L += [t for t, _ in k_reads(0)]
    e(f's_mov_b32 s{S_T1}, 0x{f2u(QSCALE):08x}')
    e('s_nop 4')
    L += [t for t, _ in conv_ops(0)]
    e('s_waitcnt lgkmcnt(0)')
    qk0 = qk_mfmas(0, czero=True)
    for db in range(1, 4):
        L += interleave(qk0[4*(db-1):4*db], [dict(items=conv_ops(db), start=0, end=3)])
    e('s_nop 1')
    L += [t for t, _ in qk0[12:]]
    e('s_nop 15')
    for qb in range(2):
        d = rowmax_delta(e, 0, qb, False)
        e(f'v_sub_f32 v{NEGM(qb)}, 0, v{d}')
        for i in range(1, 16):
            e(f'v_mov_b32 v{NEGM(qb)+i}, v{NEGM(qb)}')
        for i in range(16):
            e(f'v_sub_f32 v{S_(0,qb)+i}, v{S_(0,qb)+i}, v{d}')
    e(f's_mov_b32 s{S_KOFF}, {DK*8192}')
    dstamp(L, 2, 4)
    tramps = []
    pfl = [(0, i << 20) for i in range(4)] + [(k, i << 20) for k in (1, 2, 3) for i in range(2)] if PREFETCH else []
    def mk(j, tag, **kw):
        need = (lambda t: t == ('SL', j + 1))
        nn = vq.wait_for(need)
        if nn is None: nn = 63
        if 'vmmax' in kw: nn = min(nn, kw.pop('vmmax'))
        b, t = body(j, name, tag, vm=nn, **kw)
        if kw.get('dma', True):
            for _ in range(4): vq.issue(('SL', j + DK))
        for _ in kw.get('pf', ()): vq.issue(('pf', j))
        return b, t
    b0, t0 = mk(0, 'p0', do_pv=False, first=True)
    L += b0; tramps += t0
    b1, t1 = mk(1, 'p1', pvzero=True)
    L += b1; tramps += t1
    e(f's_mov_b32 s{S_CNT}, 7')
    e(f'{name}_loop:')
    loop = []
    for u in range(8):
        b, t = mk(2 + u, f'l{u}', vmmax=12)
        loop += b; tramps += t
    L += loop
    e(f's_sub_u32 s{S_CNT}, s{S_CNT}, 1')
    e(f's_cmp_lg_u32 s{S_CNT}, 0')
    e(f's_cbranch_scc1 {name}_loop')
    tail = []
    vq.items = [('SL', t) for t in range(59, 63) for _ in range(4)]
    for j in range(58, 64):
        pf = ()
        if PREFETCH and j == 60: pf = [('wo', i) for i in range(8)]
        if PREFETCH and j == 61: pf = pfl[4:]
        b, t = mk(j, f't{j}', dma=(j + DK <= 64), do_qk=(j < 63), pf=pf)
        tail += b; tramps += t
    L += tail
    code_prefetch(L, 'attn', 'wo_kernel', 'code_end', 60, 236, 240, 1, 4)
    dstamp(L, 2, 5)
    ep = []
    hyb = LMODE == 'hybrid'
    for qb in range(2):
        ep.append(f'v_add_f32 v{LSUM+qb}, v{LSUM+qb}, v{LM if (hyb and qb) else LB+qb}')
        ep.append(f'v_mov_b32 v{RT+2+qb}, v{LSUM+qb}')
    ep.append('s_nop 1')
    for qb in range(1 if hyb else 2):
        ep.append(f'v_permlane32_swap_b32 v{LSUM+qb}, v{RT+2+qb}')
    for qb in range(1 if hyb else 2):
        ep.append(f'v_add_f32 v{LSUM+qb}, v{LSUM+qb}, v{RT+2+qb}')
    for qb in range(2):
        ep.append(f'v_rcp_f32 v{RT+qb}, v{LSUM+qb}')
    ep.append('s_waitcnt lgkmcnt(0)')
    def norm_ops(db, qb, k):
        ops = []
        for sp in range(2):
            base = 32 + 8 * ((2 * k + sp) % 8)
            pk = 128 + 4 * ((2 * k + sp) % 8)
            for i in range(8):
                ops.append((f'v_accvgpr_read_b32 v{base+i}, a{O_(db,qb)+8*sp+i}', CV))
            for i in range(8):
                ops.append((f'v_mul_f32 v{base+i}, v{base+i}, v{RT+qb}', CV))
            for i in range(4):
                ops.append((f'v_cvt_pk_bf16_f32 v{pk+i}, v{base+2*i}, v{base+2*i+1}', CV))
            t = 2 * db + sp
            so = S_O0 + 2 * qb + (1 if t >= 4 else 0)
            ops.append((f'buffer_store_dwordx4 {v(pk,4)}, v{VH}, s[{SO}:{SO+3}], s{so} offen offset:{(t%4)*1024}{OSC}', CM))
        return ops
    pv = pv_mfmas(1)
    ep += [t for t, _ in pv[:12]]
    ep += interleave(pv[12:], [dict(items=[('s_nop 7', 4)] + norm_ops(0, 0, 0), start=0, end=3)])
    k = 1
    for db in range(4):
        for qb in range(2):
            if (db, qb) == (0, 0): continue
            if db == 3 and qb == 0: ep.append('s_nop 0')
            ep += [t for t, _ in norm_ops(db, qb, k)]
            k += 1
    L += ep
    dstamp(L, 2, 6)
    dstamp_store(L, 2, 7)
    prof_end(L, 2, 1)
    e(f'{name}_done:')
    e('s_endpgm')
    L += tramps
    L += rare(name, 0) + rare(name, 1)
    L = hoist(L)
    pro_end = L.index(f'{name}_loop:')
    trace = L[:pro_end] + loop + loop + tail + ep
    hz = check_hazards(trace, name)
    hz += check_hazards(loop[-30:] + rare(name, 0) + loop[:30], name + '_rare0')
    hz += check_hazards(loop[-30:] + rare(name, 1) + loop[:30], name + '_rare1')
    for h in hz: print('HAZARD', h)
    return L, kernel_desc(name, 512, 102, 256), f'; @launch kernel={name} grid=(256,1,1) block=(256,1,1) lds=131328'
```

```python
from asmlib import *
import asmlib
from k_small import *
from k_attn import interleave

FSC = ''
CPF3 = True
FFN_LIM = [6, 6]
SPK = [2, 10]
def gen_splitk(name, shape, K, w_ka, b_off, b_bytes, res, gmod_off, dst):
    NS = K // 4 // 32
    D = 6
    L = kernel_header(name)
    e = L.append
    vq = Q(63)
    SWT, SB, SR, SM, SD = 8, 12, 16, 20, 24
    S_W, S_MT, S_NT, S_T0, S_T1, S_LB = 28, 29, 30, 31, 32, 33
    S_B = 34
    S_WO = 38
    VWD, VH, VAD = 10, 11, 12
    ACC = 32
    def BF(t, i): return 16 * (t % 8) + 4 * i
    def AF(st, i): return 128 + 16 * st + 4 * i
    prof_begin(L)
    KI = 3 if shape == 32 else 6
    dstamp(L, KI, 0)
    claim(L, name, 131072, vb=28)
    e(f's_load_dwordx2 s[48:49], s[0:1], {w_ka}')
    e(f's_load_dwordx2 s[50:51], s[0:1], {KA["ws"]}')
    if res[0] == 'in':
        e(f's_load_dwordx2 s[52:53], s[0:1], {res[1]}')
    if dst[0] == 'out':
        e(f's_load_dwordx2 s[54:55], s[0:1], {KA["out"]}')
    e('v_lshrrev_b32 v1, 6, v0')
    e('v_and_b32 v2, 63, v0')
    e(f'v_readfirstlane_b32 s{S_W}, v1')
    e(f's_and_b32 s{S_T0}, s2, 1')
    e(f's_lshl_b32 s{S_MT}, s{S_T0}, 4')
    e(f's_bfe_u32 s{S_T0}, s2, 0x10002')
    e(f's_lshl_b32 s{S_T0}, s{S_T0}, 3')
    e(f's_add_u32 s{S_MT}, s{S_MT}, s{S_T0}')
    e(f's_lshr_b32 s{S_T1}, s2, 3')
    e(f's_and_b32 s{S_T0}, s{S_T1}, 7')
    e(f's_add_u32 s{S_MT}, s{S_MT}, s{S_T0}')
    e(f's_lshr_b32 s{S_NT}, s{S_T1}, 3')
    e(f's_bfe_u32 s{S_T0}, s2, 0x10001')
    e(f's_lshl_b32 s{S_T0}, s{S_T0}, 2')
    e(f's_add_u32 s{S_NT}, s{S_NT}, s{S_T0}')
    e(f's_lshl_b32 s{S_LB}, s{S_W}, 15')
    e('v_lshrrev_b32 v3, 3, v2')
    e('v_and_b32 v4, 7, v2')
    e('v_lshrrev_b32 v5, 1, v3')
    if shape == 32:
        e('v_and_b32 v5, 1, v5'); e('v_lshlrev_b32 v5, 2, v5')
    else:
        e('v_and_b32 v5, 3, v5'); e('v_lshlrev_b32 v5, 1, v5')
    e('v_xor_b32 v4, v4, v5')
    e('v_lshlrev_b32 v3, 10, v3')
    e(f'v_lshl_add_u32 v{VWD}, v4, 4, v3')
    e(f's_lshl_b32 s{S_T0}, s{S_NT}, 7')
    e(f'v_add_u32 v{VWD}, s{S_T0}, v{VWD}')
    e(f'v_lshlrev_b32 v{VH}, 4, v2')
    e(f's_mul_i32 s{S_WO}, s{S_W}, {K//4*1024}')
    if shape == 32:
        nrb = 2; fr_per_blk = K // 16; per_slot = 2
    else:
        nrb = 4; fr_per_blk = K // 32; per_slot = 1
    e(f's_mul_i32 s{S_T0}, s{S_MT}, {nrb*fr_per_blk*1024}')
    e(f's_mul_i32 s{S_T1}, s{S_W}, {fr_per_blk//4*1024}')
    e(f's_add_u32 s{S_B}, s{S_T0}, s{S_T1}')
    for rb in range(1, nrb):
        e(f's_add_u32 s{S_B+rb}, s{S_B+rb-1}, {fr_per_blk*1024}')
    e('v_lshrrev_b32 v3, 4, v2')
    e('v_and_b32 v4, 15, v2')
    e('v_lshrrev_b32 v5, 2, v4')
    e('v_and_b32 v6, 3, v2')
    if shape == 32:
        e('v_lshrrev_b32 v7, 1, v3')
        e('v_and_b32 v8, 1, v3')
        e('v_lshl_add_u32 v7, v7, 2, v5')
        e('v_lshlrev_b32 v7, 7, v7')
        e('v_lshl_add_u32 v7, v8, 5, v7')
        e('v_lshl_add_u32 v7, v6, 3, v7')
        e(f'v_add_u32 v7, s{S_LB}, v7')
        e('v_lshrrev_b32 v8, 1, v5')
        for nb in range(2):
            e(f'v_xor_b32 v9, {nb}, v8')
            e(f'v_lshl_add_u32 v{VAD+nb}, v9, 6, v7')
    else:
        e('v_lshl_add_u32 v7, v3, 2, v5')
        e('v_lshrrev_b32 v8, 1, v7')
        e('v_and_b32 v8, 3, v8')
        e('v_lshlrev_b32 v7, 7, v7')
        e('v_lshl_add_u32 v7, v6, 3, v7')
        e(f'v_add_u32 v7, s{S_LB}, v7')
        for nt in range(4):
            e(f'v_xor_b32 v9, {nt}, v8')
            e(f'v_lshl_add_u32 v{VAD+nt}, v9, 5, v7')
    e('s_waitcnt lgkmcnt(0)')
    srd(L, SWT, 48, K * 1024)
    srd_off(L, SB, 50, b_off, b_bytes)
    if res[0] == 'in': srd(L, SR, 52, 2048 * 1024)
    else: srd_off(L, SR, 50, res[1], 2048 * 1024)
    srd_off(L, SM, 50, MOD_OFF + gmod_off, 1024)
    if dst[0] == 'out': srd(L, SD, 54, 2048 * 1024)
    else: srd_off(L, SD, 50, dst[1], 2048 * 1024)

    def issue(t):
        ops = []
        for i in range(4):
            ops.append((f's_add_u32 m0, s{S_LB}, {(t%8)*4096 + i*1024}', 2))
            ops.append((f's_add_u32 s{S_T0}, s{S_WO}, {(32*t + 8*i)*1024}', 2))
            ops.append((f'buffer_load_dwordx4 v{VWD}, s[{SWT}:{SWT+3}], s{S_T0} offen lds', 8, ('W', t)))
        for i in range(4):
            if shape == 32:
                ks, rb = i // 2, i % 2
                off = (2 * t + ks) * 1024
            else:
                rb = i; off = t * 1024
            ops.append((f's_add_u32 s{S_T1}, s{S_B+rb}, {off}', 2))
            ops.append((f'buffer_load_dwordx4 {a(BF(t,i),4)}, v{VH}, s[{SB}:{SB+3}], s{S_T1} offen', 8, ('B', t)))
        return ops
    def emit_ops(ops):
        for o in ops:
            e(o[0])
            if len(o) > 2: vq.issue(o[2])
    def a_reads(t):
        ops = []
        st = t % 2
        base = (t % 8) * 4096
        if shape == 32:
            for ks in range(2):
                for nb in range(2):
                    for aa in range(2):
                        ops.append((f'ds_read_b64_tr_b16 {a(AF(st, 2*ks+nb)+2*aa,2)}, v{VAD+nb} offset:{base + (16*ks+8*aa)*128}', 4))
        else:
            for nt in range(4):
                for aa in range(2):
                    ops.append((f'ds_read_b64_tr_b16 {a(AF(st, nt)+2*aa,2)}, v{VAD+nt} offset:{base + 16*aa*128}', 4))
        return ops
    def mfmas(t):
        st = t % 2
        m = []
        if shape == 32:
            for ks in range(2):
                for nb in range(2):
                    for rb in range(2):
                        acc = ACC + 16 * (2 * nb + rb)
                        c = '0' if (t == 0 and ks == 0) else v(acc, 16)
                        m.append((f'v_mfma_f32_32x32x16_bf16 {v(acc,16)}, {a(AF(st,2*ks+nb),4)}, {a(BF(t,2*ks+rb),4)}, {c}', 24))
        else:
            for nt in range(4):
                for rb in range(4):
                    acc = ACC + 4 * (4 * nt + rb)
                    c = '0' if t == 0 else v(acc, 4)
                    m.append((f'v_mfma_f32_16x16x32_bf16 {v(acc,4)}, {a(AF(st,nt),4)}, {a(BF(t,rb),4)}, {c}', 8))
        return m
    dstamp(L, KI, 1)
    for t in range(SPK[0]):
        emit_ops(issue(t))
    pend = []
    nxt = SPK[0]
    dstamp(L, KI, 2)
    e('v_lshrrev_b32 v16, 2, v0')
    e('v_and_b32 v17, 3, v0')
    e('v_lshlrev_b32 v18, 5, v17')
    e(f's_lshl_b32 s{S_T0}, s{S_NT}, 7')
    e(f'v_add_u32 v18, s{S_T0}, v18')
    e('v_lshl_add_u32 v19, v16, 10, v18')
    n = vq.wait_for(lambda x: x == ('W', 0))
    e(f's_waitcnt vmcnt({n})')
    dstamp(L, KI, 3)
    L += [x[0] for x in a_reads(0)]
    for t in range(NS):
        if t == NS // 2: dstamp(L, KI, 4)
        n = vq.wait_for(lambda x: x == ('B', t) or x == ('W', t + 1))
        if n is not None: e(f's_waitcnt vmcnt({n})')
        e('s_waitcnt lgkmcnt(0)')
        qs = []
        mf = mfmas(t)
        if t + 1 < NS:
            qs.append(dict(items=a_reads(t + 1), start=0, end=len(mf) * 5 // 8))
        while nxt < NS and nxt <= t + D:
            pend += issue(nxt); nxt += 1
        iss = []; cnt = 0
        while pend and cnt < SPK[1]:
            o = pend.pop(0); iss.append(o)
            if len(o) > 2: cnt += 1
        if iss:
            qs.append(dict(items=[(o[0], o[1]) for o in iss], start=0, end=len(mf) - 1))
        L += interleave(mf, qs)
        for o in iss:
            if len(o) > 2: vq.issue(o[2])
    dstamp(L, KI, 5)
    e(f's_lshl_b32 s{S_T1}, s{S_MT}, 16')
    if res[0] == 'wsf':
        e('v_lshrrev_b32 v20, 4, v16')
        e('v_lshlrev_b32 v20, 14, v20')
        e('v_lshrrev_b32 v21, 1, v17')
        e('v_lshl_add_u32 v20, v21, 10, v20')
        e('v_and_b32 v21, 1, v17')
        e('v_lshl_add_u32 v20, v21, 9, v20')
        e('v_and_b32 v21, 15, v16')
        e('v_lshl_add_u32 v20, v21, 4, v20')
        e(f's_lshl_b32 s{S_T0}, s{S_NT}, 11')
        e(f's_add_u32 s{S_T0}, s{S_T0}, s{S_T1}')
        e(f'buffer_load_dwordx4 v[124:127], v20, s[{SR}:{SR+3}], s{S_T0} offen')
        e(f'buffer_load_dwordx4 v[96:99], v20, s[{SR}:{SR+3}], s{S_T0} offen offset:256')
    else:
        e(f'buffer_load_dwordx4 v[100:103], v19, s[{SR}:{SR+3}], s{S_T1} offen')
        e(f'buffer_load_dwordx4 v[104:107], v19, s[{SR}:{SR+3}], s{S_T1} offen offset:16')
    e(f'buffer_load_dwordx4 v[108:111], v18, s[{SM}:{SM+3}], 0 offen')
    e(f'buffer_load_dwordx4 v[112:115], v18, s[{SM}:{SM+3}], 0 offen offset:16')
    e('s_barrier')
    RS = 272
    if shape == 32:
        e('v_and_b32 v3, 31, v2')
        e('v_lshrrev_b32 v4, 5, v2')
        e(f'v_mul_u32_u24 v3, {RS}, v3')
        e('v_lshl_add_u32 v3, v4, 4, v3')
    else:
        e('v_and_b32 v3, 15, v2')
        e('v_lshrrev_b32 v4, 4, v2')
        e(f'v_mul_u32_u24 v3, {RS}, v3')
        e('v_lshl_add_u32 v3, v4, 4, v3')
    e(f's_mul_i32 s{S_T0}, s{S_W}, {64*RS}')
    e(f'v_add_u32 v3, s{S_T0}, v3')
    e('s_nop 7')
    if shape == 32:
        for nb in range(2):
            for rb in range(2):
                for g in range(4):
                    acc = ACC + 16 * (2 * nb + rb) + 4 * g
                    e(f'ds_write_b128 v3, {v(acc,4)} offset:{32*rb*RS + (32*nb + 8*g)*4}')
    else:
        for nt in range(4):
            for rb in range(4):
                acc = ACC + 4 * (4 * nt + rb)
                e(f'ds_write_b128 v3, {v(acc,4)} offset:{16*rb*RS + 16*nt*4}')
    e('s_waitcnt lgkmcnt(0)')
    e('s_barrier')
    e(f'v_mul_u32_u24 v3, {RS}, v16')
    e('v_lshl_add_u32 v3, v17, 6, v3')
    for w in range(4):
        for q in range(4):
            e(f'ds_read_b128 v[{32+16*w+4*q}:{35+16*w+4*q}], v3 offset:{w*64*RS + 16*q}')
    e('s_waitcnt lgkmcnt(0)')
    for i in range(16):
        e(f'v_add_f32 v{32+i}, v{32+i}, v{48+i}')
        e(f'v_add_f32 v{64+i}, v{64+i}, v{80+i}')
    for i in range(16):
        e(f'v_add_f32 v{32+i}, v{32+i}, v{64+i}')
    e('s_waitcnt vmcnt(0)')
    if res[0] == 'wsf':
        for d, srcr in ((100, 124), (101, 125), (102, 96), (103, 97), (104, 126), (105, 127), (106, 98), (107, 99)):
            e(f'v_mov_b32 v{d}, v{srcr}')
    for i in range(8):
        x0, x1 = 32 + 2 * i, 33 + 2 * i
        rnd_pair(e, x0, x1, x0, x1, 20)
        e(f'v_lshlrev_b32 v21, 16, v{108+i}')
        e(f'v_and_b32 v22, 0xffff0000, v{108+i}')
        e(f'v_mul_f32 v{x0}, v{x0}, v21')
        e(f'v_mul_f32 v{x1}, v{x1}, v22')
        rnd_pair(e, x0, x1, x0, x1, 20)
        e(f'v_lshlrev_b32 v21, 16, v{100+i}')
        e(f'v_and_b32 v22, 0xffff0000, v{100+i}')
        e(f'v_add_f32 v{x0}, v{x0}, v21')
        e(f'v_add_f32 v{x1}, v{x1}, v22')
        e(f'v_cvt_pk_bf16_f32 v{116+i}, v{x0}, v{x1}')
    e(f'buffer_store_dwordx4 v[116:119], v19, s[{SD}:{SD+3}], s{S_T1} offen')
    e(f'buffer_store_dwordx4 v[120:123], v19, s[{SD}:{SD+3}], s{S_T1} offen offset:16')
    dstamp(L, KI, 6)
    dstamp_store(L, KI, 7)
    prof_end(L, 3 if shape == 32 else 6, 1)
    e(f'{name}_done:')
    e('s_endpgm')
    L = hoist(L)
    for h in check_hazards(L, name): print('HAZARD', h)
    return L, kernel_desc(name, 128 + 160, 102, 128), f'; @launch kernel={name} grid=(256,1,1) block=(256,1,1) lds=131328'


def gen_ffn1(name='ffn1_kernel'):
    L = kernel_header(name)
    e = L.append
    vq = Q(63)
    SG, SU, SB, SD = 8, 12, 16, 20
    S_W, S_MT, S_FT, S_T0, S_T1, S_WO, S_LW = 28, 29, 30, 31, 32, 33, 34
    S_SEL = 36
    S_B0, S_B1 = 40, 41
    VD = 10
    VH = 17
    VA = 18
    ACC = 32
    def acc(mat, ft, rb): return ACC + 4 * ((mat * 7 + ft) * 2 + rb)
    def BF(T, rb): return 8 * T + 4 * rb
    def AF(st, i): return 128 + 56 * st + 4 * i
    NCH = 8; RING = 4; CH = 28672
    prof_begin(L)
    dstamp(L, 5, 0)
    claim(L, name, RING*CH, vb=28)
    e(f's_load_dwordx4 s[48:51], s[0:1], {KA["wg"]}')
    e(f's_load_dwordx2 s[52:53], s[0:1], {KA["ws"]}')
    e('v_lshrrev_b32 v1, 6, v0')
    e('v_and_b32 v2, 63, v0')
    e(f'v_readfirstlane_b32 s{S_W}, v1')
    e(f's_and_b32 s{S_T0}, s2, 1')
    e(f's_lshr_b32 s{S_T1}, s2, 3')
    e(f's_lshl_b32 s{S_MT}, s{S_T0}, 3')
    e(f's_and_b32 s{S_T0}, s{S_T1}, 7')
    e(f's_add_u32 s{S_MT}, s{S_MT}, s{S_T0}')
    e(f's_lshr_b32 s{S_FT}, s{S_T1}, 3')
    e(f's_bfe_u32 s{S_T0}, s2, 0x20001')
    e(f's_lshl_b32 s{S_T0}, s{S_T0}, 2')
    e(f's_add_u32 s{S_FT}, s{S_FT}, s{S_T0}')
    e(f's_mul_i32 s{S_T0}, s{S_FT}, 224')
    e(f's_lshr_b32 s{S_T1}, s{S_W}, 1')
    e(f's_mul_i32 s{S_WO}, s{S_T1}, {32*3584}')
    e(f's_add_u32 s{S_T0}, s{S_T0}, s{S_WO}')
    e('s_mov_b32 s42, 0x12492493')
    e('s_movk_i32 s43, 3584')
    for i in range(7):
        e(f'v_add_u32 v3, {64*i}, v2')
        e('v_mul_hi_u32 v4, v3, s42')
        e('v_mul_u32_u24 v5, 14, v4')
        e('v_sub_u32 v5, v3, v5')
        e('v_mul_lo_u32 v4, v4, s43')
        e(f'v_lshl_add_u32 v{VD+i}, v5, 4, v4')
        e(f'v_add_u32 v{VD+i}, s{S_T0}, v{VD+i}')
        if i % 4:
            e(f'v_subrev_u32 v{VD+i}, {(i%4)*1024}, v{VD+i}')
    e(f's_and_b32 s{S_T0}, s{S_W}, 1')
    e(f's_mul_i32 s{S_LW}, s{S_T0}, 14336')
    e(f's_mul_i32 s{S_T1}, s{S_T1}, 7168')
    e(f's_add_u32 s{S_LW}, s{S_LW}, s{S_T1}')
    e(f'v_lshlrev_b32 v{VH}, 4, v2')
    e('v_lshrrev_b32 v3, 4, v2')
    e('v_and_b32 v4, 15, v2')
    e('v_lshrrev_b32 v4, 2, v4')
    e('v_and_b32 v5, 3, v2')
    e('v_lshrrev_b32 v6, 1, v3')
    e('v_lshl_add_u32 v6, v6, 4, v4')
    e('v_and_b32 v7, 1, v3')
    e('v_lshl_add_u32 v6, v7, 2, v6')
    e('v_mul_u32_u24 v6, 224, v6')
    e(f'v_lshl_add_u32 v{VA}, v5, 3, v6')
    e(f'v_add_u32 v{VA+1}, 0x{2*CH:x}, v{VA}')
    e(f's_lshl_b32 s{S_T0}, s{S_MT}, 3')
    e(f's_lshl_b32 s{S_T1}, s{S_W}, 1')
    e(f's_add_u32 s{S_T0}, s{S_T0}, s{S_T1}')
    e(f's_lshl_b32 s{S_B0}, s{S_T0}, 14')
    e(f's_add_u32 s{S_B1}, s{S_B0}, 16384')
    e('s_waitcnt lgkmcnt(0)')
    srd(L, SG, 48, 512 * 3584)
    srd(L, SU, 50, 512 * 3584)
    srd_off(L, SB, 52, H2_OFF, 2048 * 1024)
    srd_off(L, SD, 52, ACT_OFF, 2048 * 3584)
    e(f's_and_b32 s{S_T0}, s{S_W}, 1')
    e(f's_cmp_eq_u32 s{S_T0}, 0')
    e(f's_cselect_b32 s{S_SEL}, s{SG}, s{SU}')
    e(f's_cselect_b32 s{S_SEL+1}, s{SG+1}, s{SU+1}')
    e(f's_mov_b32 s{S_SEL+2}, {512*3584}')
    e(f's_mov_b32 s{S_SEL+3}, 0x00020000')
    def issue_W(c):
        ops = []
        for i in range(7):
            if i % 4 == 0:
                ops.append((f's_add_u32 m0, s{S_LW}, {(c%RING)*CH + i*1024}', 2))
                if i == 0:
                    ops.append((f's_mov_b32 s56, {64*c*3584}', 2))
                else:
                    ops.append(('s_nop 0', 2))
            ops.append((f'buffer_load_dwordx4 v{VD+i}, s[{S_SEL}:{S_SEL+3}], s56 offen offset:{(i%4)*1024} lds', 8, ('W', c)))
        return ops
    def issue_B(c):
        ops = []
        for rb in range(2):
            if c % 2 == 0:
                ops.append((f's_add_u32 s{57+rb}, s{S_B0+rb}, {2*c*1024}', 2))
        for ks in range(2):
            T = 2 * c + ks
            for rb in range(2):
                ops.append((f'buffer_load_dwordx4 {a(BF(T,rb),4)}, v{VH}, s[{SB}:{SB+3}], s{57+rb} offen offset:{(T%4)*1024}', 8, ('B', c)))
        return ops
    def emit_ops(ops):
        for o in ops:
            e(o[0])
            if len(o) > 2: vq.issue(o[2])
    def a_reads(T):
        c = T // 2; ks = T % 2; st = T % 2
        slot = c % RING
        base = slot * CH; va = VA
        if slot >= 2: base -= 2 * CH; va = VA + 1
        ops = []
        for mat in range(2):
            for ft in range(7):
                for aa in range(2):
                    off = base + mat * 14336 + ks * 7168 + aa * 8 * 224 + ft * 32
                    ops.append((f'ds_read_b64_tr_b16 {a(AF(st, mat*7+ft)+2*aa,2)}, v{va} offset:{off}', 4))
        return ops
    def mfmas(T):
        st = T % 2
        m = []
        for ft in range(7):
            for mat in range(2):
                for rb in range(2):
                    ac = acc(mat, ft, rb)
                    cc = '0' if T == 0 else v(ac, 4)
                    m.append((f'v_mfma_f32_16x16x32_bf16 {v(ac,4)}, {a(AF(st,mat*7+ft),4)}, {a(BF(T,rb),4)}, {cc}', 8))
        return m
    dstamp(L, 5, 1)
    emit_ops(issue_W(0)); emit_ops(issue_B(0)); emit_ops(issue_W(1))
    dstamp(L, 5, 2)
    n = vq.wait_for(lambda x: x == ('W', 0))
    e(f's_waitcnt vmcnt({n})')
    e('s_barrier')
    dstamp(L, 5, 3)
    L += [x[0] for x in a_reads(0)]
    pend = issue_B(1) + issue_W(2) + issue_B(2) + issue_W(3) + issue_B(3)
    for T in range(16):
        if T == 8: dstamp(L, 5, 4)
        c = T // 2
        if T % 2 == 0:
            n = vq.wait_for(lambda x: x == ('B', c))
            if n is not None: e(f's_waitcnt vmcnt({n})')
        e('s_waitcnt lgkmcnt(0)')
        if T % 2 == 1 and c + 1 < NCH:
            n = vq.wait_for(lambda x: x == ('W', c + 1))
            if n is not None: e(f's_waitcnt vmcnt({n})')
            e('s_barrier')
            if c + 4 < NCH:
                pend += issue_W(c + 4) + issue_B(c + 4)
        take = []; cnt = 0
        lim = FFN_LIM[0] if T < 4 else FFN_LIM[1]
        while pend and cnt < lim:
            o = pend.pop(0); take.append(o)
            if len(o) > 2: cnt += 1
        mf = mfmas(T)
        qs = []
        if T + 1 < 16:
            qs.append(dict(items=a_reads(T + 1), start=0, end=22))
        if take:
            qs.append(dict(items=[(o[0], o[1]) for o in take], start=0, end=27))
        L += interleave(mf, qs)
        for o in take:
            if len(o) > 2: vq.issue(o[2])
    assert not pend
    dstamp(L, 5, 5)
    e(f's_load_dwordx2 s[54:55], s[0:1], {KA["wd"]}')
    e('v_lshrrev_b32 v3, 5, v2')
    e('v_and_b32 v4, 31, v2')
    e('v_lshlrev_b32 v4, 4, v4')
    e('v_lshl_add_u32 v3, v3, 10, v4')
    e(f's_lshr_b32 s{S_T0}, s2, 3')
    e(f's_mul_i32 s{S_T0}, s{S_T0}, 56')
    e(f's_mul_i32 s{S_T1}, s{S_W}, 14')
    e(f's_add_u32 s{S_T0}, s{S_T0}, s{S_T1}')
    e(f's_lshl_b32 s{S_T0}, s{S_T0}, 10')
    e(f's_bfe_u32 s{S_T1}, s2, 0x10001')
    e(f's_lshl_b32 s{S_T1}, s{S_T1}, 9')
    e(f's_add_u32 s{S_T0}, s{S_T0}, s{S_T1}')
    e('s_waitcnt lgkmcnt(0)')
    srd(L, 60, 54, 1792 * 1024)
    for i in range(7):
        e(f'buffer_load_dwordx4 v[4:7], v3, s[60:63], s{S_T0} offen')
        e(f's_add_u32 s{S_T0}, s{S_T0}, 2048')
    if CPF3: code_prefetch(L, 'ffn1', 'down_kernel', 'code_end', 48, 8, 4, 1, 4)
    e('s_nop 7')
    C1 = 0.7978845608028654; C2 = 0.044715
    import struct
    f2u = lambda x: struct.unpack('<I', struct.pack('<f', x))[0]
    e(f's_mov_b32 s44, 0x{f2u(-2*C1*1.4426950408889634):08x}')
    e(f's_mov_b32 s45, 0x{f2u(-2*C1*C2*1.4426950408889634):08x}')
    e(f's_lshl_b32 s{S_T0}, s{S_MT}, 3')
    e(f's_lshl_b32 s{S_T1}, s{S_W}, 1')
    e(f's_add_u32 s{S_T0}, s{S_T0}, s{S_T1}')
    e(f's_mul_i32 s{S_B0}, s{S_T0}, {56*1024}')
    e(f's_mul_i32 s{S_T1}, s{S_FT}, {7*512}')
    e(f's_and_b32 s46, s{S_FT}, 1')
    e(f's_lshl_b32 s47, s46, 9')
    e(f's_sub_u32 s{S_T1}, s{S_T1}, s47')
    e(f's_add_u32 s{S_B0}, s{S_B0}, s{S_T1}')
    e(f's_add_u32 s{S_B1}, s{S_B0}, {56*1024}')
    PK = 150
    e('v_mov_b32 v199, s44')
    for ft in range(7):
        for rb in range(2):
            g0 = acc(0, ft, rb); u0 = acc(1, ft, rb)
            t = 200 + 8 * ((ft * 2 + rb) % 2)
            for k in range(4):
                e(f'v_mul_f32 v{t+k}, v{g0+k}, v{g0+k}')
            for k in range(4):
                e(f'v_fma_f32 v{t+k}, s45, v{t+k}, v199')
            for k in range(4):
                e(f'v_mul_f32 v{t+k}, v{t+k}, v{g0+k}')
            for k in range(4):
                e(f'v_exp_f32 v{t+k}, v{t+k}')
            for k in range(4):
                e(f'v_mul_f32 v{g0+k}, v{g0+k}, v{u0+k}')
            for k in range(4):
                e(f'v_add_f32 v{t+k}, 1.0, v{t+k}')
            for k in range(4):
                e(f'v_rcp_f32 v{t+k}, v{t+k}')
            e('s_nop 0')
            for k in range(4):
                e(f'v_mul_f32 v{g0+k}, v{g0+k}, v{t+k}')
            r = PK + 2 * (rb * 7 + ft)
            e(f'v_cvt_pk_bf16_f32 v{r}, v{g0}, v{g0+1}')
            e(f'v_cvt_pk_bf16_f32 v{r+1}, v{g0+2}, v{g0+3}')
    dstamp(L, 5, 6)
    e('s_cmp_eq_u32 s46, 0')
    e(f's_cbranch_scc0 {name}_odd')
    for par in range(2):
        if par == 1:
            e(f'{name}_odd:')
        for rb in range(2):
            ft = 0
            while ft < 7:
                q = ft + par
                off = (q >> 1) * 1024 + (q & 1) * 8
                r = PK + 2 * (rb * 7 + ft)
                if q % 2 == 0 and ft + 1 < 7:
                    e(f'buffer_store_dwordx4 {v(r,4)}, v{VH}, s[{SD}:{SD+3}], s{S_B0+rb} offen offset:{off}{FSC}')
                    ft += 2
                else:
                    e(f'buffer_store_dwordx2 {v(r,2)}, v{VH}, s[{SD}:{SD+3}], s{S_B0+rb} offen offset:{off}{FSC}')
                    ft += 1
        if par == 0:
            e(f's_branch {name}_fin')
    e(f'{name}_fin:')
    dstamp_store(L, 5, 7)
    prof_end(L, 5, 1)
    e(f'{name}_done:')
    e('s_endpgm')
    L = hoist(L)
    for h in check_hazards(L, name): print('HAZARD', h)
    return L, kernel_desc(name, 256 + 240, 102, 256), f'; @launch kernel={name} grid=(256,1,1) block=(256,1,1) lds={RING*CH+256}'
```

```python
from asmlib import *
import asmlib
from k_small import *

PFMODE = 'wq'
CPF_MODE = 'start'
def gen_pre3(name='pre_kernel'):
    L = kernel_header(name)
    e = L.append
    prof_begin(L)
    asmlib.STAMPB = 76
    dstamp(L, 1, 0)
    SX, SM, SH, SWQ, SKK, SVV, SCV, SWM = 8, 12, 16, 20, 24, 40, 52, 56
    claim(L, name, 16384, vb=172)
    if CPF_MODE == 'start': code_prefetch(L, 'pre', 'pre_kernel', 'code_end', 60, 168, 172, 1, 8)
    e(f's_load_dwordx2 s[4:5], s[0:1], {KA["x"]}')
    e(f's_load_dwordx2 s[66:67], s[0:1], {KA["ws"]}')
    e(f's_load_dwordx4 s[68:71], s[0:1], {KA["c"]}')
    e(f's_load_dwordx4 s[44:47], s[0:1], {KA["k"]}')
    e(f's_load_dwordx2 s[48:49], s[0:1], {KA["wq"]}')
    e('v_lshrrev_b32 v2, 6, v0')
    e('v_and_b32 v1, 63, v0')
    e('s_lshr_b32 s31, s2, 3')
    e('v_readfirstlane_b32 s36, v2')
    e('s_and_b32 s28, s2, 1')
    e('s_lshl_b32 s28, s28, 3')
    e('s_and_b32 s30, s31, 7')
    e('s_add_u32 s28, s28, s30')
    e('s_bfe_u32 s29, s2, 0x20001')
    e('s_lshl_b32 s30, s29, 2')
    e('s_lshr_b32 s37, s31, 3')
    e('s_add_u32 s37, s37, s30')
    e('v_and_b32 v3, 3, v0')
    e('v_lshrrev_b32 v4, 2, v0')
    e('s_movk_i32 s3, 6144')
    e('v_mul_lo_u32 v5, v4, s3')
    e('v_lshl_add_u32 v5, v3, 4, v5')
    e('v_lshlrev_b32 v6, 1, v4')
    e('v_and_b32 v7, 7, v1')
    e('v_lshrrev_b32 v8, 3, v1')
    e('v_lshl_add_u32 v9, v2, 4, v8')
    e('v_lshlrev_b32 v10, 10, v9')
    e('v_lshl_add_u32 v10, v7, 4, v10')
    e('s_lshl_b32 s30, s28, 17')
    e('s_add_u32 s32, s30, 8192')
    e('s_lshl_b32 s72, s37, 6')
    for i in range(1, 4):
        e(f's_add_u32 s{72+i}, s{71+i}, {128*6144}')
    e('s_waitcnt lgkmcnt(0)')
    srd(L, SX, 4, 2048 * 1024)
    srd(L, SCV, 68, 1024)
    srd(L, SWM, 70, 512 * 6144)
    srd_off(L, SM, 66, MOD_OFF, 6144)
    srd_off(L, SH, 66, H1_OFF, 2048 * 1024)
    dstamp(L, 1, 1)
    for i in range(4):
        e(f'buffer_load_ushort v{12+i}, v6, s[{SCV}:{SCV+3}], 0 offen offset:{256*i}')
    for sl in range(2):
        for i in range(4):
            r = 16 + 16 * sl + 4 * i
            e(f'buffer_load_dwordx4 v[{r}:{r+3}], v5, s[{SWM}:{SWM+3}], s{72+i} offen offset:{1024*sl}')
    for g in range(2):
        for sg in range(8):
            r = 64 + 32 * g + 4 * sg
            e(f'buffer_load_dwordx4 v[{r}:{r+3}], v10, s[{SX}:{SX+3}], s{30 if g == 0 else 32} offen offset:{128*sg}')
    e('s_and_b32 s33, s2, 7')
    e('s_lshl_b32 s33, s33, 5')
    e('s_add_u32 s33, s33, s31')
    e('s_lshl_b32 s38, s33, 4')
    e('s_add_u32 s38, s38, 2048')
    e('v_mul_lo_u32 v11, v0, s3')
    e('v_lshlrev_b32 v52, 1, v0')
    e(f'buffer_load_ushort v53, v52, s[{SCV}:{SCV+3}], 0 offen')
    e(f'buffer_load_dwordx4 v[48:51], v11, s[{SWM}:{SWM+3}], s38 offen')
    srd(L, SWQ, 48, 512 * 8192 if PFMODE in ('all', 'wq') else 0)
    srd(L, SKK, 44, (16 << 20) if PFMODE == 'all' else 0)
    srd(L, SVV, 46, (16 << 20) if PFMODE == 'all' else 0)
    e('v_lshlrev_b32 v170, 4, v1')
    e('s_lshl_b32 s34, s31, 4')
    e('s_lshl_b32 s35, s36, 1')
    e('s_add_u32 s34, s34, s35')
    e('s_lshl_b32 s34, s34, 13')
    e('s_lshl_b32 s35, s29, 11')
    e('s_add_u32 s34, s34, s35')
    for r in range(2):
        for hf in range(2):
            e(f'buffer_load_dwordx4 v[172:175], v170, s[{SWQ}:{SWQ+3}], s34 offen offset:{hf*1024}')
        e('s_add_u32 s34, s34, 8192')
    e('s_lshl_b32 s34, s29, 3')
    e('s_lshr_b32 s35, s31, 2')
    e('s_add_u32 s34, s34, s35')
    e('s_lshl_b32 s34, s34, 19')
    e('s_and_b32 s35, s31, 3')
    e('s_lshl_b32 s35, s35, 3')
    e('s_add_u32 s35, s35, s36')
    e('s_lshl_b32 s35, s35, 10')
    e('s_add_u32 s34, s34, s35')
    for sr in (SKK, SVV):
        e(f'buffer_load_dwordx4 v[172:175], v170, s[{sr}:{sr+3}], s34 offen')
    dstamp(L, 1, 2)
    e('s_waitcnt vmcnt(32)')
    for i in range(4):
        e(f'v_lshlrev_b32 v{12+i}, 16, v{12+i}')
    for i in range(4):
        e(f'v_mul_f32 v{128+i}, 0x{NLOG2E:08x}, v{12+i}')
    for i in range(4):
        e(f'v_exp_f32 v{128+i}, v{128+i}')
    for i in range(4):
        e(f'v_add_f32 v{128+i}, 1.0, v{128+i}')
    for i in range(4):
        e(f'v_rcp_f32 v{128+i}, v{128+i}')
    for i in range(4):
        e(f'v_mul_f32 v{128+i}, v{12+i}, v{128+i}')
    for i in range(4):
        e(f'v_cvt_pk_bf16_f32 v{128+i}, v{128+i}, v{128+i}')
    for i in range(4):
        e(f'v_lshlrev_b32 v{128+i}, 16, v{128+i}')
    def slab(base, accb):
        for i in range(4):
            for j in range(4):
                w = base + 4 * i + j
                e(f'v_lshlrev_b32 v132, 16, v{w}')
                e(f'v_and_b32 v133, 0xffff0000, v{w}')
                if i == 0:
                    e(f'v_mul_f32 v{accb+2*j}, v132, v{128+i}')
                    e(f'v_mul_f32 v{accb+2*j+1}, v133, v{128+i}')
                else:
                    e(f'v_fmac_f32 v{accb+2*j}, v132, v{128+i}')
                    e(f'v_fmac_f32 v{accb+2*j+1}, v133, v{128+i}')
        e('s_nop 1')
        for j in range(8):
            e(f'v_add_f32_dpp v{134+j}, v{accb+j}, v{accb+j} row_ror:4 row_mask:0xf bank_mask:0xf')
        e('s_nop 1')
        for j in range(8):
            e(f'v_add_f32_dpp v{accb+j}, v{134+j}, v{134+j} row_ror:8 row_mask:0xf bank_mask:0xf')
    e('v_lshrrev_b32 v142, 4, v0')
    e('v_mul_u32_u24 v142, 384, v142')
    e('v_lshl_add_u32 v142, v3, 5, v142')
    e('s_waitcnt vmcnt(24)')
    dstamp(L, 1, 3)
    slab(16, 144); slab(32, 152)
    e('ds_write_b128 v142, v[144:147] offset:2048')
    e('ds_write_b128 v142, v[148:151] offset:2064')
    e('ds_write_b128 v142, v[152:155] offset:2176')
    e('ds_write_b128 v142, v[156:159] offset:2192')
    e('v_mov_b32 v143, 0x3f803f80')
    e('s_waitcnt vmcnt(8)')
    dstamp(L, 1, 4)
    for g in range(2):
        a0, a1 = 160 + 2 * g, 161 + 2 * g
        e(f'v_mov_b32 v{a0}, 0')
        e(f'v_mov_b32 v{a1}, 0')
        for q in range(32):
            r = 64 + 32 * g + q
            e(f'v_dot2c_f32_bf16 v{a0}, v{r}, v143')
            e(f'v_dot2c_f32_bf16 v{a1}, v{r}, v{r}')
    e('s_nop 3')
    for k in range(4):
        e(f'v_add_f32_dpp v{164+k}, v{160+k}, v{160+k} quad_perm:[1,0,3,2] row_mask:0xf bank_mask:0xf')
    e('s_nop 1')
    for k in range(4):
        e(f'v_add_f32_dpp v{160+k}, v{164+k}, v{164+k} quad_perm:[2,3,0,1] row_mask:0xf bank_mask:0xf')
    e('s_nop 1')
    for k in range(4):
        e(f'v_add_f32_dpp v{164+k}, v{160+k}, v{160+k} row_half_mirror row_mask:0xf bank_mask:0xf')
    for g in range(2):
        sm, sq = 164 + 2 * g, 165 + 2 * g
        e(f'v_mul_f32 v{sm}, 0x3b000000, v{sm}')
        e(f'v_mul_f32 v{sq}, 0x3b000000, v{sq}')
        e(f'v_fma_f32 v{sq}, -v{sm}, v{sm}, v{sq}')
        e(f'v_max_f32 v{sq}, 0, v{sq}')
        rnd_pair(e, sm, sq, sm, sq, 168)
        e(f'v_add_f32 v{sq}, 0x3727c5ac, v{sq}')
        e(f'v_cvt_pk_bf16_f32 v{sq}, v{sq}, v{sq}')
        e(f'v_lshlrev_b32 v{sq}, 16, v{sq}')
        e(f'v_sqrt_f32 v{sq}, v{sq}')
        e('s_nop 0')
        e(f'v_cvt_pk_bf16_f32 v{sq}, v{sq}, v{sq}')
        e(f'v_lshlrev_b32 v{sq}, 16, v{sq}')
        e(f'v_rcp_f32 v{sq}, v{sq}')
    e('v_lshlrev_b32 v169, 3, v9')
    e('s_nop 0')
    e('ds_write_b64 v169, v[164:165]')
    e('ds_write_b64 v169, v[166:167] offset:64')
    e('s_waitcnt vmcnt(6)')
    e('v_lshlrev_b32 v53, 16, v53')
    e(f'v_mul_f32 v54, 0x{NLOG2E:08x}, v53')
    e('v_exp_f32 v54, v54')
    e('s_nop 0')
    e('v_add_f32 v54, 1.0, v54')
    e('v_rcp_f32 v54, v54')
    e('s_nop 0')
    e('v_mul_f32 v54, v53, v54')
    e('v_cvt_pk_bf16_f32 v54, v54, v54')
    e('v_lshlrev_b32 v54, 16, v54')
    for j in range(4):
        e(f'v_lshlrev_b32 v132, 16, v{48+j}')
        e(f'v_and_b32 v133, 0xffff0000, v{48+j}')
        e(f'v_mul_f32 v{144+2*j}, v132, v54')
        e(f'v_mul_f32 v{145+2*j}, v133, v54')
    for (src, dst, rr) in ((144, 134, 1), (134, 144, 2), (144, 134, 4), (134, 144, 8)):
        e('s_nop 1')
        for j in range(8):
            e(f'v_add_f32_dpp v{dst+j}, v{src+j}, v{src+j} row_ror:{rr} row_mask:0xf bank_mask:0xf')
    e('v_lshrrev_b32 v55, 4, v0')
    e('v_mul_u32_u24 v55, 384, v55')
    e('ds_write_b128 v55, v[144:147] offset:2304')
    e('ds_write_b128 v55, v[148:151] offset:2320')
    e('v_and_b32 v12, 31, v1')
    e('v_lshrrev_b32 v13, 5, v1')
    e('v_lshrrev_b32 v14, 1, v2')
    e('v_lshl_add_u32 v14, v14, 5, v12')
    e('v_and_b32 v15, 1, v2')
    e('v_lshlrev_b32 v16, 5, v15')
    e('v_lshl_add_u32 v16, v13, 4, v16')
    e('v_lshl_add_u32 v17, v14, 10, v16')
    e('s_add_u32 s33, s30, s72')
    e(f'buffer_load_dwordx4 v[20:23], v17, s[{SX}:{SX+3}], s33 offen')
    e('s_waitcnt lgkmcnt(0)')
    e('s_barrier')
    dstamp(L, 1, 5)
    e('v_and_b32 v24, 127, v0')
    e('v_min_u32 v24, 71, v24')
    e('v_lshrrev_b32 v25, 7, v0')
    e('v_mul_u32_u24 v26, 3072, v25')
    e('v_lshl_add_u32 v26, v24, 2, v26')
    for p in range(8):
        e(f'ds_read_b32 v{28+p}, v26 offset:{2048 + 384*p}')
    e('v_lshlrev_b32 v27, 3, v14')
    e('ds_read_b64 v[40:41], v27')
    e('s_waitcnt lgkmcnt(1)')
    for p in range(1, 8):
        e(f'v_add_f32 v28, v28, v{28+p}')
    e('v_lshlrev_b32 v26, 9, v25')
    e('v_lshl_add_u32 v26, v24, 2, v26')
    e('ds_write_b32 v26, v28 offset:14336')
    e('s_waitcnt lgkmcnt(0)')
    e('s_barrier')
    e('v_lshlrev_b32 v26, 1, v16')
    for sl in range(2):
        for pt in range(4):
            for hf in range(2):
                r = 64 + 32 * sl + 8 * pt + 4 * hf
                e(f'ds_read_b128 v[{r}:{r+3}], v26 offset:{14336 + 512*pt + 128*sl + 16*hf}')
    e('s_cmp_lg_u32 s36, 0')
    e(f's_cbranch_scc1 {name}_no3c')
    e('v_and_b32 v42, 3, v0')
    e('v_lshlrev_b32 v43, 3, v42')
    for pt in range(4):
        e(f'ds_read_b64 v[{44+2*pt}:{45+2*pt}], v43 offset:{14336 + 512*pt + 256}')
    e('s_waitcnt lgkmcnt(0)')
    for pt in range(1, 4):
        e(f'v_add_f32 v44, v44, v{44+2*pt}')
        e(f'v_add_f32 v45, v45, v{45+2*pt}')
    e('v_cvt_pk_bf16_f32 v44, v44, v45')
    e('v_lshlrev_b32 v43, 2, v42')
    e(f'buffer_store_dword v44, v43, s[{SM}:{SM+3}], s38 offen')
    e(f'{name}_no3c:')
    e('s_waitcnt lgkmcnt(0)')
    for sl in range(2):
        b = 64 + 32 * sl
        for k in range(8):
            e(f'v_add_f32 v{b+k}, v{b+k}, v{b+8+k}')
            e(f'v_add_f32 v{b+16+k}, v{b+16+k}, v{b+24+k}')
        for k in range(8):
            e(f'v_add_f32 v{b+k}, v{b+k}, v{b+16+k}')
    for k in range(0, 8, 2):
        rnd_pair(e, 64 + k, 65 + k, 64 + k, 65 + k, 50)
        rnd_pair(e, 96 + k, 97 + k, 96 + k, 97 + k, 50)
        e(f'v_add_f32 v{96+k}, 1.0, v{96+k}')
        e(f'v_add_f32 v{97+k}, 1.0, v{97+k}')
        rnd_pair(e, 96 + k, 97 + k, 96 + k, 97 + k, 50)
    e('s_waitcnt vmcnt(0)' if False else 's_waitcnt vmcnt(1)')
    e('s_waitcnt vmcnt(0)')
    for pr in range(4):
        x0, x1 = 52 + 2 * pr, 53 + 2 * pr
        e(f'v_lshlrev_b32 v{x0}, 16, v{20+pr}')
        e(f'v_and_b32 v{x1}, 0xffff0000, v{20+pr}')
        e(f'v_sub_f32 v{x0}, v{x0}, v40')
        e(f'v_sub_f32 v{x1}, v{x1}, v40')
        rnd_pair(e, x0, x1, x0, x1, 50)
        e(f'v_mul_f32 v{x0}, v{x0}, v41')
        e(f'v_mul_f32 v{x1}, v{x1}, v41')
        rnd_pair(e, x0, x1, x0, x1, 50)
        e(f'v_mul_f32 v{x0}, v{x0}, v{96+2*pr}')
        e(f'v_mul_f32 v{x1}, v{x1}, v{97+2*pr}')
        rnd_pair(e, x0, x1, x0, x1, 50)
        e(f'v_add_f32 v{x0}, v{x0}, v{64+2*pr}')
        e(f'v_add_f32 v{x1}, v{x1}, v{65+2*pr}')
        e(f'v_cvt_pk_bf16_f32 v{60+pr}, v{x0}, v{x1}')
    e('v_lshrrev_b32 v24, 1, v2')
    e('v_lshlrev_b32 v24, 15, v24')
    e('v_lshl_add_u32 v24, v15, 10, v24')
    e('v_lshl_add_u32 v24, v1, 4, v24')
    e('s_lshl_b32 s34, s28, 17')
    e('s_lshl_b32 s35, s37, 11')
    e('s_add_u32 s34, s34, s35')
    e(f'buffer_store_dwordx4 v[60:63], v24, s[{SH}:{SH+3}], s34 offen')
    if CPF_MODE == 'end': code_prefetch(L, 'pre', 'attn_kernel', 'code_end', 40, 100, 104, 1, 8)
    dstamp(L, 1, 6)
    dstamp_store(L, 1, 7)
    asmlib.STAMPB = 64
    return L, e, locals()

def gen_pre3_full(name='pre_kernel', pf_early=True):
    L, e, lc = gen_pre3(name)
    prof_end(L, 1, 1)
    e(f'{name}_done:')
    e('s_endpgm')
    L = hoist(L)
    for h in check_hazards(L, name): print('HAZARD', h)
    return L, kernel_desc(name, 176, 102, 176), f'; @launch kernel={name} grid=(256,1,1) block=(512,1,1) lds=16640'
```

```python
from asmlib import *
import asmlib
from k_small import *
from k_attn import interleave

PART_OFF = 40 << 20
X1F_OFF = X1_OFF
PF_W = False
NSET = 2
WSC = ''
LSC = ''
BF16P = True

def gen_wo2(name='wo_kernel'):
    KI = 3
    NST = 16
    L = kernel_header(name)
    e = L.append
    vq = Q(63)
    SWT, SB, SD = 8, 12, 16
    S_W, S_MT, S_NT, S_KS, S_T0, S_T1, S_WO, S_BO, S_LW, S_LB = 28, 29, 30, 31, 32, 33, 34, 35, 36, 37
    S_D = 38
    VWD, VH, VAD, VBD = 10, 11, 12, 14
    ACC = 32
    def AF(st, ks, nb): return 16 * st + 8 * 0 + 4 * nb + 8 * 0
    def AFR(st, nb): return 16 * st + 4 * nb
    def BFR(st, rb): return 16 * st + 8 + 4 * rb
    prof_begin(L)
    dstamp(L, KI, 0)
    claim(L, name, 131072, vb=28)
    e(f's_load_dwordx2 s[48:49], s[0:1], {KA["wo"]}')
    e(f's_load_dwordx2 s[50:51], s[0:1], {KA["ws"]}')
    e(f's_load_dwordx4 s[52:55], s[0:1], {KA["wg"]}')
    e('v_lshrrev_b32 v1, 6, v0')
    e('v_and_b32 v2, 63, v0')
    e(f'v_readfirstlane_b32 s{S_W}, v1')
    e(f's_and_b32 s{S_T0}, s2, 7')
    e(f's_lshr_b32 s{S_T1}, s2, 3')
    e(f's_lshr_b32 s{S_KS}, s{S_T0}, 1')
    e(f's_and_b32 s{S_T0}, s{S_T0}, 1')
    e(f's_lshl_b32 s{S_MT}, s{S_T0}, 3')
    e(f's_and_b32 s{S_T0}, s{S_T1}, 7')
    e(f's_add_u32 s{S_MT}, s{S_MT}, s{S_T0}')
    e(f's_lshr_b32 s{S_NT}, s{S_T1}, 3')
    e('v_lshrrev_b32 v3, 4, v2')
    e('v_and_b32 v4, 15, v2')
    e('v_lshlrev_b32 v5, 2, v3')
    e('v_xor_b32 v5, v5, v4')
    e(f's_lshl_b32 s{S_T0}, s{S_W}, 4')
    e(f'v_add_u32 v6, s{S_T0}, v3')
    e('v_lshlrev_b32 v6, 10, v6')
    e(f'v_lshl_add_u32 v{VWD}, v5, 4, v6')
    e(f's_lshl_b32 s{S_T0}, s{S_NT}, 8')
    e(f'v_add_u32 v{VWD}, s{S_T0}, v{VWD}')
    e(f'v_lshlrev_b32 v{VH}, 4, v2')
    e(f's_lshl_b32 s{S_WO}, s{S_KS}, 20')
    e(f's_lshl_b32 s{S_T0}, s{S_MT}, 2')
    e(f's_add_u32 s{S_T0}, s{S_T0}, s{S_W}')
    e(f's_lshl_b32 s{S_BO}, s{S_T0}, 18')
    e(f's_lshl_b32 s{S_T1}, s{S_KS}, 16')
    e(f's_add_u32 s{S_BO}, s{S_BO}, s{S_T1}')
    e(f's_lshl_b32 s{S_LW}, s{S_W}, 12')
    e(f's_add_u32 s{S_LB}, s{S_LW}, 16384')
    e('s_waitcnt lgkmcnt(0)')
    srd(L, SWT, 48, 4096 * 1024)
    srd_off(L, SB, 50, O_OFF, 2048 * 8192)
    def issue(s_):
        ops = []
        base = (s_ % 4) * 32768
        ops.append((f's_add_u32 m0, s{S_LB}, {base}', 2))
        ops.append((f's_add_u32 s{S_T1}, s{S_BO}, {s_*4096}', 2))
        for i in range(4):
            ops.append((f'buffer_load_dwordx4 v{VH}, s[{SB}:{SB+3}], s{S_T1} offen offset:{i*1024} lds', 8, ('S', s_)))
        for i in range(4):
            ops.append((f's_add_u32 m0, s{S_LW}, {base + i*1024}', 2))
            ops.append((f's_add_u32 s{S_T0}, s{S_WO}, {(64*s_ + 4*i)*1024}', 2))
            ops.append((f'buffer_load_dwordx4 v{VWD}, s[{SWT}:{SWT+3}], s{S_T0} offen lds', 8, ('S', s_)))
        return ops
    def emit_ops(ops):
        for o in ops:
            e(o[0])
            if len(o) > 2: vq.issue(o[2])
    dstamp(L, KI, 1)
    emit_ops(issue(0)); emit_ops(issue(1))
    dstamp(L, KI, 2)
    e('v_lshrrev_b32 v5, 2, v4')
    e('v_and_b32 v6, 3, v2')
    e('v_lshrrev_b32 v7, 1, v3')
    e('v_and_b32 v8, 1, v3')
    e('v_lshl_add_u32 v7, v7, 2, v5')
    e('v_lshlrev_b32 v7, 8, v7')
    e('v_lshl_add_u32 v7, v8, 5, v7')
    e('v_lshl_add_u32 v7, v6, 3, v7')
    e(f's_and_b32 s{S_T0}, s{S_W}, 1')
    e(f's_lshl_b32 s{S_T0}, s{S_T0}, 1')
    for nb in range(2):
        e(f's_add_u32 s{S_T1}, s{S_T0}, {nb}')
        e(f'v_xor_b32 v9, s{S_T1}, v5')
        e(f'v_lshl_add_u32 v{VAD+nb}, v9, 6, v7')
        e(f'v_add_u32 v{VAD+4+nb}, 0x10000, v{VAD+nb}')
    e(f's_lshr_b32 s{S_T0}, s{S_W}, 1')
    e(f's_lshl_b32 s{S_T0}, s{S_T0}, 13')
    e(f's_add_u32 s{S_T0}, s{S_T0}, 16384')
    e(f'v_add_u32 v{VBD}, s{S_T0}, v{VH}')
    e(f'v_add_u32 v{VBD+4}, 0x10000, v{VBD}')
    srd_off(L, SD, 50, PART_OFF, 16 << 20)
    e(f's_lshl_b32 s{S_T0}, s{S_MT}, 2')
    e(f's_lshr_b32 s{S_T1}, s{S_W}, 1')
    e(f's_lshl_b32 s{S_T1}, s{S_T1}, 1')
    e(f's_add_u32 s{S_T0}, s{S_T0}, s{S_T1}')
    e(f's_lshl_b32 s{S_T0}, s{S_T0}, 4')
    e(f's_lshl_b32 s{S_T1}, s{S_NT}, 2')
    e(f's_add_u32 s{S_T0}, s{S_T0}, s{S_T1}')
    e(f's_and_b32 s{S_T1}, s{S_W}, 1')
    e(f's_lshl_b32 s{S_T1}, s{S_T1}, 1')
    e(f's_add_u32 s{S_T0}, s{S_T0}, s{S_T1}')
    SH_ = 1 if BF16P else 0
    e(f's_lshl_b32 s{S_T0}, s{S_T0}, {12-SH_}')
    e(f's_lshl_b32 s{S_T1}, s{S_KS}, {22-SH_}')
    e(f's_add_u32 s{S_D}, s{S_T0}, s{S_T1}')
    e(f's_add_u32 s{S_D+1}, s{S_D}, {4096>>SH_}')
    e(f's_add_u32 s{S_D+2}, s{S_D}, {65536>>SH_}')
    e(f's_add_u32 s{S_D+3}, s{S_D+2}, {4096>>SH_}')
    def reads(kk):
        s_, ks = kk // 4, kk % 4
        st = kk % NSET
        base = (s_ % 4) * 32768
        hi = 4 if base >= 65536 else 0
        base &= 0xffff
        ops = []
        for rb in range(2):
            ops.append((f'ds_read_b128 {a(BFR(st,rb),4)}, v{VBD+hi} offset:{base + rb*4096 + ks*1024}', 4))
        for nb in range(2):
            for aa in range(2):
                ops.append((f'ds_read_b64_tr_b16 {a(AFR(st,nb)+2*aa,2)}, v{VAD+hi+nb} offset:{base + (16*ks+8*aa)*256}', 4))
        return ops
    def mfmas(kk):
        st = kk % NSET
        m = []
        for nb in range(2):
            for rb in range(2):
                acc = ACC + 16 * (2 * rb + nb)
                c = '0' if kk == 0 else v(acc, 16)
                m.append((f'v_mfma_f32_32x32x16_bf16 {v(acc,16)}, {a(AFR(st,nb),4)}, {a(BFR(st,rb),4)}, {c}', 24))
        return m
    e('v_min_u32 v19, 880, v11')
    e('s_lshr_b32 s57, s2, 3')
    e('s_lshl_b32 s57, s57, 4')
    e(f's_lshl_b32 s56, s{S_W}, 2')
    e('s_add_u32 s57, s57, s56')
    e('s_mul_i32 s57, s57, 3584')
    e('s_bfe_u32 s56, s2, 0x20001')
    e('s_mul_i32 s56, s56, 896')
    e('s_add_u32 s57, s57, s56')
    srd(L, 60, 52, 512 * 3584)
    srd(L, 44, 54, 512 * 3584)
    pfops = []
    for r in range(4):
        for sr in (60, 44):
            pfops.append((f'buffer_load_dwordx4 v[28:31], v19, s[{sr}:{sr+3}], s57 offen', 8, ('pf', r)))
        pfops.append(('s_add_u32 s57, s57, 3584', 2))
    n = vq.wait_for(lambda x: x == ('S', 0))
    e(f's_waitcnt vmcnt({n})')
    e('s_barrier')
    dstamp(L, KI, 3)
    if NSET == 3:
        L += [x[0] for x in reads(0)] + [x[0] for x in reads(1)]
        pend = issue(2)
        for kk in range(4 * NST):
            s_, ks = kk // 4, kk % 4
            if kk == 2 * NST: dstamp(L, KI, 4)
            e('s_waitcnt lgkmcnt(6)' if kk + 1 < 4 * NST else 's_waitcnt lgkmcnt(0)')
            if ks == 2 and s_ + 1 < NST:
                n = vq.wait_for(lambda x: x == ('S', s_ + 1))
                if n is not None: e(f's_waitcnt vmcnt({n})')
                e('s_barrier')
                if s_ + 3 < NST:
                    pend += issue(s_ + 3)
                elif s_ + 3 == NST:
                    pend += pfops
            take = []
            if pend:
                cnt = 0
                lim = 4 if s_ == 0 else 2
                while pend and cnt < lim:
                    o = pend.pop(0); take.append(o)
                    if len(o) > 2: cnt += 1
                while pend and len(pend[0]) == 2 and 's57' in pend[0][0]:
                    take.append(pend.pop(0))
            qs = []
            if kk + 2 < 4 * NST:
                qs.append(dict(items=reads(kk + 2), start=0, end=3))
            if take:
                qs.append(dict(items=[(o[0], o[1]) for o in take], start=0, end=3))
            L += interleave(mfmas(kk), qs)
            for o in take:
                if len(o) > 2: vq.issue(o[2])
    else:
        L += [x[0] for x in reads(0)]
        pend = issue(2) + issue(3)
        for kk in range(4 * NST):
            s_, ks = kk // 4, kk % 4
            if kk == 2 * NST: dstamp(L, KI, 4)
            e('s_waitcnt lgkmcnt(0)')
            if ks == 3 and s_ + 1 < NST:
                n = vq.wait_for(lambda x: x == ('S', s_ + 1))
                if n is not None: e(f's_waitcnt vmcnt({n})')
                e('s_barrier')
                if s_ + 4 < NST:
                    pend += issue(s_ + 4)
                elif s_ + 4 == NST:
                    pend += pfops
            take = []
            if pend:
                cnt = 0
                lim = 4 if s_ == 0 else 2
                while pend and (cnt < lim or len(pend[0]) == 2 and False):
                    o = pend.pop(0); take.append(o)
                    if len(o) > 2: cnt += 1
            qs = []
            if kk + 1 < 4 * NST:
                qs.append(dict(items=reads(kk + 1), start=0, end=2))
            if take:
                qs.append(dict(items=[(o[0], o[1]) for o in take], start=0, end=3))
            L += interleave(mfmas(kk), qs)
            for o in take:
                if len(o) > 2: vq.issue(o[2])
    assert not pend
    dstamp(L, KI, 5)
    e('s_nop 11')
    for rb in range(2):
        for nb in range(2):
            acc = ACC + 16 * (2 * rb + nb)
            if BF16P:
                for b in range(2):
                    pk = 20 + 4 * b
                    for i in range(4):
                        e(f'v_cvt_pk_bf16_f32 v{pk+i}, v{acc+8*b+2*i}, v{acc+8*b+2*i+1}')
                    e(f'buffer_store_dwordx4 {v(pk,4)}, v{VH}, s[{SD}:{SD+3}], s{S_D+2*rb+nb} offen offset:{b*1024}{WSC}')
                e('s_nop 0')
            else:
                for g in range(4):
                    e(f'buffer_store_dwordx4 {v(acc+4*g,4)}, v{VH}, s[{SD}:{SD+3}], s{S_D+2*rb+nb} offen offset:{g*1024}')
    dstamp(L, KI, 6)
    dstamp_store(L, KI, 7)
    prof_end(L, KI, 1)
    e(f'{name}_done:')
    e('s_endpgm')
    L = hoist(L)
    for h in check_hazards(L, name): print('HAZARD', h)
    return L, kernel_desc(name, 96 + 48, 102, 96), f'; @launch kernel={name} grid=(256,1,1) block=(256,1,1) lds=131328'


def gen_ln2r(name='ln2_kernel'):
    L = kernel_header(name)
    e = L.append
    prof_begin(L)
    SP, SX, SM, SH2, SX1 = 8, 12, 16, 20, 24
    e('s_cmp_ge_u32 s2, 256')
    e(f's_cbranch_scc1 {name}_done')
    e(f's_load_dwordx2 s[4:5], s[0:1], {KA["x"]}')
    e(f's_load_dwordx2 s[6:7], s[0:1], {KA["ws"]}')
    e('v_and_b32 v1, 63, v0')
    e('v_lshrrev_b32 v2, 6, v0')
    e('v_and_b32 v3, 7, v1')
    e('v_bfe_u32 v4, v1, 3, 1')
    e('v_bfe_u32 v5, v1, 4, 1')
    e('v_lshrrev_b32 v6, 5, v1')
    e('v_lshl_add_u32 v7, v2, 2, v6')
    e('s_and_b32 s38, s2, 1')
    e('s_lshl_b32 s38, s38, 7')
    e('s_bfe_u32 s39, s2, 0x20001')
    e('s_lshl_b32 s39, s39, 5')
    e('s_add_u32 s38, s38, s39')
    e('s_lshr_b32 s39, s2, 3')
    e('s_add_u32 s38, s38, s39')
    e('s_and_b32 s3, s38, 3')
    e('s_lshl_b32 s3, s3, 3')
    e('v_add_u32 v8, s3, v3')
    e('s_lshr_b32 s28, s38, 2')
    SH_ = 1 if BF16P else 0
    e('v_lshl_add_u32 v9, v4, 5, v8')
    e('v_lshlrev_b32 v9, 4, v9')
    e(f'v_lshl_add_u32 v9, v5, {11-SH_}, v9')
    e(f'v_lshl_add_u32 v9, v7, {12-SH_}, v9')
    e(f'v_add_u32 v10, {0x2000>>SH_}, v9')
    e(f's_lshl_b32 s29, s28, {16-SH_}')
    for ks in range(1, 4):
        e(f's_add_u32 s{29+ks}, s{28+ks}, {(4<<20)>>SH_}')
    e('v_lshlrev_b32 v11, 6, v7')
    e('v_lshl_add_u32 v11, v5, 5, v11')
    e('v_lshl_add_u32 v11, v4, 3, v11')
    e('v_lshl_add_u32 v12, v3, 10, v11')
    e('s_lshl_b32 s33, s38, 13')
    e('s_waitcnt lgkmcnt(0)')
    srd_off(L, SP, 6, PART_OFF, 16 << 20)
    srd(L, SX, 4, 2048 * 1024)
    srd_off(L, SM, 6, MOD_OFF, 6144)
    srd_off(L, SH2, 6, H2_OFF, 2048 * 1024)
    srd_off(L, SX1, 6, X1F_OFF, 2048 * 1024)
    for ks in range(4):
        for i in range(2):
            if BF16P:
                r = 64 + 8 * ks + 4 * i
                e(f'buffer_load_dwordx4 v[{r}:{r+3}], v{9+i}, s[{SP}:{SP+3}], s{29+ks} offen')
                continue
            for aa in range(2):
                r = 32 + 16 * ks + 4 * (2 * i + aa)
                e(f'buffer_load_dwordx4 v[{r}:{r+3}], v{9+i}, s[{SP}:{SP+3}], s{29+ks} offen offset:{aa*1024}')
    for i in range(2):
        for aa in range(2):
            q = 2 * i + aa
            e(f'buffer_load_dwordx2 v[{96+2*q}:{97+2*q}], v12, s[{SX}:{SX+3}], s33 offen offset:{128*i + 16*aa}')
    e('s_movk_i32 s34, 4096')
    for (base, off) in ((104, 2048), (112, 3072), (120, None)):
        for i in range(2):
            for aa in range(2):
                q = 2 * i + aa
                if off is None:
                    e(f'buffer_load_dwordx2 v[{base+2*q}:{base+1+2*q}], v11, s[{SM}:{SM+3}], s34 offen offset:{128*i + 16*aa}')
                else:
                    e(f'buffer_load_dwordx2 v[{base+2*q}:{base+1+2*q}], v11, s[{SM}:{SM+3}], 0 offen offset:{off + 128*i + 16*aa}')
    e('v_lshrrev_b32 v13, 3, v1')
    e('v_lshl_add_u32 v13, v2, 3, v13')
    e('v_lshlrev_b32 v13, 2, v13')
    e('v_lshl_add_u32 v13, v3, 7, v13')
    e('v_lshlrev_b32 v14, 7, v3')
    npf = 0
    if PF_W:
        e(f's_load_dwordx4 s[40:43], s[0:1], {KA["wg"]}')
        e('v_lshlrev_b32 v22, 4, v1')
        e('v_min_u32 v22, 880, v22')
        e('v_readfirstlane_b32 s36, v2')
        e('s_lshr_b32 s37, s2, 3')
        e('s_lshl_b32 s37, s37, 4')
        e('s_lshl_b32 s36, s36, 2')
        e('s_add_u32 s37, s37, s36')
        e('s_mul_i32 s37, s37, 3584')
        e('s_bfe_u32 s36, s2, 0x20001')
        e('s_mul_i32 s36, s36, 896')
        e('s_add_u32 s37, s37, s36')
        e('s_waitcnt lgkmcnt(0)')
        srd(L, 44, 40, 512 * 3584)
        srd(L, 48, 42, 512 * 3584)
        for r in range(4):
            for sr in (44, 48):
                e(f'buffer_load_dwordx4 v[24:27], v22, s[{sr}:{sr+3}], s37 offen')
                npf += 1
            e('s_add_u32 s37, s37, 3584')
    e(f's_waitcnt vmcnt({16+npf})')
    if BF16P:
        for q in range(8):
            e(f'v_lshlrev_b32 v{32+2*q}, 16, v{64+q}')
            e(f'v_and_b32 v{33+2*q}, 0xffff0000, v{64+q}')
        for ks in range(1, 4):
            for q in range(8):
                e(f'v_lshlrev_b32 v16, 16, v{64+8*ks+q}')
                e(f'v_and_b32 v17, 0xffff0000, v{64+8*ks+q}')
                e(f'v_add_f32 v{32+2*q}, v{32+2*q}, v16')
                e(f'v_add_f32 v{33+2*q}, v{33+2*q}, v17')
    else:
        for i in range(16):
            e(f'v_add_f32 v{32+i}, v{32+i}, v{48+i}')
            e(f'v_add_f32 v{64+i}, v{64+i}, v{80+i}')
        for i in range(16):
            e(f'v_add_f32 v{32+i}, v{32+i}, v{64+i}')
    e(f's_waitcnt vmcnt({8+npf})')
    for pr in range(8):
        x0, x1 = 32 + 2 * pr, 33 + 2 * pr
        rnd_pair(e, x0, x1, x0, x1, 15)
        e(f'v_lshlrev_b32 v16, 16, v{104+pr}')
        e(f'v_and_b32 v17, 0xffff0000, v{104+pr}')
        e(f'v_mul_f32 v{x0}, v{x0}, v16')
        e(f'v_mul_f32 v{x1}, v{x1}, v17')
        rnd_pair(e, x0, x1, x0, x1, 15)
        e(f'v_lshlrev_b32 v16, 16, v{96+pr}')
        e(f'v_and_b32 v17, 0xffff0000, v{96+pr}')
        e(f'v_add_f32 v{x0}, v{x0}, v16')
        e(f'v_add_f32 v{x1}, v{x1}, v17')
        e(f'v_cvt_pk_bf16_f32 v{48+pr}, v{x0}, v{x1}')
        e(f'v_lshlrev_b32 v{x0}, 16, v{48+pr}')
        e(f'v_and_b32 v{x1}, 0xffff0000, v{48+pr}')
    e('v_and_b32 v18, 15, v8')
    e('v_lshl_add_u32 v19, v5, 1, v4')
    e('v_lshl_add_u32 v18, v19, 4, v18')
    e('v_lshlrev_b32 v18, 4, v18')
    e('v_lshl_add_u32 v18, v7, 10, v18')
    e('s_lshr_b32 s35, s38, 1')
    e('s_lshl_b32 s35, s35, 14')
    e(f'buffer_store_dwordx4 v[48:51], v18, s[{SX1}:{SX1+3}], s35 offen{LSC}')
    e(f'buffer_store_dwordx4 v[52:55], v18, s[{SX1}:{SX1+3}], s35 offen offset:2048{LSC}')
    e('v_add_f32 v20, v32, v33')
    e('v_add_f32 v21, v34, v35')
    for r in range(4, 16, 2):
        e(f'v_add_f32 v20, v20, v{32+r}')
        e(f'v_add_f32 v21, v21, v{33+r}')
    e('v_add_f32 v20, v20, v21')
    e('ds_write_b32 v13, v20')
    e('s_waitcnt lgkmcnt(0)')
    e('s_barrier')
    for q in range(8):
        e(f'ds_read_b128 v[{64+4*q}:{67+4*q}], v14 offset:{16*q}')
    e('s_waitcnt lgkmcnt(0)')
    for q in range(16):
        e(f'v_add_f32 v{64+q}, v{64+q}, v{80+q}')
    for q in range(8):
        e(f'v_add_f32 v{64+q}, v{64+q}, v{72+q}')
    for q in range(4):
        e(f'v_add_f32 v{64+q}, v{64+q}, v{68+q}')
    e('v_add_f32 v64, v64, v66')
    e('v_add_f32 v65, v65, v67')
    e('v_add_f32 v64, v64, v65')
    e('v_mul_f32 v20, 0x3b000000, v64')
    e('v_sub_f32 v21, v32, v20')
    e('v_mul_f32 v22, v21, v21')
    e('v_sub_f32 v21, v33, v20')
    e('v_mul_f32 v23, v21, v21')
    for r in range(2, 16):
        e(f'v_sub_f32 v21, v{32+r}, v20')
        e(f'v_fmac_f32 v{22 + (r & 1)}, v21, v21')
    e('v_add_f32 v22, v22, v23')
    e('ds_write_b32 v13, v22 offset:1024')
    e('s_waitcnt lgkmcnt(0)')
    e('s_barrier')
    for q in range(8):
        e(f'ds_read_b128 v[{64+4*q}:{67+4*q}], v14 offset:{1024 + 16*q}')
    e('s_waitcnt lgkmcnt(0)')
    for q in range(16):
        e(f'v_add_f32 v{64+q}, v{64+q}, v{80+q}')
    for q in range(8):
        e(f'v_add_f32 v{64+q}, v{64+q}, v{72+q}')
    for q in range(4):
        e(f'v_add_f32 v{64+q}, v{64+q}, v{68+q}')
    e('v_add_f32 v64, v64, v66')
    e('v_add_f32 v65, v65, v67')
    e('v_add_f32 v64, v64, v65')
    e('v_mul_f32 v21, 0x3b000000, v64')
    rnd_pair(e, 20, 21, 20, 21, 15)
    e('v_add_f32 v21, 0x3727c5ac, v21')
    e('v_cvt_pk_bf16_f32 v21, v21, v21')
    e('v_lshlrev_b32 v21, 16, v21')
    e('v_sqrt_f32 v21, v21')
    e('s_nop 0')
    e('v_cvt_pk_bf16_f32 v21, v21, v21')
    e('v_lshlrev_b32 v21, 16, v21')
    e('v_rcp_f32 v21, v21')
    e(f's_waitcnt vmcnt({2+npf})')
    for pr in range(8):
        x0, x1 = 32 + 2 * pr, 33 + 2 * pr
        e(f'v_sub_f32 v{x0}, v{x0}, v20')
        e(f'v_sub_f32 v{x1}, v{x1}, v20')
        rnd_pair(e, x0, x1, x0, x1, 15)
        e(f'v_mul_f32 v{x0}, v{x0}, v21')
        e(f'v_mul_f32 v{x1}, v{x1}, v21')
        rnd_pair(e, x0, x1, x0, x1, 15)
        e(f'v_lshlrev_b32 v16, 16, v{120+pr}')
        e(f'v_and_b32 v17, 0xffff0000, v{120+pr}')
        e('v_add_f32 v16, 1.0, v16')
        e('v_add_f32 v17, 1.0, v17')
        rnd_pair(e, 16, 17, 16, 17, 15)
        e(f'v_mul_f32 v{x0}, v{x0}, v16')
        e(f'v_mul_f32 v{x1}, v{x1}, v17')
        rnd_pair(e, x0, x1, x0, x1, 15)
        e(f'v_lshlrev_b32 v16, 16, v{112+pr}')
        e(f'v_and_b32 v17, 0xffff0000, v{112+pr}')
        e(f'v_add_f32 v{x0}, v{x0}, v16')
        e(f'v_add_f32 v{x1}, v{x1}, v17')
        e(f'v_cvt_pk_bf16_f32 v{56+pr}, v{x0}, v{x1}')
    e(f'buffer_store_dwordx4 v[56:59], v18, s[{SH2}:{SH2+3}], s35 offen{LSC}')
    e(f'buffer_store_dwordx4 v[60:63], v18, s[{SH2}:{SH2+3}], s35 offen offset:2048{LSC}')
    prof_end(L, 4, 1)
    e(f'{name}_done:')
    e('s_endpgm')
    L = hoist(L)
    for h in check_hazards(L, name): print('HAZARD', h)
    return L, kernel_desc(name, 128, 102, 128), f'; @launch kernel={name} grid=(256,1,1) block=(256,1,1) lds=2304'
```

```python
import sys
from asmlib import *
from k_small import *
from k_attn import *
from k_gemm import *
import k_attn2, k_attn3
from k_wo2 import *
from k_pre import *
from k_pre3 import *

def build(kernels, path):
    hdr = [l.rstrip('\n') for l in open('adaLN_cond__mha_block_cached__geglu_ffn__prompt.s.ref') if l.startswith(';') and '@launch' not in l]
    out = hdr + [k[2] for k in kernels]
    out += ['.amdgcn_target "amdgcn-amd-amdhsa--gfx950"', '.text']
    seen = set()
    for k in kernels:
        nm = k[0][0]
        if nm in seen: continue
        seen.add(nm)
        out += k[0]
    out += ['.section .rodata,"a"']
    seen = set()
    for k in kernels:
        nm = k[0][0]
        if nm in seen: continue
        seen.add(nm)
        out += ['.p2align 6'] + k[1]
    open(path, 'w').write('\n'.join(out) + '\n')

if __name__ == '__main__':
    import k_attn, asmlib
    asmlib.PROF = 'tl' in sys.argv
    asmlib.CLAIM = 'claim' in sys.argv
    for x in sys.argv:
        if x.startswith('osc='): k_attn3.OSC = ' ' + x[4:].replace('+', ' ')
    for x in sys.argv:
        if x.startswith('st='): asmlib.STAMPK = int(x[3:])
    k_attn.FAKE16 = 'fake16' in sys.argv
    k_attn.NOVALU = 'novalu' in sys.argv
    k_attn.NOLDS = 'nolds' in sys.argv
    k_attn.NODMA = 'nodma' in sys.argv
    k_attn.PROFQ = 'profq' in sys.argv
    k_attn.WQLIN = 'wqlin' in sys.argv
    k_attn.NOH = 'noh' in sys.argv
    k_attn2.USE_PK = 'pk' in sys.argv
    k_attn2.ABL = set(x[4:] for x in sys.argv if x.startswith('abl-'))
    k_attn2.TWOACC = 'two' in sys.argv
    for x in sys.argv:
        if x.startswith('cost='):
            k_attn2.CV, k_attn2.CE, k_attn2.CD, k_attn2.CM, k_attn2.CS = [int(y) for y in x[5:].split(',')]
    import k_gemm, k_pre, k_wo2, k_pre3
    for x in sys.argv:
        if x.startswith('pfm='): k_pre3.PFMODE = x[4:]
        if x == 'hyb': k_attn3.LMODE = 'hybrid'
        if x.startswith('tune='):
            for kv in x[5:].split(','):
                k_, v_ = kv.split(':'); k_attn3.TUNE[k_] = int(v_)
        if x.startswith('cost3='):
            k_attn3.CV, k_attn3.CE, k_attn3.CD, k_attn3.CM, k_attn3.CS = [int(y) for y in x[6:].split(',')]
        if x.startswith('nset='): k_wo2.NSET = int(x[5:])
    for x in sys.argv:
        if x.startswith('wsc='): k_wo2.WSC = ' ' + x[4:].replace('+', ' ')
        if x.startswith('lsc='): k_wo2.LSC = ' ' + x[4:].replace('+', ' ')
        if x.startswith('fsc='): k_gemm.FSC = ' ' + x[4:].replace('+', ' ')
    for x in sys.argv:
        if x.startswith('sleep='): k_pre.SLEEP = int(x[6:])
        if x == 'sc1': k_pre.SC = 'sc1'
    for x in sys.argv:
        if x.startswith('ffnlim='): k_gemm.FFN_LIM = [int(y) for y in x[7:].split(',')]
        if x.startswith('spk='): k_gemm.SPK = [int(y) for y in x[4:].split(',')]
    ks = ([gen_mod2(), gen_ln1v2()] if 'nofuse' in sys.argv else [gen_pre()] if 'pre2' in sys.argv else [gen_pre3_full()]) + [ (gen_attn(prof='prof' in sys.argv) if 'old' in sys.argv else k_attn2.gen_attn() if 'a2' in sys.argv else k_attn3.gen_attn())]
    ks.append(gen_wo2())
    ks.append(gen_ln2r())
    ks.append(gen_ffn1())
    ks.append(gen_splitk('down_kernel', 16, 1792, KA['wd'], ACT_OFF, 2048*3584, ('wsf', X1_OFF), 5120, ('out',)))
    if 'dup' in sys.argv:
        k2 = gen_splitk('wo2_kernel', 32, 4096, KA['wo'], O_OFF, 2048*8192, ('in', KA['x']), 2048, ('ws', X1_OFF))
        k2 = ([l.replace(str(asmlib.PROF_OFF + 3*65536), str(asmlib.PROF_OFF + 7*65536)) for l in k2[0]], k2[1], k2[2])
        ks = ks[:4] + [k2]
    for x in sys.argv:
        if x.startswith('empty='):
            n = int(x[6:].lstrip('f'))
            ek = (kernel_header('empty_kernel') + ['s_endpgm'], kernel_desc('empty_kernel', 8, 16, 8), '; @launch kernel=empty_kernel grid=(256,1,1) block=(256,1,1) lds=0')
            ks = ([ek] * n + ks) if x[6] == 'f' else (ks + [ek] * n)
    build(ks, sys.argv[1] if len(sys.argv) > 1 else 'cur.s')
```

```python
import sys
from asmlib import *
from k_small import *
from k_attn import *
from k_gemm import *
import k_attn2, k_attn3
from k_wo2 import *
from k_pre import *
from k_pre3 import *

def build(kernels, path):
    hdr = [l.rstrip('\n') for l in open('adaLN_cond__mha_block_cached__geglu_ffn__prompt.s.ref') if l.startswith(';') and '@launch' not in l]
    out = hdr + [k[2] for k in kernels]
    out += ['.amdgcn_target "amdgcn-amd-amdhsa--gfx950"', '.text']
    seen = set()
    for k in kernels:
        nm = k[0][0]
        if nm in seen: continue
        seen.add(nm)
        out += k[0]
    out += ['.p2align 4', 'code_end:', 's_endpgm']
    out += ['.section .rodata,"a"']
    seen = set()
    for k in kernels:
        nm = k[0][0]
        if nm in seen: continue
        seen.add(nm)
        out += ['.p2align 6'] + k[1]
    open(path, 'w').write('\n'.join(out) + '\n')

if __name__ == '__main__':
    import k_attn, asmlib
    asmlib.PROF = 'tl' in sys.argv
    asmlib.CLAIM = 'claim' in sys.argv
    asmlib.CODEPF = 'nocpf' not in sys.argv
    for x in sys.argv:
        if x.startswith('osc='): k_attn3.OSC = ' ' + x[4:].replace('+', ' ')
    for x in sys.argv:
        if x.startswith('st='): asmlib.STAMPK = int(x[3:])
    k_attn.FAKE16 = 'fake16' in sys.argv
    k_attn.NOVALU = 'novalu' in sys.argv
    k_attn.NOLDS = 'nolds' in sys.argv
    k_attn.NODMA = 'nodma' in sys.argv
    k_attn.PROFQ = 'profq' in sys.argv
    k_attn.WQLIN = 'wqlin' in sys.argv
    k_attn.NOH = 'noh' in sys.argv
    k_attn2.USE_PK = 'pk' in sys.argv
    k_attn2.ABL = set(x[4:] for x in sys.argv if x.startswith('abl-'))
    k_attn2.TWOACC = 'two' in sys.argv
    for x in sys.argv:
        if x.startswith('cost='):
            k_attn2.CV, k_attn2.CE, k_attn2.CD, k_attn2.CM, k_attn2.CS = [int(y) for y in x[5:].split(',')]
    import k_gemm, k_pre, k_wo2, k_pre3
    for x in sys.argv:
        if x.startswith('pfm='): k_pre3.PFMODE = x[4:]
        if x.startswith('tlbw='): k_pre3.TLBW = int(x[5:]) << 10
        if x.startswith('cpfm='): k_pre3.CPF_MODE = x[5:]
        if x == 'nocpf23': k_wo2.CPF2 = False; k_gemm.CPF3 = False
        if x == 'hyb': k_attn3.LMODE = 'hybrid'
        if x == 'bar2': k_attn3.BAR2 = True
        if x.startswith('tune='):
            for kv in x[5:].split(','):
                k_, v_ = kv.split(':'); k_attn3.TUNE[k_] = int(v_)
        if x.startswith('cost3='):
            k_attn3.CV, k_attn3.CE, k_attn3.CD, k_attn3.CM, k_attn3.CS = [int(y) for y in x[6:].split(',')]
        if x.startswith('nset='): k_wo2.NSET = int(x[5:])
    for x in sys.argv:
        if x.startswith('wsc='): k_wo2.WSC = ' ' + x[4:].replace('+', ' ')
        if x.startswith('lsc='): k_wo2.LSC = ' ' + x[4:].replace('+', ' ')
        if x.startswith('fsc='): k_gemm.FSC = ' ' + x[4:].replace('+', ' ')
    for x in sys.argv:
        if x.startswith('sleep='): k_pre.SLEEP = int(x[6:])
        if x == 'sc1': k_pre.SC = 'sc1'
    for x in sys.argv:
        if x.startswith('ffnlim='): k_gemm.FFN_LIM = [int(y) for y in x[7:].split(',')]
        if x.startswith('spk='): k_gemm.SPK = [int(y) for y in x[4:].split(',')]
    ks = ([gen_mod2(), gen_ln1v2()] if 'nofuse' in sys.argv else [gen_pre()] if 'pre2' in sys.argv else [gen_pre3_full()]) + [ (gen_attn(prof='prof' in sys.argv) if 'old' in sys.argv else k_attn2.gen_attn() if 'a2' in sys.argv else k_attn3.gen_attn())]
    ks.append(gen_wo2())
    ks.append(gen_ln2r())
    ks.append(gen_ffn1())
    ks.append(gen_splitk('down_kernel', 16, 1792, KA['wd'], ACT_OFF, 2048*3584, ('wsf', X1_OFF), 5120, ('out',)))
    if 'dup' in sys.argv:
        k2 = gen_splitk('wo2_kernel', 32, 4096, KA['wo'], O_OFF, 2048*8192, ('in', KA['x']), 2048, ('ws', X1_OFF))
        k2 = ([l.replace(str(asmlib.PROF_OFF + 3*65536), str(asmlib.PROF_OFF + 7*65536)) for l in k2[0]], k2[1], k2[2])
        ks = ks[:4] + [k2]
    for x in sys.argv:
        if x.startswith('empty='):
            n = int(x[6:].lstrip('f'))
            ek = (kernel_header('empty_kernel') + ['s_endpgm'], kernel_desc('empty_kernel', 8, 16, 8), '; @launch kernel=empty_kernel grid=(256,1,1) block=(256,1,1) lds=0')
            ks = ([ek] * n + ks) if x[6] == 'f' else (ks + [ek] * n)
    for x in sys.argv:
        if x.startswith('dupk='):
            i = int(x[5:])
            ks = ks[:i+1] + [ks[i]] + ks[i+1:]
    if 'twice' in sys.argv: ks = ks + ks
    build(ks, sys.argv[1] if len(sys.argv) > 1 else 'cur.s')
```

```python
from asmlib import *
import asmlib
from k_small import *
from k_attn import interleave

PART_OFF = 40 << 20
X1F_OFF = X1_OFF
PF_W = False
CPF2 = True
NSET = 2
WSC = ''
LSC = ''
BF16P = True

def gen_wo2(name='wo_kernel'):
    KI = 3
    NST = 16
    L = kernel_header(name)
    e = L.append
    vq = Q(63)
    SWT, SB, SD = 8, 12, 16
    S_W, S_MT, S_NT, S_KS, S_T0, S_T1, S_WO, S_BO, S_LW, S_LB = 28, 29, 30, 31, 32, 33, 34, 35, 36, 37
    S_D = 38
    VWD, VH, VAD, VBD = 10, 11, 12, 14
    ACC = 32
    def AF(st, ks, nb): return 16 * st + 8 * 0 + 4 * nb + 8 * 0
    def AFR(st, nb): return 16 * st + 4 * nb
    def BFR(st, rb): return 16 * st + 8 + 4 * rb
    prof_begin(L)
    dstamp(L, KI, 0)
    claim(L, name, 131072, vb=28)
    e(f's_load_dwordx2 s[48:49], s[0:1], {KA["wo"]}')
    e(f's_load_dwordx2 s[50:51], s[0:1], {KA["ws"]}')
    e(f's_load_dwordx4 s[52:55], s[0:1], {KA["wg"]}')
    e('v_lshrrev_b32 v1, 6, v0')
    e('v_and_b32 v2, 63, v0')
    e(f'v_readfirstlane_b32 s{S_W}, v1')
    e(f's_and_b32 s{S_T0}, s2, 7')
    e(f's_lshr_b32 s{S_T1}, s2, 3')
    e(f's_lshr_b32 s{S_KS}, s{S_T0}, 1')
    e(f's_and_b32 s{S_T0}, s{S_T0}, 1')
    e(f's_lshl_b32 s{S_MT}, s{S_T0}, 3')
    e(f's_and_b32 s{S_T0}, s{S_T1}, 7')
    e(f's_add_u32 s{S_MT}, s{S_MT}, s{S_T0}')
    e(f's_lshr_b32 s{S_NT}, s{S_T1}, 3')
    e('v_lshrrev_b32 v3, 4, v2')
    e('v_and_b32 v4, 15, v2')
    e('v_lshlrev_b32 v5, 2, v3')
    e('v_xor_b32 v5, v5, v4')
    e(f's_lshl_b32 s{S_T0}, s{S_W}, 4')
    e(f'v_add_u32 v6, s{S_T0}, v3')
    e('v_lshlrev_b32 v6, 10, v6')
    e(f'v_lshl_add_u32 v{VWD}, v5, 4, v6')
    e(f's_lshl_b32 s{S_T0}, s{S_NT}, 8')
    e(f'v_add_u32 v{VWD}, s{S_T0}, v{VWD}')
    e(f'v_lshlrev_b32 v{VH}, 4, v2')
    e(f's_lshl_b32 s{S_WO}, s{S_KS}, 20')
    e(f's_lshl_b32 s{S_T0}, s{S_MT}, 2')
    e(f's_add_u32 s{S_T0}, s{S_T0}, s{S_W}')
    e(f's_lshl_b32 s{S_BO}, s{S_T0}, 18')
    e(f's_lshl_b32 s{S_T1}, s{S_KS}, 16')
    e(f's_add_u32 s{S_BO}, s{S_BO}, s{S_T1}')
    e(f's_lshl_b32 s{S_LW}, s{S_W}, 12')
    e(f's_add_u32 s{S_LB}, s{S_LW}, 16384')
    e('s_waitcnt lgkmcnt(0)')
    srd(L, SWT, 48, 4096 * 1024)
    srd_off(L, SB, 50, O_OFF, 2048 * 8192)
    def issue(s_):
        ops = []
        base = (s_ % 4) * 32768
        ops.append((f's_add_u32 m0, s{S_LB}, {base}', 2))
        ops.append((f's_add_u32 s{S_T1}, s{S_BO}, {s_*4096}', 2))
        for i in range(4):
            ops.append((f'buffer_load_dwordx4 v{VH}, s[{SB}:{SB+3}], s{S_T1} offen offset:{i*1024} lds', 8, ('S', s_)))
        for i in range(4):
            ops.append((f's_add_u32 m0, s{S_LW}, {base + i*1024}', 2))
            ops.append((f's_add_u32 s{S_T0}, s{S_WO}, {(64*s_ + 4*i)*1024}', 2))
            ops.append((f'buffer_load_dwordx4 v{VWD}, s[{SWT}:{SWT+3}], s{S_T0} offen lds', 8, ('S', s_)))
        return ops
    def emit_ops(ops):
        for o in ops:
            e(o[0])
            if len(o) > 2: vq.issue(o[2])
    dstamp(L, KI, 1)
    emit_ops(issue(0)); emit_ops(issue(1))
    dstamp(L, KI, 2)
    e('v_lshrrev_b32 v5, 2, v4')
    e('v_and_b32 v6, 3, v2')
    e('v_lshrrev_b32 v7, 1, v3')
    e('v_and_b32 v8, 1, v3')
    e('v_lshl_add_u32 v7, v7, 2, v5')
    e('v_lshlrev_b32 v7, 8, v7')
    e('v_lshl_add_u32 v7, v8, 5, v7')
    e('v_lshl_add_u32 v7, v6, 3, v7')
    e(f's_and_b32 s{S_T0}, s{S_W}, 1')
    e(f's_lshl_b32 s{S_T0}, s{S_T0}, 1')
    for nb in range(2):
        e(f's_add_u32 s{S_T1}, s{S_T0}, {nb}')
        e(f'v_xor_b32 v9, s{S_T1}, v5')
        e(f'v_lshl_add_u32 v{VAD+nb}, v9, 6, v7')
        e(f'v_add_u32 v{VAD+4+nb}, 0x10000, v{VAD+nb}')
    e(f's_lshr_b32 s{S_T0}, s{S_W}, 1')
    e(f's_lshl_b32 s{S_T0}, s{S_T0}, 13')
    e(f's_add_u32 s{S_T0}, s{S_T0}, 16384')
    e(f'v_add_u32 v{VBD}, s{S_T0}, v{VH}')
    e(f'v_add_u32 v{VBD+4}, 0x10000, v{VBD}')
    srd_off(L, SD, 50, PART_OFF, 16 << 20)
    e(f's_lshl_b32 s{S_T0}, s{S_MT}, 2')
    e(f's_lshr_b32 s{S_T1}, s{S_W}, 1')
    e(f's_lshl_b32 s{S_T1}, s{S_T1}, 1')
    e(f's_add_u32 s{S_T0}, s{S_T0}, s{S_T1}')
    e(f's_lshl_b32 s{S_T0}, s{S_T0}, 4')
    e(f's_lshl_b32 s{S_T1}, s{S_NT}, 2')
    e(f's_add_u32 s{S_T0}, s{S_T0}, s{S_T1}')
    e(f's_and_b32 s{S_T1}, s{S_W}, 1')
    e(f's_lshl_b32 s{S_T1}, s{S_T1}, 1')
    e(f's_add_u32 s{S_T0}, s{S_T0}, s{S_T1}')
    SH_ = 1 if BF16P else 0
    e(f's_lshl_b32 s{S_T0}, s{S_T0}, {12-SH_}')
    e(f's_lshl_b32 s{S_T1}, s{S_KS}, {22-SH_}')
    e(f's_add_u32 s{S_D}, s{S_T0}, s{S_T1}')
    e(f's_add_u32 s{S_D+1}, s{S_D}, {4096>>SH_}')
    e(f's_add_u32 s{S_D+2}, s{S_D}, {65536>>SH_}')
    e(f's_add_u32 s{S_D+3}, s{S_D+2}, {4096>>SH_}')
    def reads(kk):
        s_, ks = kk // 4, kk % 4
        st = kk % NSET
        base = (s_ % 4) * 32768
        hi = 4 if base >= 65536 else 0
        base &= 0xffff
        ops = []
        for rb in range(2):
            ops.append((f'ds_read_b128 {a(BFR(st,rb),4)}, v{VBD+hi} offset:{base + rb*4096 + ks*1024}', 4))
        for nb in range(2):
            for aa in range(2):
                ops.append((f'ds_read_b64_tr_b16 {a(AFR(st,nb)+2*aa,2)}, v{VAD+hi+nb} offset:{base + (16*ks+8*aa)*256}', 4))
        return ops
    def mfmas(kk):
        st = kk % NSET
        m = []
        for nb in range(2):
            for rb in range(2):
                acc = ACC + 16 * (2 * rb + nb)
                c = '0' if kk == 0 else v(acc, 16)
                m.append((f'v_mfma_f32_32x32x16_bf16 {v(acc,16)}, {a(AFR(st,nb),4)}, {a(BFR(st,rb),4)}, {c}', 24))
        return m
    e('v_min_u32 v19, 880, v11')
    e('s_lshr_b32 s57, s2, 3')
    e('s_lshl_b32 s57, s57, 4')
    e(f's_lshl_b32 s56, s{S_W}, 2')
    e('s_add_u32 s57, s57, s56')
    e('s_mul_i32 s57, s57, 3584')
    e('s_bfe_u32 s56, s2, 0x20001')
    e('s_mul_i32 s56, s56, 896')
    e('s_add_u32 s57, s57, s56')
    srd(L, 60, 52, 512 * 3584)
    srd(L, 44, 54, 512 * 3584)
    pfops = []
    for r in range(4):
        for sr in (60, 44):
            pfops.append((f'buffer_load_dwordx4 v[28:31], v19, s[{sr}:{sr+3}], s57 offen', 8, ('pf', r)))
        pfops.append(('s_add_u32 s57, s57, 3584', 2))
    n = vq.wait_for(lambda x: x == ('S', 0))
    e(f's_waitcnt vmcnt({n})')
    e('s_barrier')
    dstamp(L, KI, 3)
    if NSET == 3:
        L += [x[0] for x in reads(0)] + [x[0] for x in reads(1)]
        pend = issue(2)
        for kk in range(4 * NST):
            s_, ks = kk // 4, kk % 4
            if kk == 2 * NST: dstamp(L, KI, 4)
            e('s_waitcnt lgkmcnt(6)' if kk + 1 < 4 * NST else 's_waitcnt lgkmcnt(0)')
            if ks == 2 and s_ + 1 < NST:
                n = vq.wait_for(lambda x: x == ('S', s_ + 1))
                if n is not None: e(f's_waitcnt vmcnt({n})')
                e('s_barrier')
                if s_ + 3 < NST:
                    pend += issue(s_ + 3)
                elif s_ + 3 == NST:
                    pend += pfops
            take = []
            if pend:
                cnt = 0
                lim = 4 if s_ == 0 else 2
                while pend and cnt < lim:
                    o = pend.pop(0); take.append(o)
                    if len(o) > 2: cnt += 1
                while pend and len(pend[0]) == 2 and 's57' in pend[0][0]:
                    take.append(pend.pop(0))
            qs = []
            if kk + 2 < 4 * NST:
                qs.append(dict(items=reads(kk + 2), start=0, end=3))
            if take:
                qs.append(dict(items=[(o[0], o[1]) for o in take], start=0, end=3))
            L += interleave(mfmas(kk), qs)
            for o in take:
                if len(o) > 2: vq.issue(o[2])
    else:
        L += [x[0] for x in reads(0)]
        pend = issue(2) + issue(3)
        for kk in range(4 * NST):
            s_, ks = kk // 4, kk % 4
            if kk == 2 * NST: dstamp(L, KI, 4)
            e('s_waitcnt lgkmcnt(0)')
            if ks == 3 and s_ + 1 < NST:
                n = vq.wait_for(lambda x: x == ('S', s_ + 1))
                if n is not None: e(f's_waitcnt vmcnt({n})')
                e('s_barrier')
                if s_ + 4 < NST:
                    pend += issue(s_ + 4)
                elif s_ + 4 == NST:
                    pend += pfops
            take = []
            if pend:
                cnt = 0
                lim = 4 if s_ == 0 else 2
                while pend and (cnt < lim or len(pend[0]) == 2 and False):
                    o = pend.pop(0); take.append(o)
                    if len(o) > 2: cnt += 1
            qs = []
            if kk + 1 < 4 * NST:
                qs.append(dict(items=reads(kk + 1), start=0, end=2))
            if take:
                qs.append(dict(items=[(o[0], o[1]) for o in take], start=0, end=3))
            L += interleave(mfmas(kk), qs)
            for o in take:
                if len(o) > 2: vq.issue(o[2])
    assert not pend
    if CPF2: code_prefetch(L, 'wo', 'ln2_kernel', 'down_kernel', 60, 18, 28, 1, 4)
    dstamp(L, KI, 5)
    e('s_nop 11')
    for rb in range(2):
        for nb in range(2):
            acc = ACC + 16 * (2 * rb + nb)
            if BF16P:
                for b in range(2):
                    pk = 20 + 4 * b
                    for i in range(4):
                        e(f'v_cvt_pk_bf16_f32 v{pk+i}, v{acc+8*b+2*i}, v{acc+8*b+2*i+1}')
                    e(f'buffer_store_dwordx4 {v(pk,4)}, v{VH}, s[{SD}:{SD+3}], s{S_D+2*rb+nb} offen offset:{b*1024}{WSC}')
                e('s_nop 0')
            else:
                for g in range(4):
                    e(f'buffer_store_dwordx4 {v(acc+4*g,4)}, v{VH}, s[{SD}:{SD+3}], s{S_D+2*rb+nb} offen offset:{g*1024}')
    dstamp(L, KI, 6)
    dstamp_store(L, KI, 7)
    prof_end(L, KI, 1)
    e(f'{name}_done:')
    e('s_endpgm')
    L = hoist(L)
    for h in check_hazards(L, name): print('HAZARD', h)
    return L, kernel_desc(name, 96 + 48, 102, 96), f'; @launch kernel={name} grid=(256,1,1) block=(256,1,1) lds=131328'


def gen_ln2r(name='ln2_kernel'):
    L = kernel_header(name)
    e = L.append
    prof_begin(L)
    SP, SX, SM, SH2, SX1 = 8, 12, 16, 20, 24
    e('s_cmp_ge_u32 s2, 256')
    e(f's_cbranch_scc1 {name}_done')
    e(f's_load_dwordx2 s[4:5], s[0:1], {KA["x"]}')
    e(f's_load_dwordx2 s[6:7], s[0:1], {KA["ws"]}')
    e('v_and_b32 v1, 63, v0')
    e('v_lshrrev_b32 v2, 6, v0')
    e('v_and_b32 v3, 7, v1')
    e('v_bfe_u32 v4, v1, 3, 1')
    e('v_bfe_u32 v5, v1, 4, 1')
    e('v_lshrrev_b32 v6, 5, v1')
    e('v_lshl_add_u32 v7, v2, 2, v6')
    e('s_and_b32 s38, s2, 1')
    e('s_lshl_b32 s38, s38, 7')
    e('s_bfe_u32 s39, s2, 0x20001')
    e('s_lshl_b32 s39, s39, 5')
    e('s_add_u32 s38, s38, s39')
    e('s_lshr_b32 s39, s2, 3')
    e('s_add_u32 s38, s38, s39')
    e('s_and_b32 s3, s38, 3')
    e('s_lshl_b32 s3, s3, 3')
    e('v_add_u32 v8, s3, v3')
    e('s_lshr_b32 s28, s38, 2')
    SH_ = 1 if BF16P else 0
    e('v_lshl_add_u32 v9, v4, 5, v8')
    e('v_lshlrev_b32 v9, 4, v9')
    e(f'v_lshl_add_u32 v9, v5, {11-SH_}, v9')
    e(f'v_lshl_add_u32 v9, v7, {12-SH_}, v9')
    e(f'v_add_u32 v10, {0x2000>>SH_}, v9')
    e(f's_lshl_b32 s29, s28, {16-SH_}')
    for ks in range(1, 4):
        e(f's_add_u32 s{29+ks}, s{28+ks}, {(4<<20)>>SH_}')
    e('v_lshlrev_b32 v11, 6, v7')
    e('v_lshl_add_u32 v11, v5, 5, v11')
    e('v_lshl_add_u32 v11, v4, 3, v11')
    e('v_lshl_add_u32 v12, v3, 10, v11')
    e('s_lshl_b32 s33, s38, 13')
    e('s_waitcnt lgkmcnt(0)')
    srd_off(L, SP, 6, PART_OFF, 16 << 20)
    srd(L, SX, 4, 2048 * 1024)
    srd_off(L, SM, 6, MOD_OFF, 6144)
    srd_off(L, SH2, 6, H2_OFF, 2048 * 1024)
    srd_off(L, SX1, 6, X1F_OFF, 2048 * 1024)
    for ks in range(4):
        for i in range(2):
            if BF16P:
                r = 64 + 8 * ks + 4 * i
                e(f'buffer_load_dwordx4 v[{r}:{r+3}], v{9+i}, s[{SP}:{SP+3}], s{29+ks} offen')
                continue
            for aa in range(2):
                r = 32 + 16 * ks + 4 * (2 * i + aa)
                e(f'buffer_load_dwordx4 v[{r}:{r+3}], v{9+i}, s[{SP}:{SP+3}], s{29+ks} offen offset:{aa*1024}')
    for i in range(2):
        for aa in range(2):
            q = 2 * i + aa
            e(f'buffer_load_dwordx2 v[{96+2*q}:{97+2*q}], v12, s[{SX}:{SX+3}], s33 offen offset:{128*i + 16*aa}')
    e('s_movk_i32 s34, 4096')
    for (base, off) in ((104, 2048), (112, 3072), (120, None)):
        for i in range(2):
            for aa in range(2):
                q = 2 * i + aa
                if off is None:
                    e(f'buffer_load_dwordx2 v[{base+2*q}:{base+1+2*q}], v11, s[{SM}:{SM+3}], s34 offen offset:{128*i + 16*aa}')
                else:
                    e(f'buffer_load_dwordx2 v[{base+2*q}:{base+1+2*q}], v11, s[{SM}:{SM+3}], 0 offen offset:{off + 128*i + 16*aa}')
    e('v_lshrrev_b32 v13, 3, v1')
    e('v_lshl_add_u32 v13, v2, 3, v13')
    e('v_lshlrev_b32 v13, 2, v13')
    e('v_lshl_add_u32 v13, v3, 7, v13')
    e('v_lshlrev_b32 v14, 7, v3')
    npf = 0
    if PF_W:
        e(f's_load_dwordx4 s[40:43], s[0:1], {KA["wg"]}')
        e('v_lshlrev_b32 v22, 4, v1')
        e('v_min_u32 v22, 880, v22')
        e('v_readfirstlane_b32 s36, v2')
        e('s_lshr_b32 s37, s2, 3')
        e('s_lshl_b32 s37, s37, 4')
        e('s_lshl_b32 s36, s36, 2')
        e('s_add_u32 s37, s37, s36')
        e('s_mul_i32 s37, s37, 3584')
        e('s_bfe_u32 s36, s2, 0x20001')
        e('s_mul_i32 s36, s36, 896')
        e('s_add_u32 s37, s37, s36')
        e('s_waitcnt lgkmcnt(0)')
        srd(L, 44, 40, 512 * 3584)
        srd(L, 48, 42, 512 * 3584)
        for r in range(4):
            for sr in (44, 48):
                e(f'buffer_load_dwordx4 v[24:27], v22, s[{sr}:{sr+3}], s37 offen')
                npf += 1
            e('s_add_u32 s37, s37, 3584')
    e(f's_waitcnt vmcnt({16+npf})')
    if BF16P:
        for q in range(8):
            e(f'v_lshlrev_b32 v{32+2*q}, 16, v{64+q}')
            e(f'v_and_b32 v{33+2*q}, 0xffff0000, v{64+q}')
        for ks in range(1, 4):
            for q in range(8):
                e(f'v_lshlrev_b32 v16, 16, v{64+8*ks+q}')
                e(f'v_and_b32 v17, 0xffff0000, v{64+8*ks+q}')
                e(f'v_add_f32 v{32+2*q}, v{32+2*q}, v16')
                e(f'v_add_f32 v{33+2*q}, v{33+2*q}, v17')
    else:
        for i in range(16):
            e(f'v_add_f32 v{32+i}, v{32+i}, v{48+i}')
            e(f'v_add_f32 v{64+i}, v{64+i}, v{80+i}')
        for i in range(16):
            e(f'v_add_f32 v{32+i}, v{32+i}, v{64+i}')
    e(f's_waitcnt vmcnt({8+npf})')
    for pr in range(8):
        x0, x1 = 32 + 2 * pr, 33 + 2 * pr
        rnd_pair(e, x0, x1, x0, x1, 15)
        e(f'v_lshlrev_b32 v16, 16, v{104+pr}')
        e(f'v_and_b32 v17, 0xffff0000, v{104+pr}')
        e(f'v_mul_f32 v{x0}, v{x0}, v16')
        e(f'v_mul_f32 v{x1}, v{x1}, v17')
        rnd_pair(e, x0, x1, x0, x1, 15)
        e(f'v_lshlrev_b32 v16, 16, v{96+pr}')
        e(f'v_and_b32 v17, 0xffff0000, v{96+pr}')
        e(f'v_add_f32 v{x0}, v{x0}, v16')
        e(f'v_add_f32 v{x1}, v{x1}, v17')
        e(f'v_cvt_pk_bf16_f32 v{48+pr}, v{x0}, v{x1}')
        e(f'v_lshlrev_b32 v{x0}, 16, v{48+pr}')
        e(f'v_and_b32 v{x1}, 0xffff0000, v{48+pr}')
    e('v_and_b32 v18, 15, v8')
    e('v_lshl_add_u32 v19, v5, 1, v4')
    e('v_lshl_add_u32 v18, v19, 4, v18')
    e('v_lshlrev_b32 v18, 4, v18')
    e('v_lshl_add_u32 v18, v7, 10, v18')
    e('s_lshr_b32 s35, s38, 1')
    e('s_lshl_b32 s35, s35, 14')
    e(f'buffer_store_dwordx4 v[48:51], v18, s[{SX1}:{SX1+3}], s35 offen{LSC}')
    e(f'buffer_store_dwordx4 v[52:55], v18, s[{SX1}:{SX1+3}], s35 offen offset:2048{LSC}')
    e('v_add_f32 v20, v32, v33')
    e('v_mul_f32 v21, v32, v32')
    e('v_add_f32 v22, v34, v35')
    e('v_mul_f32 v23, v33, v33')
    e('v_fmac_f32 v21, v34, v34')
    e('v_fmac_f32 v23, v35, v35')
    for r in range(4, 16, 2):
        e(f'v_add_f32 v20, v20, v{32+r}')
        e(f'v_add_f32 v22, v22, v{33+r}')
        e(f'v_fmac_f32 v21, v{32+r}, v{32+r}')
        e(f'v_fmac_f32 v23, v{33+r}, v{33+r}')
    e('v_add_f32 v20, v20, v22')
    e('v_add_f32 v21, v21, v23')
    e('s_nop 1')
    e('v_add_f32_dpp v22, v20, v20 row_ror:8 row_mask:0xf bank_mask:0xf')
    e('v_add_f32_dpp v23, v21, v21 row_ror:8 row_mask:0xf bank_mask:0xf')
    e('v_mov_b32 v20, v22')
    e('v_mov_b32 v21, v23')
    e('s_nop 1')
    e('v_permlane16_swap_b32 v20, v22')
    e('v_permlane16_swap_b32 v21, v23')
    e('v_add_f32 v20, v20, v22')
    e('v_add_f32 v21, v21, v23')
    e('v_mov_b32 v22, v20')
    e('v_mov_b32 v23, v21')
    e('s_nop 1')
    e('v_permlane32_swap_b32 v20, v22')
    e('v_permlane32_swap_b32 v21, v23')
    e('v_add_f32 v20, v20, v22')
    e('v_add_f32 v21, v21, v23')
    e('v_lshlrev_b32 v13, 5, v3')
    e('v_lshl_add_u32 v14, v2, 3, v13')
    e('ds_write_b64 v14, v[20:21]')
    e('s_waitcnt lgkmcnt(0)')
    e('s_barrier')
    e('ds_read_b128 v[64:67], v13')
    e('ds_read_b128 v[68:71], v13 offset:16')
    e('s_waitcnt lgkmcnt(0)')
    e('v_add_f32 v64, v64, v66')
    e('v_add_f32 v65, v65, v67')
    e('v_add_f32 v68, v68, v70')
    e('v_add_f32 v69, v69, v71')
    e('v_add_f32 v64, v64, v68')
    e('v_add_f32 v65, v65, v69')
    e('v_mul_f32 v20, 0x3b000000, v64')
    e('v_mul_f32 v21, 0x3b000000, v65')
    e('v_fma_f32 v21, -v20, v20, v21')
    e('v_max_f32 v21, 0, v21')
    rnd_pair(e, 20, 21, 20, 21, 15)
    e('v_add_f32 v21, 0x3727c5ac, v21')
    e('v_cvt_pk_bf16_f32 v21, v21, v21')
    e('v_lshlrev_b32 v21, 16, v21')
    e('v_sqrt_f32 v21, v21')
    e('s_nop 0')
    e('v_cvt_pk_bf16_f32 v21, v21, v21')
    e('v_lshlrev_b32 v21, 16, v21')
    e('v_rcp_f32 v21, v21')
    e(f's_waitcnt vmcnt({2+npf})')
    for pr in range(8):
        x0, x1 = 32 + 2 * pr, 33 + 2 * pr
        e(f'v_sub_f32 v{x0}, v{x0}, v20')
        e(f'v_sub_f32 v{x1}, v{x1}, v20')
        rnd_pair(e, x0, x1, x0, x1, 15)
        e(f'v_mul_f32 v{x0}, v{x0}, v21')
        e(f'v_mul_f32 v{x1}, v{x1}, v21')
        rnd_pair(e, x0, x1, x0, x1, 15)
        e(f'v_lshlrev_b32 v16, 16, v{120+pr}')
        e(f'v_and_b32 v17, 0xffff0000, v{120+pr}')
        e('v_add_f32 v16, 1.0, v16')
        e('v_add_f32 v17, 1.0, v17')
        rnd_pair(e, 16, 17, 16, 17, 15)
        e(f'v_mul_f32 v{x0}, v{x0}, v16')
        e(f'v_mul_f32 v{x1}, v{x1}, v17')
        rnd_pair(e, x0, x1, x0, x1, 15)
        e(f'v_lshlrev_b32 v16, 16, v{112+pr}')
        e(f'v_and_b32 v17, 0xffff0000, v{112+pr}')
        e(f'v_add_f32 v{x0}, v{x0}, v16')
        e(f'v_add_f32 v{x1}, v{x1}, v17')
        e(f'v_cvt_pk_bf16_f32 v{56+pr}, v{x0}, v{x1}')
    e(f'buffer_store_dwordx4 v[56:59], v18, s[{SH2}:{SH2+3}], s35 offen{LSC}')
    e(f'buffer_store_dwordx4 v[60:63], v18, s[{SH2}:{SH2+3}], s35 offen offset:2048{LSC}')
    prof_end(L, 4, 1)
    e(f'{name}_done:')
    e('s_endpgm')
    L = hoist(L)
    for h in check_hazards(L, name): print('HAZARD', h)
    return L, kernel_desc(name, 128, 102, 128), f'; @launch kernel={name} grid=(256,1,1) block=(256,1,1) lds=2304'
```

```python
import re

TRANS = ('v_exp_f32', 'v_log_f32', 'v_rcp_f32', 'v_rsq_f32', 'v_sqrt_f32', 'v_sin_f32', 'v_cos_f32', 'v_rcp_iflag_f32')

def v(i, n=1):
    return f'v{i}' if n == 1 else f'v[{i}:{i+n-1}]'
def a(i, n=1):
    return f'a{i}' if n == 1 else f'a[{i}:{i+n-1}]'
def s(i, n=1):
    return f's{i}' if n == 1 else f's[{i}:{i+n-1}]'

_REG = re.compile(r'^(-|abs\()?([vas])(?:(\d+)|\[(\d+):(\d+)\])\)?$')

def regs_of(tok):
    tok = tok.strip()
    tok = tok.strip('|')
    if tok in ('vcc', 'exec', 'm0', 'scc'):
        return {(tok, 0)}
    m = _REG.match(tok)
    if not m:
        return set()
    f = m.group(2)
    if m.group(3) is not None:
        lo = hi = int(m.group(3))
    else:
        lo, hi = int(m.group(4)), int(m.group(5))
    return {(f, i) for i in range(lo, hi + 1)}

class Ins:
    __slots__ = ('text', 'op', 'ops', 'wr', 'rd', 'kind', 'passes', 'srcc', 'states', 'ab')
    def __init__(self, text):
        self.text = text
        t = text.split(';')[0].strip()
        self.kind = None; self.wr = set(); self.rd = set(); self.passes = 0; self.srcc = set(); self.states = 1; self.ab = set()
        if not t or t.endswith(':') or t.startswith('.'):
            self.op = None; self.states = 0
            return
        parts = t.split(None, 1)
        op = parts[0]; self.op = op
        rest = parts[1] if len(parts) > 1 else ''
        ops = []; depth = 0; cur = ''
        for ch in rest:
            if ch == '[' or ch == '(': depth += 1
            if ch == ']' or ch == ')': depth -= 1
            if ch == ',' and depth == 0:
                ops.append(cur.strip()); cur = ''
            else:
                cur += ch
        if cur.strip(): ops.append(cur.strip())
        mods = ''
        if ops:
            sp = ops[-1].split(None, 1)
            ops[-1] = sp[0]
            mods = sp[1] if len(sp) > 1 else ''
        self.ops = ops
        R = [regs_of(o) for o in ops]
        if op.startswith('v_mfma'):
            self.kind = 'mfma'
            self.passes = 8 if '32x32' in op else 4
            self.wr = R[0]; self.rd = R[1] | R[2] | R[3]; self.srcc = R[3]; self.ab = R[1] | R[2]
        elif op.startswith('v_cmp'):
            self.kind = 'valu'; self.wr = R[0]; self.rd = set().union(*R[1:])
        elif op.startswith('v_permlane') and 'swap' in op:
            self.kind = 'valu'; self.wr = R[0] | R[1]; self.rd = R[0] | R[1]
        elif op.startswith('v_'):
            self.kind = 'valu'
            self.wr = set(R[0]); self.rd = set().union(*R[1:]) if len(R) > 1 else set()
            if op.startswith(('v_add_co', 'v_sub_co', 'v_addc_co', 'v_subb_co')):
                self.wr |= R[1]
            if op.startswith(('v_fmac', 'v_dot2c', 'v_pk_fmac')):
                self.rd |= R[0]
            if op.startswith('v_cndmask') and len(ops) == 3:
                self.rd |= {('vcc', 0)}
            if 'dpp' in op or 'row_' in mods or 'quad_perm' in mods:
                self.kind = 'dpp'
        elif op.startswith('ds_read') or op.startswith('ds_bpermute') or op.startswith('ds_swizzle'):
            self.kind = 'ds'; self.wr = R[0]; self.rd = set().union(*R[1:])
        elif op.startswith('ds_'):
            self.kind = 'ds'; self.rd = set().union(*R)
        elif op.startswith('buffer_load') or op.startswith('global_load'):
            self.kind = 'vmem'
            if ' lds' in (' ' + mods) or 'load_lds' in op:
                self.rd = set().union(*R) | {('m0', 0)}
                self.kind = 'dma'
            else:
                self.wr = R[0]; self.rd = set().union(*R[1:])
        elif op.startswith('buffer_store') or op.startswith('global_store'):
            self.kind = 'vstore'; self.rd = set().union(*R)
        elif op.startswith('buffer_atomic') or op.startswith('global_atomic'):
            self.kind = 'vmem'; self.rd = set().union(*R)
            if 'sc0' in mods: self.wr = R[0]
        elif op == 's_nop':
            self.kind = 'salu'; self.states = int(ops[0], 0) + 1
        elif op.startswith(('s_cmp', 's_waitcnt', 's_barrier', 's_branch', 's_cbranch', 's_endpgm', 's_setprio', 's_sleep', 'buffer_wbl2', 'buffer_inv')):
            self.kind = 'salu'; self.rd = set().union(*R) if R else set()
        elif op.startswith('s_load') or op.startswith('s_buffer_load') or op.startswith('s_mem'):
            self.kind = 'smem'; self.wr = R[0]; self.rd = set().union(*R[1:]) if len(R) > 1 else set()
        elif op.startswith('s_'):
            self.kind = 'salu'; self.wr = set(R[0]); self.rd = set().union(*R[1:]) if len(R) > 1 else set()
            if 'saveexec' in op: self.wr |= {('exec', 0)}
        else:
            raise ValueError('unknown instruction ' + text)

def check_hazards(lines, name=''):
    ins = [Ins(l) for l in lines]
    ins = [i for i in ins if i.op]
    out = []
    n = len(ins)
    for j in range(n):
        c = ins[j]
        dist = 0
        for i in range(j - 1, max(-1, j - 24), -1):
            p = ins[i]
            need = 0; why = ''
            isval = lambda k: k in ('valu', 'dpp')
            if isval(p.kind) and c.kind == 'mfma' and (p.wr & c.rd):
                need = 2; why = 'valu->mfma'
            if p.kind == 'mfma':
                big = p.passes == 8
                if c.kind == 'mfma':
                    if p.wr & c.ab:
                        need = max(need, 12 if big else 8); why = 'mfma D->mfma AB'
                    if p.wr & c.srcc and not (p.wr == c.srcc and p.passes == c.passes):
                        need = max(need, 10 if big else 6); why = 'mfma D->mfma C overlap'
                    if (p.wr & c.wr) and not (p.wr & c.srcc):
                        need = max(need, 10 if big else 6); why = 'mfma D->mfma D WAW'
                elif c.kind in ('valu', 'dpp', 'ds', 'vmem', 'vstore', 'dma'):
                    if p.wr & (c.rd | c.wr):
                        need = max(need, 12 if big else 8); why = 'mfma D->' + c.kind
                    if isval(c.kind) and (p.srcc & c.wr):
                        need = max(need, 7 if big else 3); why = 'mfma C WAR valu'
            if isval(p.kind) and p.op.replace('_e32', '').replace('_e64', '') in TRANS and isval(c.kind) and c.op.replace('_e32', '').replace('_e64', '') not in TRANS and (p.wr & c.rd):
                need = max(need, 1); why = 'trans->valu'
            if isval(p.kind) and c.op.startswith('v_permlane') and (p.wr & c.rd):
                need = max(need, 2); why = 'valu->permlane'
            if isval(p.kind) and c.kind == 'dpp' and (p.wr & c.rd):
                need = max(need, 2); why = 'valu->dpp'
            if isval(p.kind) and c.op.startswith(('v_readfirstlane', 'v_readlane')) and (p.wr & c.rd):
                need = max(need, 1); why = 'valu->readlane'
            if isval(p.kind):
                sw = {r for r in p.wr if r[0] in ('s', 'vcc')}
                if sw and c.kind in ('vmem', 'vstore', 'dma') and (sw & c.rd):
                    need = max(need, 5); why = 'valu sgpr->vmem'
                if sw and isval(c.kind) and (sw & c.rd):
                    need = max(need, 2); why = 'valu sgpr->valu'
            if p.kind == 'salu' and (('m0', 0) in p.wr) and c.kind == 'dma':
                need = max(need, 1); why = 'm0->dma'
            if p.kind == 'vstore' and ('x4' in p.op or 'x3' in p.op) and isval(c.kind):
                data = regs_of(p.ops[0]) if p.op.startswith('buffer') else regs_of(p.ops[1])
                if data & c.wr:
                    need = max(need, 2); why = 'store data WAR'
            if need > dist:
                out.append(f'{name}: hazard {why}: need {need} have {dist}: [{p.text.strip()}] -> [{c.text.strip()}]')
            dist += p.states
            if dist >= 20: break
    return out

class Q:
    def __init__(self, maxc):
        self.items = []; self.maxc = maxc
    def issue(self, tag):
        self.items.append(tag)
    def wait_for(self, pred):
        last = -1
        for i, t in enumerate(self.items):
            if pred(t): last = i
        if last < 0:
            return None
        n = len(self.items) - 1 - last
        n = min(n, self.maxc)
        self.items = self.items[len(self.items) - n:] if n > 0 else []
        return n
    def copy(self):
        q = Q(self.maxc); q.items = list(self.items); return q

def kernel_header(name):
    return [f'.globl {name}', '.p2align 8', f'.type {name},@function', f'{name}:']

def kernel_desc(name, vgpr, sgpr, accum):
    return [f'.amdhsa_kernel {name}',
            f'  .amdhsa_next_free_vgpr {vgpr}',
            f'  .amdhsa_next_free_sgpr {sgpr}',
            f'  .amdhsa_accum_offset {accum}',
            '  .amdhsa_group_segment_fixed_size 0',
            '  .amdhsa_kernarg_size 112',
            '  .amdhsa_user_sgpr_count 2',
            '  .amdhsa_user_sgpr_kernarg_segment_ptr 1',
            '  .amdhsa_system_sgpr_workgroup_id_x 1',
            '  .amdhsa_float_denorm_mode_32 3',
            '.end_amdhsa_kernel']

def srd(L, d, base, nbytes):
    L.append(f's_mov_b32 s{d}, s{base}')
    L.append(f's_and_b32 s{d+1}, s{base+1}, 0xffff')
    L.append(f's_mov_b32 s{d+2}, {nbytes}')
    L.append(f's_mov_b32 s{d+3}, 0x00020000')

def srd_off(L, d, base, off, nbytes):
    L.append(f's_add_u32 s{d}, s{base}, {off}')
    L.append(f's_addc_u32 s{d+1}, s{base+1}, 0')
    L.append(f's_and_b32 s{d+1}, s{d+1}, 0xffff')
    L.append(f's_mov_b32 s{d+2}, {nbytes}')
    L.append(f's_mov_b32 s{d+3}, 0x00020000')

PROF = False
PROF_OFF = 96 << 20
def prof_begin(L):
    import asmlib as _a
    global PROF
    PROF = _a.PROF
    if PROF:
        L.append('s_memrealtime s[90:91]')

def prof_end(L, kidx, vtmp=1):
    import asmlib as _a
    global PROF
    PROF = _a.PROF
    if not PROF: return
    e = L.append
    e('s_waitcnt vmcnt(0) lgkmcnt(0)')
    e('s_memrealtime s[92:93]')
    e('s_load_dwordx2 s[94:95], s[0:1], 104')
    e('s_waitcnt lgkmcnt(0)')
    e(f's_add_u32 s96, s94, {PROF_OFF + kidx * 65536}')
    e('s_addc_u32 s97, s95, 0')
    e('s_and_b32 s97, s97, 0xffff')
    e('s_mov_b32 s98, 65536')
    e('s_mov_b32 s99, 0x00020000')
    e('s_mov_b64 exec, -1')
    e(f'v_lshrrev_b32 v{vtmp}, 6, v0')
    e(f'v_lshlrev_b32 v{vtmp}, 3, v{vtmp}')
    e('s_lshl_b32 s100, s2, 6')
    e(f'v_mov_b32 v{vtmp+1}, s90')
    e(f'v_mov_b32 v{vtmp+2}, s92')
    e(f'buffer_store_dwordx2 v[{vtmp+1}:{vtmp+2}], v{vtmp}, s[96:99], s100 offen')

STAMPK = None
STAMP_OFF = 100 << 20
STAMPI = 's_memtime'
STAMPB = 64
def dstamp(L, kidx, i):
    import asmlib as _a
    if _a.STAMPK == kidx:
        L.append(f'{_a.STAMPI} s[{_a.STAMPB+2*i}:{_a.STAMPB+1+2*i}]')

def dstamp_store(L, kidx, n, vtmp=1):
    import asmlib as _a
    if _a.STAMPK != kidx: return
    e = L.append
    e('s_waitcnt vmcnt(0) lgkmcnt(0)')
    e(f'{_a.STAMPI} s[{_a.STAMPB+2*n}:{_a.STAMPB+1+2*n}]')
    e('s_load_dwordx2 s[94:95], s[0:1], 104')
    e('s_waitcnt lgkmcnt(0)')
    e(f's_add_u32 s96, s94, {STAMP_OFF}')
    e('s_addc_u32 s97, s95, 0')
    e('s_and_b32 s97, s97, 0xffff')
    e(f's_mov_b32 s98, {1<<20}')
    e('s_mov_b32 s99, 0x00020000')
    e('s_mov_b64 exec, -1')
    e(f'v_lshrrev_b32 v{vtmp}, 6, v0')
    e(f'v_lshlrev_b32 v{vtmp}, 6, v{vtmp}')
    e('s_lshl_b32 s100, s2, 9')
    for i in range(n + 1):
        e(f'v_mov_b32 v{vtmp+1}, s{_a.STAMPB+2*i}')
        e(f'buffer_store_dword v{vtmp+1}, v{vtmp}, s[96:99], s100 offen offset:{4*i}')

CLAIM = True
def claim(L, name, lds_off, base=92, mid=None, vb=1):
    import asmlib as _a
    e = L.append
    if not _a.CLAIM:
        e('s_cmp_ge_u32 s2, 256')
        e(f's_cbranch_scc1 {name}_done')
        if mid: L += mid
        return
    b = base
    e('; CLAIM_BEGIN')
    e(f's_load_dwordx2 s[{b+4}:{b+5}], s[0:1], 96')
    e(f's_getreg_b32 s{b+6}, hwreg(HW_REG_XCC_ID)')
    e(f'v_lshrrev_b32 v{vb}, 6, v0')
    e(f's_and_b32 s{b+6}, s{b+6}, 7')
    e(f'v_readfirstlane_b32 s{b+7}, v{vb}')
    e(f'v_mov_b32 v{vb+1}, 1')
    e(f'v_mov_b32 v{vb+2}, 0')
    e('s_mov_b32 s3, 8')
    e('s_waitcnt lgkmcnt(0)')
    e(f's_mov_b32 s{b}, s{b+4}')
    e(f's_and_b32 s{b+1}, s{b+5}, 0xffff')
    e(f's_mov_b32 s{b+2}, 256')
    e(f's_mov_b32 s{b+3}, 0x00020000')
    e(f's_cmp_lg_u32 s{b+7}, 0')
    e(f's_cbranch_scc1 {name}_cl_mid')
    e('s_mov_b64 exec, 1')
    e(f's_lshl_b32 s{b+4}, s{b+6}, 5')
    e(f'buffer_atomic_add v{vb+1}, v{vb+2}, s[{b}:{b+3}], s{b+4} offen sc0 sc1')
    e('s_mov_b64 exec, -1')
    e(f'{name}_cl_mid:')
    e('; CLAIM_MID')
    if mid: L += mid
    e(f's_cmp_lg_u32 s{b+7}, 0')
    e(f's_cbranch_scc1 {name}_cl_wait')
    e('s_mov_b64 exec, 1')
    e(f'{name}_cl_try:')
    e('s_waitcnt vmcnt(0)')
    e(f'v_readfirstlane_b32 s{b+5}, v{vb+1}')
    e(f's_cmp_lt_u32 s{b+5}, 32')
    e(f's_cbranch_scc1 {name}_cl_got')
    e(f's_mov_b32 s{b+5}, 32')
    e('s_sub_u32 s3, s3, 1')
    e('s_cmp_eq_u32 s3, 0')
    e(f's_cbranch_scc1 {name}_cl_got')
    e(f's_add_u32 s{b+6}, s{b+6}, 1')
    e(f's_and_b32 s{b+6}, s{b+6}, 7')
    e(f's_lshl_b32 s{b+4}, s{b+6}, 5')
    e(f'v_mov_b32 v{vb+1}, 1')
    e(f'buffer_atomic_add v{vb+1}, v{vb+2}, s[{b}:{b+3}], s{b+4} offen sc0 sc1')
    e(f's_branch {name}_cl_try')
    e(f'{name}_cl_got:')
    e(f's_lshl_b32 s{b+5}, s{b+5}, 3')
    e(f's_add_u32 s{b+5}, s{b+5}, s{b+6}')
    e(f'v_mov_b32 v{vb+1}, s{b+5}')
    e(f'v_mov_b32 v{vb+2}, {lds_off}')
    e(f'ds_write_b32 v{vb+2}, v{vb+1}')
    e('s_waitcnt lgkmcnt(0)')
    e('s_mov_b64 exec, -1')
    e(f'{name}_cl_wait:')
    e('s_barrier')
    e(f'v_mov_b32 v{vb+2}, {lds_off}')
    e(f'ds_read_b32 v{vb+1}, v{vb+2}')
    e('s_waitcnt lgkmcnt(0)')
    e(f'v_readfirstlane_b32 s2, v{vb+1}')
    e('s_nop 3')
    e('s_cmp_ge_u32 s2, 256')
    e(f's_cbranch_scc1 {name}_done')
    e('; CLAIM_END')


def hoist(L):
    if '; CLAIM_END' not in L: return L
    ib = L.index('; CLAIM_BEGIN'); im = L.index('; CLAIM_MID'); ie = L.index('; CLAIM_END')
    claim_regs = set()
    for l in L[ib:ie]:
        i = Ins(l)
        if i.op: claim_regs |= i.wr
    tainted = {('s', 2)}
    blocked = set()
    loads = []; mids = []; rest = []
    k = ie + 1
    while k < len(L):
        l = L[k]; i = Ins(l)
        if i.op is None and l.strip().endswith(':'): break
        if i.op is None:
            rest.append(l); k += 1; continue
        if i.kind in ('vmem', 'dma', 'vstore', 'ds', 'mfma') or i.op.startswith(('s_cbranch', 's_branch', 's_barrier', 's_cmp', 's_cselect', 's_memtime', 's_memrealtime')):
            break
        if i.op == 's_waitcnt':
            rest.append(l); k += 1; continue
        indep = not (i.rd & tainted) and not (i.wr & blocked) and not (i.rd & {r for r in blocked if False}) and not ((i.wr | i.rd) & claim_regs)
        if indep and i.kind == 'smem':
            loads.append(l)
        elif indep:
            mids.append(l)
        else:
            tainted |= i.wr
            blocked |= i.wr | i.rd
            rest.append(l)
        k += 1
    return L[:ib] + loads + L[ib:im + 1] + mids + L[im + 1:ie + 1] + rest + L[k:]


CODEPF = False
def code_prefetch(L, tag, first_label, last_label, sp, vt, vdst, nloads, stride_per_wg):
    import asmlib as _a
    if not _a.CODEPF: return 0
    e = L.append
    e(f's_getpc_b64 s[{sp}:{sp+1}]')
    e(f'cpf_{tag}:')
    e(f's_add_u32 s{sp}, s{sp}, {first_label}-cpf_{tag}')
    e(f's_addc_u32 s{sp+1}, s{sp+1}, ({first_label}-cpf_{tag})>>31')
    e(f's_lshr_b32 s{sp+2}, s2, 3')
    e(f's_mul_i32 s{sp+2}, s{sp+2}, {stride_per_wg*1024}')
    e(f'v_lshrrev_b32 v{vt}, 6, v0')
    e(f'v_mul_u32_u24 v{vt}, {nloads*1024 - 64*16}, v{vt}')
    e(f'v_lshl_add_u32 v{vt}, v0, 4, v{vt}')
    e(f'v_add_u32 v{vt}, s{sp+2}, v{vt}')
    for i in range(nloads):
        e(f'v_min_u32 v{vt+1}, {last_label}-{first_label}-16, v{vt}')
        e(f'global_load_dwordx4 v[{vdst}:{vdst+3}], v{vt+1}, s[{sp}:{sp+1}]')
        if i + 1 < nloads: e(f'v_add_u32 v{vt}, 1024, v{vt}')
    return nloads
```

```python
from asmlib import *
import asmlib
from k_small import *

PFMODE = 'wq'
CPF_MODE = 'start'
TLBW = 0
def gen_pre3(name='pre_kernel'):
    L = kernel_header(name)
    e = L.append
    prof_begin(L)
    asmlib.STAMPB = 76
    dstamp(L, 1, 0)
    SX, SM, SH, SWQ, SKK, SVV, SCV, SWM = 8, 12, 16, 20, 24, 40, 52, 56
    claim(L, name, 16384, vb=172)
    if CPF_MODE == 'start': code_prefetch(L, 'pre', 'pre_kernel', 'code_end', 60, 168, 172, 1, 8)
    e(f's_load_dwordx2 s[4:5], s[0:1], {KA["x"]}')
    e(f's_load_dwordx2 s[66:67], s[0:1], {KA["ws"]}')
    e(f's_load_dwordx4 s[68:71], s[0:1], {KA["c"]}')
    e(f's_load_dwordx4 s[44:47], s[0:1], {KA["k"]}')
    e(f's_load_dwordx2 s[48:49], s[0:1], {KA["wq"]}')
    e('v_lshrrev_b32 v2, 6, v0')
    e('v_and_b32 v1, 63, v0')
    e('s_lshr_b32 s31, s2, 3')
    e('v_readfirstlane_b32 s36, v2')
    e('s_and_b32 s28, s2, 1')
    e('s_lshl_b32 s28, s28, 3')
    e('s_and_b32 s30, s31, 7')
    e('s_add_u32 s28, s28, s30')
    e('s_bfe_u32 s29, s2, 0x20001')
    e('s_lshl_b32 s30, s29, 2')
    e('s_lshr_b32 s37, s31, 3')
    e('s_add_u32 s37, s37, s30')
    e('v_and_b32 v3, 3, v0')
    e('v_lshrrev_b32 v4, 2, v0')
    e('s_movk_i32 s3, 6144')
    e('v_mul_lo_u32 v5, v4, s3')
    e('v_lshl_add_u32 v5, v3, 4, v5')
    e('v_lshlrev_b32 v6, 1, v4')
    e('v_and_b32 v7, 7, v1')
    e('v_lshrrev_b32 v8, 3, v1')
    e('v_lshl_add_u32 v9, v2, 4, v8')
    e('v_lshlrev_b32 v10, 10, v9')
    e('v_lshl_add_u32 v10, v7, 4, v10')
    e('s_lshl_b32 s30, s28, 17')
    e('s_add_u32 s32, s30, 8192')
    e('s_lshl_b32 s72, s37, 6')
    for i in range(1, 4):
        e(f's_add_u32 s{72+i}, s{71+i}, {128*6144}')
    e('s_waitcnt lgkmcnt(0)')
    srd(L, SX, 4, 2048 * 1024)
    srd(L, SCV, 68, 1024)
    srd(L, SWM, 70, 512 * 6144)
    srd_off(L, SM, 66, MOD_OFF, 6144)
    srd_off(L, SH, 66, H1_OFF, 2048 * 1024)
    if TLBW:
        e('s_cmp_lg_u32 s36, 7')
        e(f's_cbranch_scc1 {name}_notlb')
        e(f's_load_dwordx2 s[62:63], s[0:1], {KA["out"]}')
        srd(L, 80, 66, 64 << 20)
        srd(L, 84, 44, 16 << 20)
        srd(L, 88, 46, 16 << 20)
        e(f'v_mul_u32_u24 v171, {TLBW >> 4}, v1')
        e('v_lshlrev_b32 v171, 4, v171')
        e('s_lshr_b32 s60, s2, 3')
        e(f's_mul_i32 s60, s60, {TLBW * 64}')
        e('s_waitcnt lgkmcnt(0)')
        srd(L, 92, 62, 2 << 20)
        for sr in (80, 84, 88, 92):
            e(f'buffer_load_dword v169, v171, s[{sr}:{sr+3}], s60 offen')
        e(f'{name}_notlb:')
    dstamp(L, 1, 1)
    for i in range(4):
        e(f'buffer_load_ushort v{12+i}, v6, s[{SCV}:{SCV+3}], 0 offen offset:{256*i}')
    for sl in range(2):
        for i in range(4):
            r = 16 + 16 * sl + 4 * i
            e(f'buffer_load_dwordx4 v[{r}:{r+3}], v5, s[{SWM}:{SWM+3}], s{72+i} offen offset:{1024*sl}')
    for g in range(2):
        for sg in range(8):
            r = 64 + 32 * g + 4 * sg
            e(f'buffer_load_dwordx4 v[{r}:{r+3}], v10, s[{SX}:{SX+3}], s{30 if g == 0 else 32} offen offset:{128*sg}')
    e('s_and_b32 s33, s2, 7')
    e('s_lshl_b32 s33, s33, 5')
    e('s_add_u32 s33, s33, s31')
    e('s_lshl_b32 s38, s33, 4')
    e('s_add_u32 s38, s38, 2048')
    e('v_mul_lo_u32 v11, v0, s3')
    e('v_lshlrev_b32 v52, 1, v0')
    e(f'buffer_load_ushort v53, v52, s[{SCV}:{SCV+3}], 0 offen')
    e(f'buffer_load_dwordx4 v[48:51], v11, s[{SWM}:{SWM+3}], s38 offen')
    srd(L, SWQ, 48, 512 * 8192 if PFMODE in ('all', 'wq') else 0)
    srd(L, SKK, 44, (16 << 20) if PFMODE == 'all' else 0)
    srd(L, SVV, 46, (16 << 20) if PFMODE == 'all' else 0)
    e('v_lshlrev_b32 v170, 4, v1')
    e('s_lshl_b32 s34, s31, 4')
    e('s_lshl_b32 s35, s36, 1')
    e('s_add_u32 s34, s34, s35')
    e('s_lshl_b32 s34, s34, 13')
    e('s_lshl_b32 s35, s29, 11')
    e('s_add_u32 s34, s34, s35')
    for r in range(2):
        for hf in range(2):
            e(f'buffer_load_dwordx4 v[172:175], v170, s[{SWQ}:{SWQ+3}], s34 offen offset:{hf*1024}')
        e('s_add_u32 s34, s34, 8192')
    e('s_lshl_b32 s34, s29, 3')
    e('s_lshr_b32 s35, s31, 2')
    e('s_add_u32 s34, s34, s35')
    e('s_lshl_b32 s34, s34, 19')
    e('s_and_b32 s35, s31, 3')
    e('s_lshl_b32 s35, s35, 3')
    e('s_add_u32 s35, s35, s36')
    e('s_lshl_b32 s35, s35, 10')
    e('s_add_u32 s34, s34, s35')
    for sr in (SKK, SVV):
        e(f'buffer_load_dwordx4 v[172:175], v170, s[{sr}:{sr+3}], s34 offen')
    dstamp(L, 1, 2)
    e('s_waitcnt vmcnt(32)')
    for i in range(4):
        e(f'v_lshlrev_b32 v{12+i}, 16, v{12+i}')
    for i in range(4):
        e(f'v_mul_f32 v{128+i}, 0x{NLOG2E:08x}, v{12+i}')
    for i in range(4):
        e(f'v_exp_f32 v{128+i}, v{128+i}')
    for i in range(4):
        e(f'v_add_f32 v{128+i}, 1.0, v{128+i}')
    for i in range(4):
        e(f'v_rcp_f32 v{128+i}, v{128+i}')
    for i in range(4):
        e(f'v_mul_f32 v{128+i}, v{12+i}, v{128+i}')
    for i in range(4):
        e(f'v_cvt_pk_bf16_f32 v{128+i}, v{128+i}, v{128+i}')
    for i in range(4):
        e(f'v_lshlrev_b32 v{128+i}, 16, v{128+i}')
    def slab(base, accb):
        for i in range(4):
            for j in range(4):
                w = base + 4 * i + j
                e(f'v_lshlrev_b32 v132, 16, v{w}')
                e(f'v_and_b32 v133, 0xffff0000, v{w}')
                if i == 0:
                    e(f'v_mul_f32 v{accb+2*j}, v132, v{128+i}')
                    e(f'v_mul_f32 v{accb+2*j+1}, v133, v{128+i}')
                else:
                    e(f'v_fmac_f32 v{accb+2*j}, v132, v{128+i}')
                    e(f'v_fmac_f32 v{accb+2*j+1}, v133, v{128+i}')
        e('s_nop 1')
        for j in range(8):
            e(f'v_add_f32_dpp v{134+j}, v{accb+j}, v{accb+j} row_ror:4 row_mask:0xf bank_mask:0xf')
        e('s_nop 1')
        for j in range(8):
            e(f'v_add_f32_dpp v{accb+j}, v{134+j}, v{134+j} row_ror:8 row_mask:0xf bank_mask:0xf')
    e('v_lshrrev_b32 v142, 4, v0')
    e('v_mul_u32_u24 v142, 384, v142')
    e('v_lshl_add_u32 v142, v3, 5, v142')
    e('s_waitcnt vmcnt(24)')
    dstamp(L, 1, 3)
    slab(16, 144); slab(32, 152)
    e('ds_write_b128 v142, v[144:147] offset:2048')
    e('ds_write_b128 v142, v[148:151] offset:2064')
    e('ds_write_b128 v142, v[152:155] offset:2176')
    e('ds_write_b128 v142, v[156:159] offset:2192')
    e('v_mov_b32 v143, 0x3f803f80')
    e('s_waitcnt vmcnt(8)')
    dstamp(L, 1, 4)
    for g in range(2):
        a0, a1 = 160 + 2 * g, 161 + 2 * g
        e(f'v_mov_b32 v{a0}, 0')
        e(f'v_mov_b32 v{a1}, 0')
        for q in range(32):
            r = 64 + 32 * g + q
            e(f'v_dot2c_f32_bf16 v{a0}, v{r}, v143')
            e(f'v_dot2c_f32_bf16 v{a1}, v{r}, v{r}')
    e('s_nop 3')
    for k in range(4):
        e(f'v_add_f32_dpp v{164+k}, v{160+k}, v{160+k} quad_perm:[1,0,3,2] row_mask:0xf bank_mask:0xf')
    e('s_nop 1')
    for k in range(4):
        e(f'v_add_f32_dpp v{160+k}, v{164+k}, v{164+k} quad_perm:[2,3,0,1] row_mask:0xf bank_mask:0xf')
    e('s_nop 1')
    for k in range(4):
        e(f'v_add_f32_dpp v{164+k}, v{160+k}, v{160+k} row_half_mirror row_mask:0xf bank_mask:0xf')
    for g in range(2):
        sm, sq = 164 + 2 * g, 165 + 2 * g
        e(f'v_mul_f32 v{sm}, 0x3b000000, v{sm}')
        e(f'v_mul_f32 v{sq}, 0x3b000000, v{sq}')
        e(f'v_fma_f32 v{sq}, -v{sm}, v{sm}, v{sq}')
        e(f'v_max_f32 v{sq}, 0, v{sq}')
        rnd_pair(e, sm, sq, sm, sq, 168)
        e(f'v_add_f32 v{sq}, 0x3727c5ac, v{sq}')
        e(f'v_cvt_pk_bf16_f32 v{sq}, v{sq}, v{sq}')
        e(f'v_lshlrev_b32 v{sq}, 16, v{sq}')
        e(f'v_sqrt_f32 v{sq}, v{sq}')
        e('s_nop 0')
        e(f'v_cvt_pk_bf16_f32 v{sq}, v{sq}, v{sq}')
        e(f'v_lshlrev_b32 v{sq}, 16, v{sq}')
        e(f'v_rcp_f32 v{sq}, v{sq}')
    e('v_lshlrev_b32 v169, 3, v9')
    e('s_nop 0')
    e('ds_write_b64 v169, v[164:165]')
    e('ds_write_b64 v169, v[166:167] offset:64')
    e('s_waitcnt vmcnt(6)')
    e('v_lshlrev_b32 v53, 16, v53')
    e(f'v_mul_f32 v54, 0x{NLOG2E:08x}, v53')
    e('v_exp_f32 v54, v54')
    e('s_nop 0')
    e('v_add_f32 v54, 1.0, v54')
    e('v_rcp_f32 v54, v54')
    e('s_nop 0')
    e('v_mul_f32 v54, v53, v54')
    e('v_cvt_pk_bf16_f32 v54, v54, v54')
    e('v_lshlrev_b32 v54, 16, v54')
    for j in range(4):
        e(f'v_lshlrev_b32 v132, 16, v{48+j}')
        e(f'v_and_b32 v133, 0xffff0000, v{48+j}')
        e(f'v_mul_f32 v{144+2*j}, v132, v54')
        e(f'v_mul_f32 v{145+2*j}, v133, v54')
    for (src, dst, rr) in ((144, 134, 1), (134, 144, 2), (144, 134, 4), (134, 144, 8)):
        e('s_nop 1')
        for j in range(8):
            e(f'v_add_f32_dpp v{dst+j}, v{src+j}, v{src+j} row_ror:{rr} row_mask:0xf bank_mask:0xf')
    e('v_lshrrev_b32 v55, 4, v0')
    e('v_mul_u32_u24 v55, 384, v55')
    e('ds_write_b128 v55, v[144:147] offset:2304')
    e('ds_write_b128 v55, v[148:151] offset:2320')
    e('v_and_b32 v12, 31, v1')
    e('v_lshrrev_b32 v13, 5, v1')
    e('v_lshrrev_b32 v14, 1, v2')
    e('v_lshl_add_u32 v14, v14, 5, v12')
    e('v_and_b32 v15, 1, v2')
    e('v_lshlrev_b32 v16, 5, v15')
    e('v_lshl_add_u32 v16, v13, 4, v16')
    e('v_lshl_add_u32 v17, v14, 10, v16')
    e('s_add_u32 s33, s30, s72')
    e(f'buffer_load_dwordx4 v[20:23], v17, s[{SX}:{SX+3}], s33 offen')
    e('s_waitcnt lgkmcnt(0)')
    e('s_barrier')
    dstamp(L, 1, 5)
    e('v_and_b32 v24, 127, v0')
    e('v_min_u32 v24, 71, v24')
    e('v_lshrrev_b32 v25, 7, v0')
    e('v_mul_u32_u24 v26, 3072, v25')
    e('v_lshl_add_u32 v26, v24, 2, v26')
    for p in range(8):
        e(f'ds_read_b32 v{28+p}, v26 offset:{2048 + 384*p}')
    e('v_lshlrev_b32 v27, 3, v14')
    e('ds_read_b64 v[40:41], v27')
    e('s_waitcnt lgkmcnt(1)')
    for p in range(1, 8):
        e(f'v_add_f32 v28, v28, v{28+p}')
    e('v_lshlrev_b32 v26, 9, v25')
    e('v_lshl_add_u32 v26, v24, 2, v26')
    e('ds_write_b32 v26, v28 offset:14336')
    e('s_waitcnt lgkmcnt(0)')
    e('s_barrier')
    e('v_lshlrev_b32 v26, 1, v16')
    for sl in range(2):
        for pt in range(4):
            for hf in range(2):
                r = 64 + 32 * sl + 8 * pt + 4 * hf
                e(f'ds_read_b128 v[{r}:{r+3}], v26 offset:{14336 + 512*pt + 128*sl + 16*hf}')
    e('s_cmp_lg_u32 s36, 0')
    e(f's_cbranch_scc1 {name}_no3c')
    e('v_and_b32 v42, 3, v0')
    e('v_lshlrev_b32 v43, 3, v42')
    for pt in range(4):
        e(f'ds_read_b64 v[{44+2*pt}:{45+2*pt}], v43 offset:{14336 + 512*pt + 256}')
    e('s_waitcnt lgkmcnt(0)')
    for pt in range(1, 4):
        e(f'v_add_f32 v44, v44, v{44+2*pt}')
        e(f'v_add_f32 v45, v45, v{45+2*pt}')
    e('v_cvt_pk_bf16_f32 v44, v44, v45')
    e('v_lshlrev_b32 v43, 2, v42')
    e(f'buffer_store_dword v44, v43, s[{SM}:{SM+3}], s38 offen')
    e(f'{name}_no3c:')
    e('s_waitcnt lgkmcnt(0)')
    for sl in range(2):
        b = 64 + 32 * sl
        for k in range(8):
            e(f'v_add_f32 v{b+k}, v{b+k}, v{b+8+k}')
            e(f'v_add_f32 v{b+16+k}, v{b+16+k}, v{b+24+k}')
        for k in range(8):
            e(f'v_add_f32 v{b+k}, v{b+k}, v{b+16+k}')
    for k in range(0, 8, 2):
        rnd_pair(e, 64 + k, 65 + k, 64 + k, 65 + k, 50)
        rnd_pair(e, 96 + k, 97 + k, 96 + k, 97 + k, 50)
        e(f'v_add_f32 v{96+k}, 1.0, v{96+k}')
        e(f'v_add_f32 v{97+k}, 1.0, v{97+k}')
        rnd_pair(e, 96 + k, 97 + k, 96 + k, 97 + k, 50)
    e('s_waitcnt vmcnt(0)' if False else 's_waitcnt vmcnt(1)')
    e('s_waitcnt vmcnt(0)')
    for pr in range(4):
        x0, x1 = 52 + 2 * pr, 53 + 2 * pr
        e(f'v_lshlrev_b32 v{x0}, 16, v{20+pr}')
        e(f'v_and_b32 v{x1}, 0xffff0000, v{20+pr}')
        e(f'v_sub_f32 v{x0}, v{x0}, v40')
        e(f'v_sub_f32 v{x1}, v{x1}, v40')
        rnd_pair(e, x0, x1, x0, x1, 50)
        e(f'v_mul_f32 v{x0}, v{x0}, v41')
        e(f'v_mul_f32 v{x1}, v{x1}, v41')
        rnd_pair(e, x0, x1, x0, x1, 50)
        e(f'v_mul_f32 v{x0}, v{x0}, v{96+2*pr}')
        e(f'v_mul_f32 v{x1}, v{x1}, v{97+2*pr}')
        rnd_pair(e, x0, x1, x0, x1, 50)
        e(f'v_add_f32 v{x0}, v{x0}, v{64+2*pr}')
        e(f'v_add_f32 v{x1}, v{x1}, v{65+2*pr}')
        e(f'v_cvt_pk_bf16_f32 v{60+pr}, v{x0}, v{x1}')
    e('v_lshrrev_b32 v24, 1, v2')
    e('v_lshlrev_b32 v24, 15, v24')
    e('v_lshl_add_u32 v24, v15, 10, v24')
    e('v_lshl_add_u32 v24, v1, 4, v24')
    e('s_lshl_b32 s34, s28, 17')
    e('s_lshl_b32 s35, s37, 11')
    e('s_add_u32 s34, s34, s35')
    e(f'buffer_store_dwordx4 v[60:63], v24, s[{SH}:{SH+3}], s34 offen')
    if CPF_MODE == 'end': code_prefetch(L, 'pre', 'attn_kernel', 'code_end', 40, 100, 104, 1, 8)
    dstamp(L, 1, 6)
    dstamp_store(L, 1, 7)
    asmlib.STAMPB = 64
    return L, e, locals()

def gen_pre3_full(name='pre_kernel', pf_early=True):
    L, e, lc = gen_pre3(name)
    prof_end(L, 1, 1)
    e(f'{name}_done:')
    e('s_endpgm')
    L = hoist(L)
    for h in check_hazards(L, name): print('HAZARD', h)
    return L, kernel_desc(name, 176, 102, 176), f'; @launch kernel={name} grid=(256,1,1) block=(512,1,1) lds=16640'
```

```python
from asmlib import *
import asmlib
from k_small import *
from k_attn import interleave, f2u
import math

def O_(db, qb): return 16 * (2 * db + qb)
def Q_(qb, s_): return 128 + 4 * (8 * qb + s_)
def KF(s_): return 192 + 4 * s_
def VF(ks, db): return 224 + 4 * (4 * ks + db)
KAD = 16
VAD = 24
KADH = 210
VADH = 218
WAD = 28
WAD2 = 200
def S_(p, qb): return 32 + 32 * p + 16 * qb
def P_(p, qb): return 96 + 16 * p + 8 * qb
def NEGM(qb): return 128 + 16 * qb
LSUM = 160
LB = 162
TMP = 172
MX = 180
VKD0, VKD1, VVD, VWD, VH = 182, 183, 184, 185, 186
RT = 188
PFD = 204
VPF = 208
def QA(db, qb): return 32 + 16 * (2 * db + qb)
def HF(c, ks, qb): return 32 * (c % 4) + 8 * ks + 4 * qb
def WF(st, db): return 192 + 16 * st + 4 * db

SK, SV, SW, SH, SO = 8, 12, 16, 20, 24
S_W, S_HEAD, S_QB, S_CNT, S_KOFF, S_VOFF, S_KSLOT, S_WB, S_WBV, S_THR, S_T0, S_T1 = 28, 29, 30, 31, 32, 33, 34, 35, 36, 37, 38, 39
S_RET = 40
S_H0, S_H1 = 42, 43
S_O0, S_O1, S_O2, S_O3 = 44, 45, 46, 47
S_VSLOT, S_PF = 56, 57
S_PW = 58
SPFS = [4, 48, 52, 60]

THRESH = 2.0 ** 80
BIAS = 96.0
QSCALE = (128 ** -0.5) * 1.4426950408889634
DK, DV = 5, 4
PREFETCH = True
USE_PK = False
TWOACC = False
ABL = set()

HC_LOC = [(hc // 2) * 16384 + (hc % 2) * 2048 for hc in range(16)]
KV_AT = {4: [0, 1], 5: [2], 6: [3], 7: [4]}
OSC = ' sc0 sc1'
BAR2 = False
TUNE = dict(kspan=9, dstart=4, dend=20, vspan=11, lmpos=6)
LMODE = 'valu'
ONES = 168
LM = 222

CV, CE, CD, CM, CS = 4, 8, 4, 16, 4

LACC = 164
def softmax_ops(p, first=False):
    hyb = LMODE == 'hybrid'
    ops = []
    if not first:
        ops.append((f'v_add_f32 v{LSUM}, v{LSUM}, v{LB}', CV))
        ops.append((f'v_add_f32 v{LSUM+1}, v{LSUM+1}, v{LM if hyb else LB+1}', CV))
    prev = []
    qi = 0
    for qb in ((1, 0) if hyb else (0, 1)):
        for i in range(8):
            sa, sb = S_(p, qb) + 2 * i, S_(p, qb) + 2 * i + 1
            ta, tb = TMP + 2 * (qi % 4), TMP + 2 * (qi % 4) + 1
            ops.append((f'v_exp_f32 v{ta}, v{sa}', CE))
            ops += prev[:1]
            ops.append((f'v_exp_f32 v{tb}, v{sb}', CE))
            ops += prev[1:]
            prev = [(f'v_cvt_pk_bf16_f32 v{P_(p,qb)+i}, v{ta}, v{tb}', CV)]
            if not (hyb and qb == 1):
                if i == 0:
                    prev.append((f'v_add_f32 v{LB+qb}, v{ta}, v{tb}', CV))
                else:
                    prev.append((f'v_add_f32 v{LB+qb}, v{LB+qb}, v{ta}', CV))
                    prev.append((f'v_add_f32 v{LB+qb}, v{LB+qb}, v{tb}', CV))
            qi += 1
    ops += prev
    ops.append((f'v_max_f32 v{RT}, v{LB}, v{LM if hyb else LB+1}', CV))
    ops.append((f'v_cmp_nle_f32 vcc, v{RT}, v{MX}', CV))
    return ops

def lm_mfmas(p):
    return [(f'v_mfma_f32_16x16x32_bf16 {v(LM,4)}, {v(ONES,4)}, {v(P_(p,1),4)}, 0', 8),
            (f'v_mfma_f32_16x16x32_bf16 {v(LM,4)}, {v(ONES,4)}, {v(P_(p,1)+4,4)}, {v(LM,4)}', 8)]


def pv_mfmas(p, czero=False):
    m = []
    for ks in range(2):
        for db in range(4):
            for qb in range(2):
                c = '0' if (czero and ks == 0) else a(O_(db, qb), 16)
                m.append((f'v_mfma_f32_32x32x16_bf16 {a(O_(db,qb),16)}, {a(VF(ks,db),4)}, {v(P_(p,qb)+4*ks,4)}, {c}', 24))
    return m

def qk_mfmas(p, czero=False):
    m = []
    for s_ in range(8):
        for qb in range(2):
            c = v(S_(p, qb), 16) if s_ else ('0' if czero else v(NEGM(qb), 16))
            m.append((f'v_mfma_f32_32x32x16_bf16 {v(S_(p,qb),16)}, {a(KF(s_),4)}, {a(Q_(qb,s_),4)}, {c}', 24))
    return m

def k_reads(slot):
    ops = []
    base = KAD if slot < 4 else KADH
    for s_ in range(8):
        ops.append((f'ds_read_b128 {a(KF(s_),4)}, v{base+s_} offset:{(slot%4)*16384}', CD))
    return ops

def v_reads(slot):
    ops = []
    base = VAD if slot < 4 else VADH
    for ks in range(2):
        for db in range(4):
            for aa in range(2):
                ops.append((f'ds_read_b64_tr_b16 {a(VF(ks,db)+2*aa,2)}, v{base+db} offset:{(slot%4)*16384 + (2*ks+aa)*4096}', CD))
    return ops

def dma_ops(slot, pf=()):
    ops = [
        (f's_add_u32 m0, s{S_WB}, {slot*16384}', 20),
        (f'buffer_load_dwordx4 v{VKD0}, s[{SK}:{SK+3}], s{S_KOFF} offen lds', CM),
        (f'buffer_load_dwordx4 v{VKD1}, s[{SK}:{SK+3}], s{S_KOFF} offen offset:1024 lds', CM),
        (f'buffer_load_dwordx4 v{VVD}, s[{SV}:{SV+3}], s{S_KOFF} offen offset:2048 lds', CM),
        (f'buffer_load_dwordx4 v{VVD}, s[{SV}:{SV+3}], s{S_KOFF} offen offset:3072 lds', CM),
        (f's_add_u32 s{S_KOFF}, s{S_KOFF}, 8192', CS),
    ]
    for (k, off) in pf:
        if k == 'wo':
            ops.append((f'buffer_load_dwordx4 v[{PFD}:{PFD+3}], v{VH}, s[{SPFS[0]}:{SPFS[0]+3}], s{S_PW + off // 4} offen offset:{(off%4)*1024}', CM))
            continue
        ops.append((f's_add_u32 s{S_T0}, s{S_PF}, {off}', CS))
        ops.append((f'buffer_load_dwordx4 v[{PFD}:{PFD+3}], v{VPF}, s[{SPFS[k]}:{SPFS[k]+3}], s{S_T0} offen', CM))
    return ops


def body(j, name, tag, do_pv=True, do_qk=True, dma=True, vm=12, pvzero=False, pf=(), first=False, nobar=False):
    p = j % 2
    mf = []
    if do_pv: mf += pv_mfmas(1 - p, pvzero)
    npv = len(mf)
    if do_qk: mf += qk_mfmas(1 - p)
    short = not (do_pv and do_qk)
    if LMODE == 'hybrid' and not short:
        pos = len(mf) - TUNE['lmpos']
        mf = mf[:pos] + lm_mfmas(p) + mf[pos:]
    n = len(mf)
    pre = {}
    L = []
    queues = []
    bar = [f's_waitcnt vmcnt({vm})', 's_barrier'] if not nobar else []
    if do_pv:
        pre[0] = ['s_waitcnt lgkmcnt(0)']
        pre[1] = list(bar)
        kstart = 1
    else:
        L += bar
        kstart = 0
    if do_qk:
        if do_pv:
            queues.append(dict(items=k_reads((j + 1) % 8), start=kstart, end=min(kstart + TUNE['kspan'], npv - 3)))
            pre.setdefault(npv, []).append('s_waitcnt lgkmcnt(0)')
        else:
            L += [t for t, _ in k_reads((j + 1) % 8)]
            pre.setdefault(0, []).append('s_waitcnt lgkmcnt(0)')
    if dma:
        queues.append(dict(items=dma_ops((j + DK) % 8, pf), start=(TUNE['dstart'] if do_pv else 2), end=(TUNE['dend'] if do_pv else 13)))
    elif pf:
        queues.append(dict(items=dma_ops(0, pf)[6:], start=2, end=n - 4))
    vstart = npv if do_qk else npv - 1
    queues.append(dict(items=v_reads((j + 1) % 8), start=vstart, end=min(vstart + TUNE['vspan'], n - 1)))
    queues.append(dict(items=softmax_ops(p, first), start=(3 if do_qk else 6) if do_pv else 2, end=n - 2))
    if tag.startswith('l'):
        for q in queues:
            if 'nok' in ABL: q['items'] = [x for x in q['items'] if not x[0].startswith('ds_read_b128')]
            if 'nov' in ABL: q['items'] = [x for x in q['items'] if not x[0].startswith('ds_read_b64')]
            if 'nodma' in ABL: q['items'] = [x for x in q['items'] if not x[0].startswith('buffer_load')]
            if 'nosalu' in ABL: q['items'] = [x for x in q['items'] if not x[0].startswith('s_')]
            if 'noadd' in ABL: q['items'] = [x for x in q['items'] if not x[0].startswith('v_add')]
            if 'nocvt' in ABL: q['items'] = [x for x in q['items'] if not x[0].startswith('v_cvt')]
        if 'nobar' in ABL: pre[1] = []
    post = []
    if LMODE == 'hybrid' and short:
        post = ['s_nop 1'] + [t for t, _ in lm_mfmas(p)] + ['s_nop 7'] + [t for t, _ in queues[-1]['items'][-2:]]
        queues[-1]['items'] = queues[-1]['items'][:-2]
    out = interleave(mf, queues, pre) + post
    if LMODE == 'hybrid':
        ilm = [i for i, t in enumerate(out) if t.startswith('v_mfma_f32_16x16x32')][0]
        last = max(i for i, t in enumerate(out) if any(t.startswith(f'v_cvt_pk_bf16_f32 v{P_(p,1)+k},') for k in range(8)))
        assert last < ilm, (tag, last, ilm)
    L += out
    L.append(f's_cbranch_vccnz {name}_tr_{tag}')
    L.append(f'{name}_back_{tag}:')
    tramp = [f'{name}_tr_{tag}:', f's_call_b64 s[{S_RET}:{S_RET+1}], {name}_rare{p}', f's_branch {name}_back_{tag}']
    return L, tramp


def rowmax_delta(e, p, qb, clamp):
    t1, t2 = RT + 1, RT + 2
    e(f'v_max_f32 v{t1}, v{S_(p,qb)}, v{S_(p,qb)+1}')
    for i in range(1, 8):
        e(f'v_max3_f32 v{t1}, v{t1}, v{S_(p,qb)+2*i}, v{S_(p,qb)+2*i+1}')
    e(f'v_mov_b32 v{t2}, v{t1}')
    e('s_nop 1')
    e(f'v_permlane32_swap_b32 v{t1}, v{t2}')
    e(f'v_max_f32 v{t1}, v{t1}, v{t2}')
    e(f'v_ceil_f32 v{t1}, v{t1}')
    e(f'v_add_f32 v{t1}, 0x{f2u(BIAS):08x}, v{t1}')
    if clamp:
        e(f'v_max_f32 v{t1}, 0, v{t1}')
    return t1

def rare(name, p):
    L = [f'{name}_rare{p}:']
    e = L.append
    e('s_nop 15'); e('s_nop 15')
    for qb in range(2):
        d = rowmax_delta(e, p, qb, True)
        f = RT + 3
        e(f'v_cvt_i32_f32 v{f}, v{d}')
        e(f'v_sub_u32 v{f}, 0, v{f}')
        e(f'v_sub_f32 v{NEGM(qb)}, v{NEGM(qb)}, v{d}')
        for i in range(1, 16):
            e(f'v_mov_b32 v{NEGM(qb)+i}, v{NEGM(qb)}')
        for pp in range(2):
            for i in range(16):
                e(f'v_sub_f32 v{S_(pp,qb)+i}, v{S_(pp,qb)+i}, v{d}')
        e(f'v_mov_b32 v{LB+qb}, 0')
        for i in range(8):
            e(f'v_exp_f32 v{RT+4}, v{S_(p,qb)+2*i}')
            e(f'v_exp_f32 v{RT+5}, v{S_(p,qb)+2*i+1}')
            e('s_nop 0')
            e(f'v_cvt_pk_bf16_f32 v{P_(p,qb)+i}, v{RT+4}, v{RT+5}')
            e(f'v_add_f32 v{LB+qb}, v{LB+qb}, v{RT+4}')
            e(f'v_add_f32 v{LB+qb}, v{LB+qb}, v{RT+5}')
        if LMODE == 'hybrid' and qb == 1:
            e(f'v_mov_b32 v{RT+4}, v{LB+1}')
            e('s_nop 1')
            e(f'v_permlane32_swap_b32 v{LB+1}, v{RT+4}')
            e(f'v_add_f32 v{LM}, v{LB+1}, v{RT+4}')
        e(f'v_ldexp_f32 v{LSUM+qb}, v{LSUM+qb}, v{f}')
        for db in range(4):
            for i in range(0, 16, 4):
                for k in range(4):
                    e(f'v_accvgpr_read_b32 v{RT+4+k}, a{O_(db,qb)+i+k}')
                for k in range(4):
                    e(f'v_ldexp_f32 v{RT+4+k}, v{RT+4+k}, v{f}')
                for k in range(4):
                    e(f'v_accvgpr_write_b32 a{O_(db,qb)+i+k}, v{RT+4+k}')
    e('s_nop 1')
    e(f's_setpc_b64 s[{S_RET}:{S_RET+1}]')
    return L


def gen_attn(name='attn_kernel', prof=False):
    L = kernel_header(name)
    e = L.append
    vq = Q(63)
    prof_begin(L)
    dstamp(L, 2, 0)
    claim(L, name, 131072, vb=232)
    e(f's_load_dwordx2 s[52:53], s[0:1], {KA["wq"]}')
    e(f's_load_dwordx2 s[54:55], s[0:1], {KA["ws"]}')
    e(f's_load_dwordx4 s[48:51], s[0:1], {KA["k"]}')
    if PREFETCH:
        e(f's_load_dwordx2 s[80:81], s[0:1], {KA["wo"]}')
        e(f's_load_dwordx4 s[84:87], s[0:1], {KA["wg"]}')
        e(f's_load_dwordx2 s[82:83], s[0:1], {KA["wd"]}')
    e('v_lshrrev_b32 v1, 6, v0')
    e('v_and_b32 v2, 63, v0')
    e(f'v_readfirstlane_b32 s{S_W}, v1')
    e(f's_bfe_u32 s{S_T0}, s2, 0x20001')
    e(f's_lshr_b32 s{S_T1}, s2, 3')
    e(f's_lshl_b32 s{S_HEAD}, s{S_T0}, 3')
    e(f's_and_b32 s{S_T0}, s{S_T1}, 7')
    e(f's_add_u32 s{S_HEAD}, s{S_HEAD}, s{S_T0}')
    e(f's_lshr_b32 s{S_QB}, s{S_T1}, 3')
    e(f's_and_b32 s{S_T0}, s2, 1')
    e(f's_lshl_b32 s{S_T0}, s{S_T0}, 2')
    e(f's_add_u32 s{S_QB}, s{S_QB}, s{S_T0}')
    e(f's_lshl_b32 s{S_WB}, s{S_W}, 12')
    e('v_lshrrev_b32 v3, 4, v2')
    e('v_and_b32 v4, 15, v2')
    e(f'v_lshlrev_b32 v{VH}, 4, v2')
    e(f's_lshl_b32 s{S_T0}, s{S_W}, 3')
    e(f'v_add_u32 v10, s{S_T0}, v3')
    e('v_lshlrev_b32 v11, 2, v3')
    e('v_xor_b32 v11, v11, v4')
    e('v_lshlrev_b32 v12, 13, v10')
    e(f'v_lshl_add_u32 v{VWD}, v11, 4, v12')
    e(f's_lshl_b32 s{S_T0}, s{S_HEAD}, 8')
    e(f'v_add_u32 v{VWD}, s{S_T0}, v{VWD}')
    e(f's_lshl_b32 s{S_T0}, s{S_QB}, 3')
    e(f's_lshl_b32 s{S_T1}, s{S_W}, 1')
    e(f's_add_u32 s{S_O0}, s{S_T0}, s{S_T1}')
    e(f's_lshl_b32 s{S_H0}, s{S_O0}, 15')
    e(f's_add_u32 s{S_H1}, s{S_H0}, 32768')
    e('s_waitcnt lgkmcnt(0)')
    srd(L, SW, 52, 512 * 8192)
    srd_off(L, SH, 54, H1_OFF, 2048 * 1024)

    def ops_D(c):
        ops = []
        for hcl in range(2):
            hc = 2 * c + hcl
            for i in range(2):
                ops.append((f's_add_u32 m0, s{S_WB}, {HC_LOC[hc] + i*1024}', CS))
                ops.append((f's_mov_b32 s{S_T0}, {(32*hc + 4*i)*8192}', CS))
                ops.append((f'buffer_load_dwordx4 v{VWD}, s[{SW}:{SW+3}], s{S_T0} offen lds', CM, ('D', c)))
        return ops
    def ops_H(c):
        ops = []
        for ks in range(4):
            for qb in range(2):
                ops.append((f'buffer_load_dwordx4 {a(HF(c,ks,qb),4)}, v{VH}, s[{SH}:{SH+3}], s{S_H0+qb} offen offset:{ks*1024}', CM, ('H', c, ks)))
        ops.append((f's_add_u32 s{S_H0}, s{S_H0}, 4096', CS))
        ops.append((f's_add_u32 s{S_H1}, s{S_H1}, 4096', CS))
        return ops
    def ops_KV(t):
        ops = [(f's_add_u32 m0, s{S_WB}, {t*16384}', CS), (f's_mov_b32 s{S_T0}, {t*8192}', CS)]
        ops.append((f'buffer_load_dwordx4 v{VKD0}, s[{SK}:{SK+3}], s{S_T0} offen lds', CM, ('SL', t)))
        ops.append((f'buffer_load_dwordx4 v{VKD1}, s[{SK}:{SK+3}], s{S_T0} offen offset:1024 lds', CM, ('SL', t)))
        if t > 0:
            ops.append((f'buffer_load_dwordx4 v{VVD}, s[{SV}:{SV+3}], s{S_T0} offen offset:2048 lds', CM, ('SL', t)))
            ops.append((f'buffer_load_dwordx4 v{VVD}, s[{SV}:{SV+3}], s{S_T0} offen offset:3072 lds', CM, ('SL', t)))
        return ops
    def emit_ops(ops):
        for o in ops:
            e(o[0])
            if len(o) > 2: vq.issue(o[2])
    def w_reads(kstep):
        hc = kstep // 2
        loc = HC_LOC[hc] + (kstep % 2) * 8192
        base = WAD if loc < 65536 else WAD2
        loc &= 0xffff
        st = kstep % 2
        ops = []
        for db in range(4):
            for aa in range(2):
                ops.append((f'ds_read_b64_tr_b16 {a(WF(st,db)+2*aa,2)}, v{base+db} offset:{loc + aa*1024}', CD))
        return ops

    emit_ops(ops_D(0)); emit_ops(ops_H(0)); emit_ops(ops_D(1))
    dstamp(L, 2, 1)
    e('v_lshrrev_b32 v5, 5, v2')
    e('v_and_b32 v6, 31, v2')
    e('v_and_b32 v7, 1, v3')
    e('v_lshrrev_b32 v8, 2, v4')
    e('v_and_b32 v9, 3, v2')
    e('v_lshlrev_b32 v12, 8, v10')
    e(f'v_lshl_add_u32 v{VVD}, v11, 4, v12')
    e('v_and_b32 v11, 15, v10')
    e('v_xor_b32 v11, v11, v4')
    e(f'v_lshl_add_u32 v{VKD0}, v11, 4, v12')
    e('v_add_u32 v11, 4, v10')
    e('v_and_b32 v11, 15, v11')
    e('v_xor_b32 v11, v11, v4')
    e(f'v_lshl_add_u32 v{VKD1}, v11, 4, v12')
    e('v_and_b32 v10, 15, v6')
    e('v_lshrrev_b32 v12, 3, v6')
    e('v_lshlrev_b32 v12, 12, v12')
    e('v_and_b32 v13, 7, v6')
    e('v_lshl_add_u32 v12, v13, 8, v12')
    for s_ in range(8):
        e(f'v_add_u32 v11, {2*s_}, v5')
        e('v_xor_b32 v11, v11, v10')
        e(f'v_lshl_add_u32 v{KAD+s_}, v11, 4, v12')
        e(f'v_add_u32 v{KADH+s_}, 0x10000, v{KAD+s_}')
    e('v_lshl_add_u32 v10, v5, 2, v8')
    e('v_lshlrev_b32 v10, 8, v10')
    e('v_lshl_add_u32 v10, v7, 5, v10')
    e('v_lshl_add_u32 v13, v9, 3, v10')
    e('v_add_u32 v13, 2048, v13')
    for db in range(4):
        e(f'v_xor_b32 v11, {db}, v8')
        e(f'v_lshl_add_u32 v{VAD+db}, v11, 6, v13')
        e(f'v_add_u32 v{VADH+db}, 0x10000, v{VAD+db}')
    e('v_lshlrev_b32 v10, 12, v5')
    e('v_lshl_add_u32 v10, v8, 8, v10')
    e('v_lshl_add_u32 v10, v7, 5, v10')
    e('v_and_b32 v11, 1, v9')
    e('v_lshlrev_b32 v11, 1, v11')
    e('v_lshrrev_b32 v12, 1, v9')
    e('v_or_b32 v11, v11, v12')
    e('v_lshl_add_u32 v13, v11, 3, v10')
    for db in range(4):
        e(f'v_xor_b32 v11, {db}, v8')
        e(f'v_lshl_add_u32 v{WAD+db}, v11, 6, v13')
        e(f'v_add_u32 v{WAD2+db}, 0x10000, v{WAD+db}')
    if LMODE == 'hybrid':
        e('v_lshrrev_b32 v10, 2, v2')
        e('v_xor_b32 v10, v10, v3')
        e('v_and_b32 v10, 1, v10')
        e('v_cmp_eq_u32 vcc, 0, v10')
        e('v_mov_b32 v11, 0x3f803f80')
        e('s_nop 0')
        for i in range(4):
            e(f'v_cndmask_b32 v{ONES+i}, 0, v11, vcc')
    e(f'v_mov_b32 v{MX}, 0x{f2u(THRESH):08x}')
    e(f'v_mov_b32 v{LSUM}, 0')
    e(f'v_mov_b32 v{LSUM+1}, 0')
    e(f's_lshl_b32 s{S_T0}, s{S_HEAD}, 19')
    srd_off(L, SK, 48, f's{S_T0}', 524288)
    e(f's_sub_u32 s50, s50, 10240')
    e(f's_subb_u32 s51, s51, 0')
    srd_off(L, SV, 50, f's{S_T0}', 524288 + 10240)
    srd_off(L, SO, 54, O_OFF, 2048 * 8192)
    e(f's_lshl_b32 s{S_O0}, s{S_O0}, 18')
    e(f's_lshl_b32 s{S_T1}, s{S_HEAD}, 13')
    e(f's_add_u32 s{S_O0}, s{S_O0}, s{S_T1}')
    e(f's_add_u32 s{S_O1}, s{S_O0}, 4096')
    e(f's_add_u32 s{S_O2}, s{S_O0}, {1<<18}')
    e(f's_add_u32 s{S_O3}, s{S_O2}, 4096')
    if PREFETCH:
        srd(L, SPFS[0], 80, 4096 * 1024)
        srd(L, SPFS[1], 84, 512 * 3584)
        srd(L, SPFS[2], 86, 512 * 3584)
        srd(L, SPFS[3], 82, 1792 * 1024)
        e(f's_lshl_b32 s{S_PF}, s2, 12')
        e(f's_bfe_u32 s{S_T0}, s2, 0x20001')
        e(f's_lshl_b32 s{S_T0}, s{S_T0}, 20')
        e(f's_lshr_b32 s{S_T1}, s2, 3')
        e(f's_lshl_b32 s{S_T1}, s{S_T1}, 15')
        e(f's_add_u32 s{S_T0}, s{S_T0}, s{S_T1}')
        e(f's_lshl_b32 s{S_T1}, s{S_W}, 13')
        e(f's_add_u32 s{S_PW}, s{S_T0}, s{S_T1}')
        e(f's_add_u32 s{S_PW+1}, s{S_PW}, 4096')
        e(f'v_lshlrev_b32 v{VPF}, 4, v0')
    n = vq.wait_for(lambda t: t == ('D', 0))
    e(f's_waitcnt vmcnt({n})')
    e('s_barrier')
    dstamp(L, 2, 2)
    L += [t for t, _ in w_reads(0)]
    plan = {0: ops_H(1) + ops_D(2) + ops_H(2)}
    for c in range(1, 6):
        plan[c] = ops_D(c + 2) + ops_H(c + 2)
    plan[6] = []; plan[7] = []
    def conv_ops(db):
        ops = []
        for qb in range(2):
            for sp in range(2):
                for i in range(4):
                    r = QA(db, qb) + 8 * sp + 2 * i
                    ops.append((f'v_mul_f32 v{r}, s{S_T1}, v{r}', CV))
                    ops.append((f'v_mul_f32 v{r+1}, s{S_T1}, v{r+1}', CV))
                for i in range(4):
                    r = QA(db, qb) + 8 * sp + 2 * i
                    ops.append((f'v_cvt_pk_bf16_f32 v{TMP+4*(sp%2)+i}, v{r}, v{r+1}', CV))
                for i in range(4):
                    ops.append((f'v_accvgpr_write_b32 a{Q_(qb, 2*db+sp)+i}, v{TMP+4*(sp%2)+i}', CV))
        return ops
    for c in range(8):
        vops = list(plan[c])
        nv = len(vops)
        for ks in range(4):
            kstep = 4 * c + ks
            st = kstep % 2
            n = vq.wait_for(lambda t: t == ('H', c, ks))
            if n is not None: e(f's_waitcnt vmcnt({n})')
            e('s_waitcnt lgkmcnt(0)')
            part = []
            if ks < 3:
                k0 = nv * ks // 3; k1 = nv * (ks + 1) // 3
                part = vops[k0:k1]
            else:
                if c < 7:
                    n = vq.wait_for(lambda t: t == ('D', c + 1))
                else:
                    n = vq.wait_for(lambda t: t in (('SL', 0),))
                if n is not None:
                    e(f's_waitcnt vmcnt({n})')
                e('s_barrier')
                for t in KV_AT.get(c, []):
                    part += ops_KV(t)
            mf = []
            for db in range(4):
                for qb in range(2):
                    cc = '0' if kstep == 0 else v(QA(db, qb), 16)
                    mf.append((f'v_mfma_f32_32x32x16_bf16 {v(QA(db,qb),16)}, {a(WF(st,db),4)}, {a(HF(c,ks,qb),4)}, {cc}', 24))
            qs = []
            if kstep < 31:
                qs.append(dict(items=w_reads(kstep + 1), start=0, end=5))
            else:
                pass
            if part:
                qs.append(dict(items=[(o[0], o[1]) for o in part], start=0, end=7))
            L += interleave(mf, qs)
            for o in part:
                if len(o) > 2: vq.issue(o[2])
    dstamp(L, 2, 3)
    L += [t for t, _ in k_reads(0)]
    e(f's_mov_b32 s{S_T1}, 0x{f2u(QSCALE):08x}')
    e('s_nop 4')
    L += [t for t, _ in conv_ops(0)]
    e('s_waitcnt lgkmcnt(0)')
    qk0 = qk_mfmas(0, czero=True)
    for db in range(1, 4):
        L += interleave(qk0[4*(db-1):4*db], [dict(items=conv_ops(db), start=0, end=3)])
    e('s_nop 1')
    L += [t for t, _ in qk0[12:]]
    e('s_nop 15')
    for qb in range(2):
        d = rowmax_delta(e, 0, qb, False)
        e(f'v_sub_f32 v{NEGM(qb)}, 0, v{d}')
        for i in range(1, 16):
            e(f'v_mov_b32 v{NEGM(qb)+i}, v{NEGM(qb)}')
        for i in range(16):
            e(f'v_sub_f32 v{S_(0,qb)+i}, v{S_(0,qb)+i}, v{d}')
    e(f's_mov_b32 s{S_KOFF}, {DK*8192}')
    dstamp(L, 2, 4)
    tramps = []
    pfl = [(0, i << 20) for i in range(4)] + [(k, i << 20) for k in (1, 2, 3) for i in range(2)] if PREFETCH else []
    def mk(j, tag, **kw):
        need = (lambda t: t == ('SL', j + 1))
        nn = vq.wait_for(need)
        if nn is None: nn = 63
        if 'vmmax' in kw: nn = min(nn, kw.pop('vmmax'))
        b, t = body(j, name, tag, vm=nn, **kw)
        if kw.get('dma', True):
            for _ in range(4): vq.issue(('SL', j + DK))
        for _ in kw.get('pf', ()): vq.issue(('pf', j))
        return b, t
    b0, t0 = mk(0, 'p0', do_pv=False, first=True)
    L += b0; tramps += t0
    b1, t1 = mk(1, 'p1', pvzero=True)
    L += b1; tramps += t1
    e(f's_mov_b32 s{S_CNT}, 7')
    e(f'{name}_loop:')
    loop = []
    for u in range(8):
        if BAR2:
            b, t = mk(2 + u, f'l{u}', vmmax=8, nobar=(u % 2 == 1))
        else:
            b, t = mk(2 + u, f'l{u}', vmmax=12)
        loop += b; tramps += t
    L += loop
    e(f's_sub_u32 s{S_CNT}, s{S_CNT}, 1')
    e(f's_cmp_lg_u32 s{S_CNT}, 0')
    e(f's_cbranch_scc1 {name}_loop')
    tail = []
    vq.items = [('SL', t) for t in range(59, 63) for _ in range(4)]
    for j in range(58, 64):
        pf = ()
        if PREFETCH and j == 60: pf = [('wo', i) for i in range(8)]
        if PREFETCH and j == 61: pf = pfl[4:]
        b, t = mk(j, f't{j}', dma=(j + DK <= 64), do_qk=(j < 63), pf=pf)
        tail += b; tramps += t
    L += tail
    code_prefetch(L, 'attn', 'wo_kernel', 'code_end', 60, 236, 240, 1, 4)
    dstamp(L, 2, 5)
    ep = []
    hyb = LMODE == 'hybrid'
    for qb in range(2):
        ep.append(f'v_add_f32 v{LSUM+qb}, v{LSUM+qb}, v{LM if (hyb and qb) else LB+qb}')
        ep.append(f'v_mov_b32 v{RT+2+qb}, v{LSUM+qb}')
    ep.append('s_nop 1')
    for qb in range(1 if hyb else 2):
        ep.append(f'v_permlane32_swap_b32 v{LSUM+qb}, v{RT+2+qb}')
    for qb in range(1 if hyb else 2):
        ep.append(f'v_add_f32 v{LSUM+qb}, v{LSUM+qb}, v{RT+2+qb}')
    for qb in range(2):
        ep.append(f'v_rcp_f32 v{RT+qb}, v{LSUM+qb}')
    ep.append('s_waitcnt lgkmcnt(0)')
    def norm_ops(db, qb, k):
        ops = []
        for sp in range(2):
            base = 32 + 8 * ((2 * k + sp) % 8)
            pk = 128 + 4 * ((2 * k + sp) % 8)
            for i in range(8):
                ops.append((f'v_accvgpr_read_b32 v{base+i}, a{O_(db,qb)+8*sp+i}', CV))
            for i in range(8):
                ops.append((f'v_mul_f32 v{base+i}, v{base+i}, v{RT+qb}', CV))
            for i in range(4):
                ops.append((f'v_cvt_pk_bf16_f32 v{pk+i}, v{base+2*i}, v{base+2*i+1}', CV))
            t = 2 * db + sp
            so = S_O0 + 2 * qb + (1 if t >= 4 else 0)
            ops.append((f'buffer_store_dwordx4 {v(pk,4)}, v{VH}, s[{SO}:{SO+3}], s{so} offen offset:{(t%4)*1024}{OSC}', CM))
        return ops
    pv = pv_mfmas(1)
    ep += [t for t, _ in pv[:12]]
    ep += interleave(pv[12:], [dict(items=[('s_nop 7', 4)] + norm_ops(0, 0, 0), start=0, end=3)])
    k = 1
    for db in range(4):
        for qb in range(2):
            if (db, qb) == (0, 0): continue
            if db == 3 and qb == 0: ep.append('s_nop 0')
            ep += [t for t, _ in norm_ops(db, qb, k)]
            k += 1
    L += ep
    dstamp(L, 2, 6)
    dstamp_store(L, 2, 7)
    prof_end(L, 2, 1)
    e(f'{name}_done:')
    e('s_endpgm')
    L += tramps
    L += rare(name, 0) + rare(name, 1)
    L = hoist(L)
    pro_end = L.index(f'{name}_loop:')
    trace = L[:pro_end] + loop + loop + tail + ep
    hz = check_hazards(trace, name)
    hz += check_hazards(loop[-30:] + rare(name, 0) + loop[:30], name + '_rare0')
    hz += check_hazards(loop[-30:] + rare(name, 1) + loop[:30], name + '_rare1')
    for h in hz: print('HAZARD', h)
    return L, kernel_desc(name, 512, 102, 256), f'; @launch kernel={name} grid=(256,1,1) block=(256,1,1) lds=131328'
```

```python
from asmlib import *
import asmlib
from k_small import *

SLEEP = 0
PF_LATE = True
SC = 'sc0 sc1'
def gen_pre(name='pre_kernel'):
    L = kernel_header(name)
    e = L.append
    prof_begin(L)
    if asmlib.STAMPK == 1:
        asmlib.STAMPI = 's_memrealtime'; asmlib.STAMPB = 80
        for i in range(1, 6): e(f's_mov_b32 s{80+2*i}, 0')
    dstamp(L, 1, 0)
    SX, SM, SH, SWQ, SKK, SVV, SCC_, SWM, SDB = 8, 12, 16, 20, 24, 40, 52, 56, 60
    e('s_cmp_ge_u32 s2, 256')
    e(f's_cbranch_scc1 {name}_done')
    code_prefetch(L, 'pre', 'pre_kernel', 'code_end', 80, 112, 116, 1, 4)
    e(f's_load_dwordx2 s[4:5], s[0:1], {KA["x"]}')
    e(f's_load_dwordx4 s[64:67], s[0:1], {KA["dbg"]}')
    e(f's_load_dwordx4 s[68:71], s[0:1], {KA["c"]}')
    e(f's_load_dwordx4 s[44:47], s[0:1], {KA["k"]}')
    e(f's_load_dwordx2 s[48:49], s[0:1], {KA["wq"]}')
    e('v_and_b32 v1, 63, v0')
    e('v_lshrrev_b32 v2, 6, v0')
    e('v_and_b32 v3, 7, v1')
    e('v_lshrrev_b32 v4, 3, v1')
    e('v_readfirstlane_b32 s36, v2')
    e('s_and_b32 s28, s2, 1')
    e('s_lshl_b32 s28, s28, 7')
    e('s_bfe_u32 s29, s2, 0x20001')
    e('s_lshl_b32 s30, s29, 5')
    e('s_add_u32 s28, s28, s30')
    e('s_lshr_b32 s31, s2, 3')
    e('s_add_u32 s28, s28, s31')
    e('s_lshl_b32 s30, s28, 13')
    e('v_lshlrev_b32 v5, 4, v4')
    e('v_lshl_add_u32 v5, v2, 8, v5')
    e('v_lshl_add_u32 v6, v3, 10, v5')
    e('s_waitcnt lgkmcnt(0)')
    srd(L, SX, 4, 2048 * 1024)
    srd_off(L, SM, 66, MOD_OFF, 6144)
    srd_off(L, SH, 66, H1_OFF, 2048 * 1024)
    srd(L, SDB, 64, 256)
    for i in range(2):
        e(f'buffer_load_dwordx4 v[{120+4*i}:{123+4*i}], v6, s[{SX}:{SX+3}], s30 offen offset:{128*i}')
    e('s_cmp_ge_u32 s2, 96')
    e(f's_cbranch_scc1 {name}_nomod')
    srd(L, SCC_, 68, 1024)
    srd(L, SWM, 70, 512 * 6144)
    e('v_and_b32 v100, 3, v0')
    e('v_lshrrev_b32 v101, 2, v0')
    e('s_movk_i32 s3, 6144')
    e('v_mul_lo_u32 v102, v101, s3')
    e('v_lshl_add_u32 v102, v100, 4, v102')
    e('v_lshlrev_b32 v103, 1, v101')
    e('s_lshl_b32 s72, s2, 6')
    for i in range(1, 8):
        e(f's_add_u32 s{72+i}, s{71+i}, {64*6144}')
    for i in range(8):
        e(f'buffer_load_ushort v{8+i}, v103, s[{SCC_}:{SCC_+3}], 0 offen offset:{128*i}')
    for i in range(8):
        e(f'buffer_load_dwordx4 v[{16+4*i}:{19+4*i}], v102, s[{SWM}:{SWM+3}], s{72+i} offen')
    for j in range(8):
        e(f'v_mov_b32 v{48+j}, 0')
    e('s_waitcnt vmcnt(8)')
    for i in range(8):
        e(f'v_lshlrev_b32 v{8+i}, 16, v{8+i}')
    for i in range(8):
        e(f'v_mul_f32 v{56+i}, 0x{NLOG2E:08x}, v{8+i}')
    for i in range(8):
        e(f'v_exp_f32 v{56+i}, v{56+i}')
    for i in range(8):
        e(f'v_add_f32 v{56+i}, 1.0, v{56+i}')
    for i in range(8):
        e(f'v_rcp_f32 v{56+i}, v{56+i}')
    for i in range(8):
        e(f'v_mul_f32 v{56+i}, v{8+i}, v{56+i}')
    for i in range(8):
        e(f'v_cvt_pk_bf16_f32 v{56+i}, v{56+i}, v{56+i}')
    for i in range(8):
        e(f'v_lshlrev_b32 v{56+i}, 16, v{56+i}')
    for i in range(8):
        e(f's_waitcnt vmcnt({7-i})')
        for j in range(4):
            w = 16 + 4*i + j
            e(f'v_lshlrev_b32 v64, 16, v{w}')
            e(f'v_and_b32 v65, 0xffff0000, v{w}')
            e(f'v_fmac_f32 v{48+2*j}, v64, v{56+i}')
            e(f'v_fmac_f32 v{49+2*j}, v65, v{56+i}')
    e('s_nop 1')
    for j in range(8):
        e(f'v_add_f32_dpp v{64+j}, v{48+j}, v{48+j} row_ror:4 row_mask:0xf bank_mask:0xf')
    e('s_nop 1')
    for j in range(8):
        e(f'v_add_f32_dpp v{48+j}, v{64+j}, v{64+j} row_ror:8 row_mask:0xf bank_mask:0xf')
    e('v_lshrrev_b32 v104, 4, v0')
    e('v_lshlrev_b32 v104, 7, v104')
    e('v_lshl_add_u32 v104, v100, 5, v104')
    e('ds_write_b128 v104, v[48:51] offset:2048')
    e('ds_write_b128 v104, v[52:55] offset:2064')
    e('s_waitcnt lgkmcnt(0)')
    e('s_barrier')
    e('s_cmp_lg_u32 s36, 0')
    e(f's_cbranch_scc1 {name}_nomod')
    e('v_and_b32 v105, 15, v0')
    e('v_lshlrev_b32 v106, 3, v105')
    for p in range(16):
        e(f'ds_read_b64 v[{8+2*p}:{9+2*p}], v106 offset:{2048+128*p}')
    e('s_waitcnt lgkmcnt(0)')
    for p in range(1, 16):
        e(f'v_add_f32 v8, v8, v{8+2*p}')
        e(f'v_add_f32 v9, v9, v{9+2*p}')
    e('v_cvt_pk_bf16_f32 v8, v8, v9')
    e('v_lshlrev_b32 v107, 2, v105')
    e('s_lshl_b32 s3, s2, 6')
    e('v_cmp_gt_u32 vcc, 16, v0')
    e('s_and_saveexec_b64 s[32:33], vcc')
    e(f'buffer_store_dword v8, v107, s[{SM}:{SM+3}], s3 offen {SC}')
    e('s_mov_b64 exec, s[32:33]')
    e('s_cmp_ge_u32 s2, 32')
    e(f's_cbranch_scc1 {name}_nomod')
    dstamp(L, 1, 1)
    e('s_waitcnt vmcnt(0)')
    dstamp(L, 1, 2)
    e('v_mov_b32 v8, 1')
    e('v_mov_b32 v9, 0')
    e('s_lshl_b32 s3, s2, 2')
    e('v_cmp_eq_u32 vcc, 0, v0')
    e('s_and_saveexec_b64 s[32:33], vcc')
    e(f'buffer_store_dword v8, v9, s[{SDB}:{SDB+3}], s3 offen {SC}')
    e('s_mov_b64 exec, s[32:33]')
    e(f'{name}_nomod:')
    npf = 0
    if not PF_LATE:
        npf = 0
        srd(L, SWQ, 48, 512 * 8192)
        srd(L, SKK, 44, 0)
        srd(L, SVV, 46, 0)
        e('v_lshlrev_b32 v7, 4, v1')
        e('s_lshl_b32 s32, s31, 4')
        e('s_lshl_b32 s33, s36, 2')
        e('s_add_u32 s32, s32, s33')
        e('s_lshl_b32 s32, s32, 13')
        e('s_lshl_b32 s33, s29, 11')
        e('s_add_u32 s32, s32, s33')
        for r in range(4):
            for hf in range(2):
                e(f'buffer_load_dwordx4 v[96:99], v7, s[{SWQ}:{SWQ+3}], s32 offen offset:{hf*1024}')
                npf += 1
            e('s_add_u32 s32, s32, 8192')
        e('s_lshl_b32 s32, s29, 3')
        e('s_lshr_b32 s33, s31, 2')
        e('s_add_u32 s32, s32, s33')
        e('s_lshl_b32 s32, s32, 19')
        e('s_and_b32 s33, s31, 3')
        e('s_lshl_b32 s33, s33, 2')
        e('s_add_u32 s33, s33, s36')
        e('s_lshl_b32 s33, s33, 11')
        e('s_add_u32 s32, s32, s33')
        for sr in (SKK, SVV):
            for hf in range(2):
                e(f'buffer_load_dwordx4 v[96:99], v7, s[{sr}:{sr+3}], s32 offen offset:{hf*1024}')
                npf += 1
    e('v_lshl_add_u32 v32, v2, 3, v4')
    e('v_lshlrev_b32 v32, 2, v32')
    e('v_lshl_add_u32 v33, v3, 7, v32')
    e('v_lshlrev_b32 v34, 7, v3')
    e(f's_waitcnt vmcnt({npf})')
    for r in range(8):
        e(f'v_lshlrev_b32 v{40+2*r}, 16, v{120+r}')
        e(f'v_and_b32 v{41+2*r}, 0xffff0000, v{120+r}')
    e('v_add_f32 v35, v40, v41')
    e('v_add_f32 v36, v42, v43')
    for r in range(4, 16, 2):
        e(f'v_add_f32 v35, v35, v{40+r}')
        e(f'v_add_f32 v36, v36, v{41+r}')
    e('v_add_f32 v35, v35, v36')
    def reduce(src, off, dst):
        e(f'ds_write_b32 v33, v{src} offset:{off}')
        e('s_waitcnt lgkmcnt(0)')
        e('s_barrier')
        for q in range(8):
            e(f'ds_read_b128 v[{64+4*q}:{67+4*q}], v34 offset:{off + 16*q}')
        e('s_waitcnt lgkmcnt(0)')
        for q in range(16):
            e(f'v_add_f32 v{64+q}, v{64+q}, v{80+q}')
        for q in range(8):
            e(f'v_add_f32 v{64+q}, v{64+q}, v{72+q}')
        for q in range(4):
            e(f'v_add_f32 v{64+q}, v{64+q}, v{68+q}')
        e('v_add_f32 v64, v64, v66')
        e('v_add_f32 v65, v65, v67')
        e('v_add_f32 v64, v64, v65')
        e(f'v_mul_f32 v{dst}, 0x3b000000, v64')
    reduce(35, 0, 35)
    e('v_sub_f32 v36, v40, v35')
    e('v_mul_f32 v37, v36, v36')
    e('v_sub_f32 v36, v41, v35')
    e('v_mul_f32 v38, v36, v36')
    for r in range(2, 16):
        e(f'v_sub_f32 v36, v{40+r}, v35')
        e(f'v_fmac_f32 v{37 + (r & 1)}, v36, v36')
    e('v_add_f32 v37, v37, v38')
    reduce(37, 1024, 36)
    rnd_pair(e, 35, 36, 35, 36, 39)
    e('v_add_f32 v36, 0x3727c5ac, v36')
    e('v_cvt_pk_bf16_f32 v36, v36, v36')
    e('v_lshlrev_b32 v36, 16, v36')
    e('v_sqrt_f32 v36, v36')
    e('s_nop 0')
    e('v_cvt_pk_bf16_f32 v36, v36, v36')
    e('v_lshlrev_b32 v36, 16, v36')
    e('v_rcp_f32 v36, v36')
    for pr in range(8):
        x0, x1 = 40 + 2 * pr, 41 + 2 * pr
        e(f'v_sub_f32 v{x0}, v{x0}, v35')
        e(f'v_sub_f32 v{x1}, v{x1}, v35')
        rnd_pair(e, x0, x1, x0, x1, 39)
        e(f'v_mul_f32 v{x0}, v{x0}, v36')
        e(f'v_mul_f32 v{x1}, v{x1}, v36')
        rnd_pair(e, x0, x1, x0, x1, 39)
    def pf_block():
        srd(L, SWQ, 48, 512 * 8192)
        srd(L, SKK, 44, 0)
        srd(L, SVV, 46, 0)
        e('v_lshlrev_b32 v7, 4, v1')
        e('s_lshl_b32 s32, s31, 4')
        e('s_lshl_b32 s33, s36, 2')
        e('s_add_u32 s32, s32, s33')
        e('s_lshl_b32 s32, s32, 13')
        e('s_lshl_b32 s33, s29, 11')
        e('s_add_u32 s32, s32, s33')
        for r in range(4):
            for hf in range(2):
                e(f'buffer_load_dwordx4 v[96:99], v7, s[{SWQ}:{SWQ+3}], s32 offen offset:{hf*1024}')
            e('s_add_u32 s32, s32, 8192')
        e('s_lshl_b32 s32, s29, 3')
        e('s_lshr_b32 s33, s31, 2')
        e('s_add_u32 s32, s32, s33')
        e('s_lshl_b32 s32, s32, 19')
        e('s_and_b32 s33, s31, 3')
        e('s_lshl_b32 s33, s33, 2')
        e('s_add_u32 s33, s33, s36')
        e('s_lshl_b32 s33, s33, 11')
        e('s_add_u32 s32, s32, s33')
        for sr in (SKK, SVV):
            for hf in range(2):
                e(f'buffer_load_dwordx4 v[96:99], v7, s[{sr}:{sr+3}], s32 offen offset:{hf*1024}')
    e('s_cmp_eq_u32 s36, 0')
    e(f's_cbranch_scc1 {name}_nopf')
    pf_block()
    e(f'{name}_nopf:')
    e('v_lshrrev_b32 v8, 1, v4')
    e('v_lshl_add_u32 v8, v2, 3, v8')
    e('v_lshlrev_b32 v8, 10, v8')
    e('v_and_b32 v9, 1, v4')
    e('v_lshl_add_u32 v9, v9, 5, v3')
    e('s_and_b32 s32, s28, 3')
    e('s_lshl_b32 s32, s32, 3')
    e('v_add_u32 v9, s32, v9')
    e('v_lshl_add_u32 v8, v9, 4, v8')
    e('s_lshr_b32 s32, s28, 2')
    e('s_lshl_b32 s32, s32, 15')
    e('s_add_u32 s33, s32, 4096')
    dstamp(L, 1, 3)
    e('s_cmp_lg_u32 s36, 0')
    e(f's_cbranch_scc1 {name}_wait')
    e('v_and_b32 v10, 31, v0')
    e('v_lshlrev_b32 v10, 2, v10')
    e('s_mov_b32 s34, 0x100000')
    e(f'{name}_poll:')
    if SLEEP: e(f's_sleep {SLEEP}')
    e(f'buffer_load_dword v11, v10, s[{SDB}:{SDB+3}], 0 offen {SC}')
    e('s_waitcnt vmcnt(0)')
    e('v_cmp_eq_u32 vcc, 0, v11')
    e('s_sub_u32 s34, s34, 1')
    e('s_cmp_eq_u32 s34, 0')
    e(f's_cbranch_scc1 {name}_wait')
    e(f's_cbranch_vccnz {name}_poll')
    e(f'{name}_wait:')
    e('s_barrier')
    dstamp(L, 1, 4)
    for i in range(2):
        e(f'buffer_load_dwordx4 v[{16+4*i}:{19+4*i}], v5, s[{SM}:{SM+3}], 0 offen offset:{128*i} {SC}')
    for i in range(2):
        e(f'buffer_load_dwordx4 v[{24+4*i}:{27+4*i}], v5, s[{SM}:{SM+3}], 0 offen offset:{1024+128*i} {SC}')
    e('s_waitcnt vmcnt(0)')
    for pr in range(8):
        x0, x1 = 40 + 2 * pr, 41 + 2 * pr
        e(f'v_lshlrev_b32 v37, 16, v{24+pr}')
        e(f'v_and_b32 v38, 0xffff0000, v{24+pr}')
        e('v_add_f32 v37, 1.0, v37')
        e('v_add_f32 v38, 1.0, v38')
        rnd_pair(e, 37, 38, 37, 38, 39)
        e(f'v_mul_f32 v{x0}, v{x0}, v37')
        e(f'v_mul_f32 v{x1}, v{x1}, v38')
        rnd_pair(e, x0, x1, x0, x1, 39)
        e(f'v_lshlrev_b32 v37, 16, v{16+pr}')
        e(f'v_and_b32 v38, 0xffff0000, v{16+pr}')
        e(f'v_add_f32 v{x0}, v{x0}, v37')
        e(f'v_add_f32 v{x1}, v{x1}, v38')
        e(f'v_cvt_pk_bf16_f32 v{56+pr}, v{x0}, v{x1}')
    e(f'buffer_store_dwordx4 v[56:59], v8, s[{SH}:{SH+3}], s32 offen')
    e(f'buffer_store_dwordx4 v[60:63], v8, s[{SH}:{SH+3}], s33 offen')
    e('s_cmp_lg_u32 s36, 0')
    e(f's_cbranch_scc1 {name}_nopf2')
    pf_block()
    e(f'{name}_nopf2:')
    dstamp(L, 1, 5)
    dstamp_store(L, 1, 6)
    if asmlib.STAMPK == 1:
        asmlib.STAMPI = 's_memtime'; asmlib.STAMPB = 64
    prof_end(L, 1, 1)
    e(f'{name}_done:')
    e('s_endpgm')
    for h in check_hazards(L, name): print('HAZARD', h)
    return L, kernel_desc(name, 128, 102, 128), f'; @launch kernel={name} grid=(256,1,1) block=(256,1,1) lds=4096'
```
